```python
import torch

def _softmax(x, axis=-1):
    return torch.softmax(x, dim=axis)

def _gelu(x):
    return torch.nn.functional.gelu(x, approximate='tanh')

def _silu(x):
    return torch.nn.functional.silu(x)

def _sigmoid(x):
    return torch.sigmoid(x)

def _layernorm(x, axis=-1, eps=1e-05):
    m = x.mean(dim=axis, keepdim=True)
    v = x.var(dim=axis, keepdim=True, unbiased=False)
    return (x - m) / torch.sqrt(v + eps)

def _scatter_add(tgt, idx, src, axis=0):
    return tgt.clone().index_add_(axis, idx, src)

def _segment_sum(src, seg, n):
    out = torch.zeros((n,) + src.shape[1:], dtype=src.dtype)
    return out.index_add_(0, seg, src)

def _pad(x, pw):
    flat = tuple((v for pair in reversed(pw) for v in pair))
    return torch.nn.functional.pad(x, flat)
kernel_name = 'standalone__tree_speculative_verify_tree_attention_over_candidate_token_tree__sampling'

def setup_inputs():

    _w = lambda a: (lambda t: t.to(torch.bfloat16) if t.is_floating_point() else t)(torch.as_tensor(a))
    B, Hq, Hkv, T, C, D = (8, 32, 16, 16, 8192, 128)
    tree_mask = torch.zeros((B, T, T), dtype=float)
    for b in range(B):
        parent = torch.zeros(T, dtype=torch.int64)
        for i in range(1, T):
            parent[i] = int(torch.randint(0, i, (1,)).item())
        for i in range(T):
            j = i
            tree_mask[b, i, j] = 1.0
            while j > 0:
                j = parent[j]
                tree_mask[b, i, j] = 1.0
    return {'q': _w((lambda *s: torch.randn(*s, dtype=torch.bfloat16) * 0.8)(B, Hq, T, D)), 'k_cache': _w((lambda *s: torch.randn(*s, dtype=torch.bfloat16) * 0.8)(B, Hkv, C, D)), 'v_cache': _w((lambda *s: torch.randn(*s, dtype=torch.bfloat16) * 0.05)(B, Hkv, C, D)), 'k_tree': _w((lambda *s: torch.randn(*s, dtype=torch.bfloat16) * 0.8)(B, Hkv, T, D)), 'v_tree': _w((lambda *s: torch.randn(*s, dtype=torch.bfloat16) * 0.05)(B, Hkv, T, D)), 'tree_mask': _w(tree_mask)}

def reference(q, k_cache, v_cache, k_tree, v_tree, tree_mask):
    B, Hq, T, D = q.shape
    Hkv, C = (k_cache.shape[1], k_cache.shape[2])
    rep = Hq // Hkv
    kc = (lambda x, n, axis: torch.repeat_interleave(x, n, dim=axis))(k_cache, rep, axis=1)
    vc = (lambda x, n, axis: torch.repeat_interleave(x, n, dim=axis))(v_cache, rep, axis=1)
    kt = (lambda x, n, axis: torch.repeat_interleave(x, n, dim=axis))(k_tree, rep, axis=1)
    vt = (lambda x, n, axis: torch.repeat_interleave(x, n, dim=axis))(v_tree, rep, axis=1)
    k = torch.concatenate([kc, kt], axis=2)
    v = torch.concatenate([vc, vt], axis=2)
    scale = D ** (-0.5)
    scores = torch.einsum('bhqd,bhkd->bhqk', q, k) * scale
    ctx_mask = torch.ones((B, 1, T, C), dtype=scores.dtype)
    tm = tree_mask[:, None, :, :].clone()
    full_mask = torch.concatenate([ctx_mask, tm], axis=-1)
    scores = scores + (1.0 - full_mask) * -1000000000.0
    p = _softmax(scores, axis=-1)
    return torch.einsum('bhqk,bhkd->bhqd', p, v)
```

```python
import re
def regs(tok):
    tok = tok.strip().lstrip("-").strip("|")
    m = re.fullmatch(r"([vas])\[(\d+):(\d+)\]", tok)
    if m: return {(m.group(1), i) for i in range(int(m.group(2)), int(m.group(3)) + 1)}
    m = re.fullmatch(r"([vas])(\d+)", tok)
    if m: return {(m.group(1), int(m.group(2)))}
    if tok in ("vcc", "m0", "exec"): return {(tok, 0)}
    return set()
TRANS = ("v_exp_f32", "v_log_f32", "v_rcp_f32", "v_rsq_f32", "v_sqrt_f32")
def parse(line):
    s = line.split(";")[0].strip()
    if not s or s.endswith(":"): return None
    parts = s.split(None, 1)
    op = parts[0]
    ops = [x.strip() for x in parts[1].split(",")] if len(parts) > 1 else []
    ops = [o.split()[0] if o else o for o in ops]
    d = dict(op=op, w=set(), r=set(), line=s, states=1)
    if op == "s_nop": d["states"] = int(ops[0]) + 1
    if op.startswith("v_mfma"):
        d["kind"] = "mfma"; d["w"] = regs(ops[0]); d["ab"] = regs(ops[1]) | regs(ops[2]); d["c"] = regs(ops[3]); d["r"] = d["ab"] | d["c"]
        d["passes"] = 8 if "32x32" in op else 4
    elif op.startswith("v_permlane"):
        d["kind"] = "valu"; d["w"] = regs(ops[0]) | regs(ops[1]); d["r"] = set(d["w"])
    elif op.startswith("v_cmp"):
        d["kind"] = "valu"; d["w"] = regs(ops[0]); d["r"] = set().union(*[regs(o) for o in ops[1:]])
    elif op.startswith("v_"):
        d["kind"] = "valu"; d["w"] = regs(ops[0]); d["r"] = set().union(*[regs(o) for o in ops[1:]])
        if op.startswith("v_fmac"): d["r"] |= d["w"]
    elif op.startswith("ds_write"):
        d["kind"] = "mem"; d["r"] = set().union(*[regs(o) for o in ops])
    elif op.startswith("ds_"):
        d["kind"] = "mem"; d["w"] = regs(ops[0]); d["r"] = set().union(*[regs(o) for o in ops[1:]])
    elif op.startswith(("buffer_", "global_")):
        d["kind"] = "mem"
        if " lds" in s or "store" in op: d["r"] = set().union(*[regs(o) for o in ops])
        else: d["w"] = regs(ops[0]); d["r"] = set().union(*[regs(o) for o in ops[1:]])
        if " lds" in s: d["r"] |= {("m0", 0)}; d["ldsdma"] = True
        if "store" in op and "x4" in op: d["wide"] = regs(ops[0]) if op.startswith("buffer") else regs(ops[1])
    else:
        d["kind"] = "salu"
        if ops and not op.startswith(("s_cmp", "s_cbranch", "s_branch", "s_waitcnt", "s_nop", "s_barrier", "s_setprio", "s_sleep")):
            d["w"] = regs(ops[0])
    return d
def need(p, c):
    n = 0
    if p["kind"] == "valu":
        vw = {x for x in p["w"] if x[0] == "v"}; sw = {x for x in p["w"] if x[0] in ("s", "vcc")}
        if c["kind"] == "mfma" and vw & c["r"]: n = max(n, 2)
        if c["op"].startswith("v_permlane") and vw & c["r"]: n = max(n, 2)
        if c["op"].startswith(("v_readfirstlane", "v_readlane")) and vw & c["r"]: n = max(n, 1)
        if p["op"].startswith(TRANS) and c["kind"] == "valu" and not c["op"].startswith(TRANS) and vw & c["r"]: n = max(n, 1)
        if c["kind"] == "valu" and sw & c["r"]: n = max(n, 2)
        if c["kind"] == "mem" and sw & c["r"]: n = max(n, 5)
        if "dpp" in c["line"] or "row_" in c["line"] or "quad_perm" in c["line"]:
            if vw & c["r"]: n = max(n, 2)
    if p["kind"] == "mfma":
        big = p["passes"] == 8
        if c["kind"] == "mfma":
            if p["w"] & c["ab"]: n = max(n, 12 if big else 8)
            if p["w"] & c["c"] and not (p["w"] == c["c"] and p["passes"] == c["passes"]): n = max(n, 10 if big else 6)
            if p["w"] & c["w"] and not (p["w"] == c["c"]): n = max(n, 10 if big else 6)
        elif c["kind"] in ("valu", "mem"):
            if p["w"] & (c["r"] | c["w"]): n = max(n, 12 if big else 8)
            if c["kind"] == "valu" and p["c"] & c["w"]: n = max(n, 7 if big else 3)
    if p["kind"] == "salu" and ("m0", 0) in p["w"] and c.get("ldsdma"): n = max(n, 1)
    if p.get("wide") and p["wide"] & c["w"]: n = max(n, 2)
    return n
def scan(ins):
    bad = 0
    for i, c in enumerate(ins):
        dist = 0
        for k in range(i - 1, max(-1, i - 24), -1):
            p = ins[k]
            if p["op"] in ("s_endpgm", "s_branch"): break
            n = need(p, c)
            if n > dist:
                print(f"HAZARD need {n} have {dist}:\n   {p['line']}\n   {c['line']}"); bad += 1
            dist += p["states"]
            if dist >= 20: break
    return bad
def check_hazards(lines):
    ins = []; labels = {}
    for l in lines:
        s = l.strip()
        if s.endswith(":"): labels[s[:-1]] = len(ins); continue
        d = parse(l)
        if d: ins.append(d)
    bad = scan(ins)
    for i, d in enumerate(ins):
        if d["op"].startswith(("s_cbranch", "s_branch")):
            t = labels[d["line"].split()[1]]
            seq = [dict(x) for x in ins[max(0, i - 24):i + 1]]
            seq[-1]["op"] = "s_taken"
            n0 = len(seq)
            bad += scan(seq + ins[t:t + 24])
    assert bad == 0, "hazards"
```

```python
import sys, struct, math
from hz import check_hazards
NAME = "standalone__tree_speculative_verify_tree_attention_over_candidate_token_tree__sampling_kernel"
HEADER = open("standalone__tree_speculative_verify_tree_attention_over_candidate_token_tree__sampling.s.ref").read().split("; Override launch")[0]

def f32(x): return "0x%08x" % struct.unpack("<I", struct.pack("<f", x))[0]

def gen(INFL=10, stamp=False, kfl="nt", vfl="nt", warm=False):
    L = []
    def a(s): L.append("    " + s)
    def lab(s): L.append(s + ":")
    def cm(s): L.append("    ; " + s)
    NT = 64
    WB = 24576
    KB = (0, 8192); VB = (16384, 20480)
    L_TV = 4 * WB
    L_TO = L_TV + 2048
    L_ML = L_TO + 8192
    LDS = L_ML + 5 * 256
    vKoff = [2, 3, 4, 5]; vVoff = [6, 7, 8, 9]
    vKrd = list(range(10, 18)); vVrd = [18, 19]
    vM, vMC, vL, vT, vU = 20, 21, 22, 23, 26
    vAL = 24
    vLane, vH, vR = 27, 28, 29
    vTmp = [30, 31]
    Q0, KF, VF, S0, P0, O0 = 32, 64, 96, 112, 128, 136
    NV = 168
    def vr(b, n): return f"v[{b}:{b+n-1}]"
    sK, sKh, sV, sLB, sC, sCnt = 42, 43, 44, 45, 46, 47
    SK, SV, SQ, SO, SM = "s[20:23]", "s[24:27]", "s[28:31]", "s[32:35]", "s[36:39]"
    c = (128 ** -0.5) * math.log2(math.e)

    a("s_cmp_ge_u32 s2, 256"); a("s_cbranch_scc1 L_end")
    a("s_load_dwordx16 s[4:19], s[0:1], 0")
    if stamp:
        a("s_load_dwordx2 s[52:53], s[0:1], 64"); a("s_memrealtime s[54:55]")
    a("v_lshrrev_b32 v1, 6, v0")
    a(f"v_and_b32 v{vLane}, 63, v0")
    a("v_readfirstlane_b32 s3, v1")
    a("s_lshr_b32 s40, s2, 4"); a("s_lshl_b32 s40, s40, 3"); a("s_and_b32 s41, s2, 7"); a("s_or_b32 s40, s40, s41")
    a("s_bfe_u32 s41, s2, 0x10003")
    a(f"s_mul_i32 s{sLB}, s3, {WB}")
    a(f"s_lshl_b32 s{sK}, s3, 13")
    a(f"s_mov_b32 s{sV}, s{sK}")
    a(f"s_mov_b32 s{sC}, {f32(c)}")
    a("s_lshl_b32 s48, s40, 21")
    a("s_lshl_b32 s49, s41, 7")
    a("s_mov_b32 s22, 0x200000"); a("s_mov_b32 s23, 0x20000")
    a("s_mov_b32 s26, 0x200000"); a("s_mov_b32 s27, 0x20000")
    a(f"v_lshlrev_b32 v1, 4, v{vLane}")
    a(f"v_and_b32 v{vTmp[0]}, 0x30, v{vLane}")
    a(f"v_xor_b32 v{vKoff[0]}, v1, v{vTmp[0]}")
    for j in range(1, 4): a(f"v_xor_b32 v{vKoff[j]}, {64*j}, v{vKoff[0]}")
    a(f"v_lshrrev_b32 v{vTmp[0]}, 3, v{vLane}")
    a(f"v_lshlrev_b32 v{vTmp[0]}, 8, v{vTmp[0]}")
    a(f"v_and_b32 v{vTmp[1]}, 0x70, v1")
    a(f"v_or_b32 v{vTmp[0]}, v{vTmp[0]}, v{vTmp[1]}")
    a(f"v_lshlrev_b32 v{vTmp[1]}, 2, v{vLane}")
    a(f"v_and_b32 v{vTmp[1]}, 64, v{vTmp[1]}")
    a(f"v_xor_b32 v{vTmp[0]}, v{vTmp[0]}, v{vTmp[1]}")
    a(f"v_add_u32 v{vVoff[0]}, s49, v{vTmp[0]}")
    for j in range(1, 4): a(f"v_add_u32 v{vVoff[j]}, {1024*j}, v{vVoff[0]}")
    a(f"v_lshrrev_b32 v{vH}, 5, v{vLane}")
    a(f"v_and_b32 v{vR}, 31, v{vLane}")
    a("s_cmp_eq_u32 s3, 4")
    a("s_waitcnt lgkmcnt(0)")
    a("s_cbranch_scc1 L_tree")
    a("s_add_u32 s20, s6, s48"); a("s_addc_u32 s21, s7, 0")
    a("s_add_u32 s24, s8, s48"); a("s_addc_u32 s25, s9, 0")

    stream = [("K", 0, j) for j in range(8)]
    for p in range(NT - 1):
        stream += [("K", p + 1, j) for j in range(8)] + [("V", p, j) for j in range(4)]
    stream += [("V", NT - 1, j) for j in range(4)]
    def issue(n):
        if n >= len(stream): return
        kind, t, j = stream[n]
        if kind == "K":
            if j == 0:
                a(f"s_add_u32 m0, s{sLB}, {KB[t & 1]}"); a(f"s_add_u32 s{sKh}, s{sK}, 4096")
            if j == 4:
                a(f"s_add_u32 m0, s{sLB}, {KB[t & 1] + 4096}"); a(f"s_add_u32 s{sK}, s{sK}, 32768")
            a(f"buffer_load_dwordx4 v{vKoff[j & 3]}, {SK}, s{sK if j < 4 else sKh} offen offset:{(j & 3) * 1024} {kfl} lds")
        else:
            if j == 0:
                a(f"s_add_u32 m0, s{sLB}, {VB[t & 1]}"); a("s_nop 0")
            a(f"buffer_load_dwordx4 v{vVoff[j]}, {SV}, s{sV} offen offset:{j * 1024} {vfl} lds")
            if j == 3: a(f"s_add_u32 s{sV}, s{sV}, 32768")
    def slot(n, extra=0):
        younger = min(n + INFL, len(stream)) - 1 - n
        a(f"s_waitcnt vmcnt({younger + extra})")
        issue(n + INFL)

    def q_loads():
        a("s_lshl_b32 s50, s40, 13")
        a("s_add_u32 s28, s4, s50"); a("s_addc_u32 s29, s5, 0"); a("s_mov_b32 s30, 8192"); a("s_mov_b32 s31, 0x20000")
        a(f"v_lshlrev_b32 v{vTmp[0]}, 8, v{vR}")
        a(f"v_lshl_add_u32 v{vTmp[0]}, v{vH}, 4, v{vTmp[0]}")
        for s in range(8):
            a(f"buffer_load_dwordx4 {vr(Q0 + 4*s, 4)}, v{vTmp[0]}, {SQ}, 0 offen offset:{32*s}")
    def vrd_addr(base_sgpr_or_const):
        a(f"v_bfe_u32 v{vTmp[0]}, v{vLane}, 2, 2")
        a(f"v_lshl_add_u32 v{vTmp[1]}, v{vH}, 2, v{vTmp[0]}")
        a(f"v_lshlrev_b32 v{vVrd[0]}, 7, v{vTmp[1]}")
        a(f"v_and_b32 v{vTmp[1]}, 3, v{vLane}")
        a(f"v_lshl_add_u32 v{vVrd[0]}, v{vTmp[1]}, 3, v{vVrd[0]}")
        a(f"v_and_b32 v{vTmp[1]}, 16, v{vLane}")
        a(f"v_lshl_add_u32 v{vVrd[0]}, v{vTmp[1]}, 1, v{vVrd[0]}")
        a(f"v_and_b32 v{vTmp[0]}, 2, v{vTmp[0]}")
        a(f"v_lshl_add_u32 v{vVrd[0]}, v{vTmp[0]}, 5, v{vVrd[0]}")
        a(f"v_add_u32 v{vVrd[0]}, {base_sgpr_or_const}, v{vVrd[0]}")
        a(f"v_xor_b32 v{vVrd[1]}, 64, v{vVrd[0]}")
    def k_reads(t):
        for s in range(8): a(f"ds_read_b128 {vr(KF + 4*s, 4)}, v{vKrd[s]} offset:{KB[t & 1]}")
    def qk(s, cinit="0"):
        cc = cinit if s == 0 else vr(S0, 16)
        a(f"v_mfma_f32_32x32x16_bf16 {vr(S0, 16)}, {vr(KF + 4*s, 4)}, {vr(Q0 + 4*s, 4)}, {cc}")
    def v_reads(off, u):
        for e in range(2):
            for z in range(2):
                a(f"ds_read_b64_tr_b16 {vr(VF + 8*u + 4*e + 2*z, 2)}, v{vVrd[e]} offset:{off + 2048*u + 1024*z}")
    def pv(u, e, cinit=None):
        cc = cinit or vr(O0 + 16*e, 16)
        a(f"v_mfma_f32_32x32x16_bf16 {vr(O0 + 16*e, 16)}, {vr(VF + 8*u + 4*e, 4)}, {vr(P0 + 4*u, 4)}, {cc}")
    def sm_max(n=16):
        a(f"v_max3_f32 v{vT}, v{S0}, v{S0+1}, v{vM}")
        for j in range(2, n, 2): a(f"v_max3_f32 v{vT}, v{S0+j}, v{S0+j+1}, v{vT}")
        a(f"v_mov_b32 v{vU}, v{vT}")
        a("s_nop 1")
        a(f"v_permlane32_swap_b32 v{vT}, v{vU}")
        a(f"v_max_f32 v{vM}, v{vT}, v{vU}")
        a(f"v_mul_f32 v{vT}, s{sC}, v{vM}")
        a(f"v_sub_f32 v{vAL}, v{vMC}, v{vT}")
        a(f"v_mov_b32 v{vMC}, v{vT}")
        a(f"v_exp_f32 v{vAL}, v{vAL}")
    def sm_exp(j0, j1):
        for j in range(j0, j1): a(f"v_fma_f32 v{S0+j}, v{S0+j}, s{sC}, -v{vMC}")
        for j in range(j0, j1): a(f"v_exp_f32 v{S0+j}, v{S0+j}")
    def sm_sum(n=16):
        a(f"v_fma_f32 v{vL}, v{vL}, v{vAL}, v{S0}")
        a(f"v_add_f32 v{vT}, v{S0+1}, v{S0+2}")
        for j in range(3, n):
            r = vL if j & 1 else vT
            a(f"v_add_f32 v{r}, v{r}, v{S0+j}")
        a(f"v_add_f32 v{vL}, v{vL}, v{vT}")
    def sm_cvt(n=8):
        for j in range(n): a(f"v_cvt_pk_bf16_f32 v{P0+j}, v{S0+2*j}, v{S0+2*j+1}")
    def sm_resc(j0, j1):
        for j in range(j0, j1): a(f"v_pk_mul_f32 {vr(O0+2*j, 2)}, {vr(O0+2*j, 2)}, {vr(vAL, 2)} op_sel_hi:[1,0]")
    def write_partial(o_base, ml_base):
        a(f"v_mov_b32 v{vU}, v{vL}")
        a(f"v_and_b32 v{vTmp[0]}, 15, v{vR}")
        a(f"v_xor_b32 v{vTmp[0]}, v{vTmp[0]}, v{vH}")
        a(f"v_permlane32_swap_b32 v{vL}, v{vU}")
        a(f"v_lshlrev_b32 v{vTmp[0]}, 4, v{vTmp[0]}")
        a(f"v_lshl_add_u32 v{vTmp[0]}, v{vR}, 8, v{vTmp[0]}")
        a(f"v_add_u32 v{vTmp[0]}, {o_base}, v{vTmp[0]}")
        a(f"v_add_f32 v{vT}, v{vL}, v{vU}")
        a(f"v_mov_b32 v{vL}, v{vMC}")
        a(f"v_lshlrev_b32 v{vTmp[1]}, 3, v{vR}")
        a(f"v_add_u32 v{vTmp[1]}, {ml_base}, v{vTmp[1]}")
        a(f"ds_write_b64 v{vTmp[1]}, {vr(vL, 2)}")
        for i in range(1, 8): a(f"v_xor_b32 v{vKrd[i]}, {32*i}, v{vTmp[0]}")
        return [vTmp[0]] + vKrd[1:]

    for n in range(8): issue(n)
    q_loads()
    for n in range(8, INFL): issue(n)
    a(f"v_and_b32 v{vTmp[1]}, 15, v{vR}")
    a(f"v_xor_b32 v{vTmp[1]}, v{vTmp[1]}, v{vH}")
    a(f"v_lshlrev_b32 v{vTmp[1]}, 4, v{vTmp[1]}")
    a(f"v_lshl_add_u32 v{vTmp[1]}, v{vR}, 8, v{vTmp[1]}")
    a(f"v_add_u32 v{vKrd[0]}, s{sLB}, v{vTmp[1]}")
    for s in range(1, 8): a(f"v_xor_b32 v{vKrd[s]}, {32*s}, v{vKrd[0]}")
    vrd_addr(f"s{sLB}")
    for j in range(32): a(f"v_mov_b32 v{O0+j}, 0")
    a(f"v_mov_b32 v{vL}, 0"); a(f"v_mov_b32 v{vM}, {f32(-3.0e38)}"); a(f"v_mov_b32 v{vMC}, {f32(-3.0e38)}")
    assert INFL >= 8
    for n in range(8): slot(n, extra=8)
    k_reads(0)
    a(f"s_waitcnt vmcnt({INFL})")
    for s in range(8):
        a(f"s_waitcnt lgkmcnt({7-s})"); qk(s)
    a("s_nop 7"); a("s_nop 1")
    a(f"s_mov_b32 s{sCnt}, {(NT - 2) // 2}")

    def period(p):
        n0 = 8 + 12 * p
        slot(n0 + 0); sm_max()
        slot(n0 + 1); sm_exp(0, 8)
        slot(n0 + 2); sm_exp(8, 16)
        slot(n0 + 3); sm_sum()
        slot(n0 + 4); sm_cvt()
        slot(n0 + 5); sm_resc(0, 8)
        slot(n0 + 6); sm_resc(8, 16)
        slot(n0 + 7); k_reads(p + 1)
        slot(n0 + 8)
        for s in range(4):
            a(f"s_waitcnt lgkmcnt({7-s})"); qk(s)
        slot(n0 + 9); v_reads(VB[p & 1], 0)
        a("s_waitcnt lgkmcnt(4)")
        for s in range(4, 8): qk(s)
        slot(n0 + 10)
        a("s_waitcnt lgkmcnt(0)"); pv(0, 0); pv(0, 1)
        slot(n0 + 11); v_reads(VB[p & 1], 1)
        a("s_waitcnt lgkmcnt(2)"); pv(1, 0); a("s_waitcnt lgkmcnt(0)"); pv(1, 1)
    lab("L_loop")
    period(0); period(1)
    a(f"s_sub_u32 s{sCnt}, s{sCnt}, 1"); a(f"s_cmp_lg_u32 s{sCnt}, 0"); a("s_cbranch_scc1 L_loop")
    assert INFL <= 12
    period(NT - 2)
    n0 = 8 + 12 * (NT - 1)
    sm_max(); sm_exp(0, 16); sm_cvt(); sm_resc(0, 16); sm_sum()
    a("s_waitcnt vmcnt(2)"); v_reads(VB[(NT - 1) & 1], 0)
    a(f"s_mul_i32 s50, s3, 256"); a(f"s_add_u32 s50, s50, {L_ML}")
    wa = write_partial(f"s{sLB}", "s50")
    a("s_waitcnt lgkmcnt(0)"); pv(0, 0); pv(0, 1)
    a("s_waitcnt vmcnt(0)"); v_reads(VB[(NT - 1) & 1], 1)
    a("s_waitcnt lgkmcnt(2)"); pv(1, 0); a("s_waitcnt lgkmcnt(0)"); pv(1, 1)
    vq, vc8, vra, vma, voo = 32, 33, 34, 36, 37
    a(f"v_lshrrev_b32 v{vq}, 3, v0"); a(f"v_and_b32 v{vc8}, 7, v0")
    a(f"v_lshlrev_b32 v{vra}, 1, v{vc8}"); a(f"v_and_b32 v{vma}, 15, v{vq}")
    a(f"v_xor_b32 v{vra}, v{vra}, v{vma}"); a(f"v_lshlrev_b32 v{vra}, 4, v{vra}")
    a(f"v_lshl_add_u32 v{vra}, v{vq}, 8, v{vra}"); a(f"v_xor_b32 v{vra+1}, 16, v{vra}")
    a(f"v_lshlrev_b32 v{vma}, 3, v{vq}"); a(f"v_add_u32 v{vma}, {L_ML}, v{vma}")
    a(f"v_lshlrev_b32 v{voo}, 8, v{vq}"); a(f"v_lshl_add_u32 v{voo}, v{vc8}, 4, v{voo}")
    for i in range(8):
        a(f"ds_write_b128 v{wa[i]}, {vr(O0 + 4*i, 4)}")
    a("s_lshl_b32 s50, s40, 13"); a("s_add_u32 s50, s50, s49")
    a("s_mov_b32 s32, s16"); a("s_mov_b32 s33, s17"); a("s_mov_b32 s34, 0x100000"); a("s_mov_b32 s35, 0x20000")
    a(f"v_add_u32 v{vra+4}, {3*WB}, v{vra}"); a(f"v_add_u32 v{vra+5}, {3*WB}, v{vra+1}")
    a("s_waitcnt lgkmcnt(0)")
    a("s_barrier")
    ML, OP = 40, 64
    for w in range(5): a(f"ds_read_b64 {vr(ML + 2*w, 2)}, v{vma} offset:{256*w}")
    for w in range(5):
        for x in range(2):
            if w < 3: a(f"ds_read_b128 {vr(OP + 8*w + 4*x, 4)}, v{vra+x} offset:{w*WB}")
            else: a(f"ds_read_b128 {vr(OP + 8*w + 4*x, 4)}, v{vra+4+x} offset:{0 if w == 3 else L_TO - 3*WB}")
    a("s_waitcnt lgkmcnt(10)")
    a(f"v_max3_f32 v50, v{ML}, v{ML+2}, v{ML+4}"); a(f"v_max3_f32 v50, v50, v{ML+6}, v{ML+8}")
    for w in range(5): a(f"v_sub_f32 v{ML+2*w}, v{ML+2*w}, v50")
    for w in range(5): a(f"v_exp_f32 v{ML+2*w}, v{ML+2*w}")
    a(f"v_mul_f32 v51, v{ML}, v{ML+1}")
    for w in range(1, 5): a(f"v_fma_f32 v51, v{ML+2*w}, v{ML+2*w+1}, v51")
    a("v_rcp_f32 v51, v51")
    a("s_nop 0")
    for w in range(5): a(f"v_mul_f32 v{ML+2*w}, v{ML+2*w}, v51")
    for w in range(5):
        a(f"s_waitcnt lgkmcnt({8 - 2*w})")
        for j in range(4):
            if w == 0: a(f"v_pk_mul_f32 {vr(52+2*j, 2)}, {vr(OP+2*j, 2)}, {vr(ML, 2)} op_sel_hi:[1,0]")
            else: a(f"v_pk_fma_f32 {vr(52+2*j, 2)}, {vr(OP+8*w+2*j, 2)}, {vr(ML+2*w, 2)}, {vr(52+2*j, 2)} op_sel_hi:[1,0,1]")
    for j in range(4): a(f"v_cvt_pk_bf16_f32 v{60+j}, v{52+2*j}, v{53+2*j}")
    a(f"buffer_store_dwordx4 v[60:63], v{voo}, {SO}, s50 offen")
    if stamp:
        a("s_waitcnt vmcnt(0)")
        a("s_memrealtime s[56:57]")
        a("s_getreg_b32 s58, hwreg(HW_REG_XCC_ID)")
        a("s_waitcnt lgkmcnt(0)")
        a("v_mov_b32 v0, s54"); a("v_mov_b32 v1, s56"); a("v_mov_b32 v2, s58");  a("v_mov_b32 v3, 0")
        a("s_mul_i32 s50, s2, 5"); a("s_add_u32 s50, s50, s3"); a("s_lshl_b32 s50, s50, 4")
        a("v_mov_b32 v4, s50")
        a("s_mov_b64 exec, 1")
        a("global_store_dwordx4 v4, v[0:3], s[52:53]")
    a("s_endpgm")

    lab("L_tree")
    a("s_lshl_b32 s48, s40, 12")
    a("s_add_u32 s20, s10, s48"); a("s_addc_u32 s21, s11, 0"); a("s_mov_b32 s22, 4096")
    a("s_add_u32 s24, s12, s48"); a("s_addc_u32 s25, s13, 0"); a("s_mov_b32 s26, 4096")
    a("s_lshr_b32 s50, s40, 4"); a("s_lshl_b32 s50, s50, 9")
    a("s_add_u32 s36, s14, s50"); a("s_addc_u32 s37, s15, 0"); a("s_mov_b32 s38, 512"); a("s_mov_b32 s39, 0x20000")
    q_loads()
    for s in range(8):
        a(f"buffer_load_dwordx4 {vr(KF + 4*s, 4)}, v{vTmp[0]}, {SK}, 0 offen offset:{32*s}")
    a(f"s_mov_b32 m0, {L_TV}")
    a(f"v_and_b32 v{vT}, 15, v{vR}"); a(f"v_lshlrev_b32 v{vT}, 5, v{vT}"); a(f"v_lshl_add_u32 v{vT}, v{vH}, 3, v{vT}")
    for j in range(2):
        a(f"buffer_load_dwordx4 v{vVoff[j]}, {SV}, 0 offen offset:{j * 1024} lds")
    a(f"buffer_load_dwordx2 {vr(P0, 2)}, v{vT}, {SM}, 0 offen")
    a(f"buffer_load_dwordx2 {vr(P0+2, 2)}, v{vT}, {SM}, 0 offen offset:16")
    vrd_addr(L_TV)
    big = 1e9 * math.sqrt(128)
    a(f"s_mov_b32 s51, {f32(big)}")
    a(f"v_mov_b32 v{vU}, {f32(-big)}")
    for j in range(8, 16): a(f"v_mov_b32 v{S0+j}, 0")
    a(f"v_mov_b32 v{vL}, 0"); a(f"v_mov_b32 v{vM}, {f32(-3.0e38)}"); a(f"v_mov_b32 v{vMC}, {f32(-3.0e38)}")
    a("s_waitcnt vmcnt(0)")
    v_reads(0, 0)
    for j in range(4):
        a(f"v_lshlrev_b32 v{S0+2*j}, 16, v{P0+j}"); a(f"v_and_b32 v{S0+2*j+1}, 0xffff0000, v{P0+j}")
    for j in range(8): a(f"v_fma_f32 v{S0+j}, v{S0+j}, s51, v{vU}")
    a("s_nop 1")
    for s in range(8): qk(s, vr(S0, 16))
    a("s_nop 7"); a("s_nop 3")
    sm_max(8); sm_exp(0, 8); a("s_nop 0"); sm_cvt(4); sm_sum(8)
    wa = write_partial(L_TO, L_ML + 4 * 256)
    a("s_waitcnt lgkmcnt(0)")
    pv(0, 0, "0"); pv(0, 1, "0")
    a("s_nop 7"); a("s_nop 3")
    for i in range(8):
        a(f"ds_write_b128 v{wa[i]}, {vr(O0 + 4*i, 4)}")
    a("s_waitcnt lgkmcnt(0)")
    if stamp:
        a("s_memrealtime s[56:57]")
        a("s_getreg_b32 s58, hwreg(HW_REG_XCC_ID)")
        a("s_waitcnt lgkmcnt(0)")
        a("v_mov_b32 v0, s54"); a("v_mov_b32 v1, s56"); a("v_mov_b32 v2, s58");  a("v_mov_b32 v3, 0")
        a("s_mul_i32 s50, s2, 5"); a("s_add_u32 s50, s50, s3"); a("s_lshl_b32 s50, s50, 4")
        a("v_mov_b32 v4, s50")
        a("s_mov_b64 exec, 1")
        a("global_store_dwordx4 v4, v[0:3], s[52:53]")
    lab("L_end")
    a("s_endpgm")
    check_hazards(L)
    out = HEADER + f"; @launch grid=(256,1,1) block=(320,1,1) lds={LDS}\n"
    out += '.amdgcn_target "amdgcn-amd-amdhsa--gfx950"\n.text\n' + f".globl {NAME}\n.p2align 8\n.type {NAME},@function\n{NAME}:\n"
    out += "\n".join(L) + "\n"
    out += '.section .rodata,"a"\n.p2align 6\n' + f".amdhsa_kernel {NAME}\n"
    out += f"  .amdhsa_next_free_vgpr {NV}\n  .amdhsa_next_free_sgpr 64\n  .amdhsa_accum_offset {NV}\n"
    out += "  .amdhsa_group_segment_fixed_size 0\n  .amdhsa_kernarg_size 72\n  .amdhsa_user_sgpr_count 2\n"
    out += "  .amdhsa_user_sgpr_kernarg_segment_ptr 1\n  .amdhsa_system_sgpr_workgroup_id_x 1\n.end_amdhsa_kernel\n"
    return out

if __name__ == "__main__":
    out = sys.argv[1]
    kw = {}
    for x in sys.argv[2:]:
        k, v = x.split("=", 1)
        if v in ("True", "False"): v = v == "True"
        else:
            try: v = int(v)
            except ValueError: pass
        kw[k] = v
    open(out, "w").write(gen(**kw))
```

```python
import sys, struct, math
from hz import check_hazards
NAME = "standalone__tree_speculative_verify_tree_attention_over_candidate_token_tree__sampling_kernel"
HEADER = open("standalone__tree_speculative_verify_tree_attention_over_candidate_token_tree__sampling.s.ref").read().split("; Override launch")[0]

def f32(x): return "0x%08x" % struct.unpack("<I", struct.pack("<f", x))[0]

def gen(INFL=10, stamp=False, dbg=False, kfl="nt", vfl="nt", warm=False):
    L = []
    def a(s): L.append("    " + s)
    def lab(s): L.append(s + ":")
    def cm(s): L.append("    ; " + s)
    NT = 64
    WB = 24576
    KB = (0, 8192); VB = (16384, 20480)
    L_TV = 4 * WB
    L_TO = L_TV + 2048
    L_ML = L_TO + 8192
    LDS = L_ML + 5 * 256
    vKoff = [2, 3, 4, 5]; vVoff = [6, 7, 8, 9]
    vKrd = list(range(10, 18)); vVrd = [18, 19]
    vM, vMC, vL, vT, vU = 20, 21, 22, 23, 26
    vAL = 24
    vLane, vH, vR = 27, 28, 29
    vTmp = [30, 31]
    Q0, KF, VF, S0, P0, O0 = 32, 64, 96, 112, 128, 136
    NV = 168
    def vr(b, n): return f"v[{b}:{b+n-1}]"
    sK, sKh, sV, sLB, sC, sCnt = 42, 43, 44, 45, 46, 47
    SK, SV, SQ, SO, SM = "s[20:23]", "s[24:27]", "s[28:31]", "s[32:35]", "s[36:39]"
    c = (128 ** -0.5) * math.log2(math.e)

    a("s_cmp_ge_u32 s2, 256"); a("s_cbranch_scc1 L_end")
    a("s_load_dwordx16 s[4:19], s[0:1], 0")
    if stamp:
        a("s_load_dwordx2 s[52:53], s[0:1], 64"); a("s_memrealtime s[54:55]")
    if dbg: a("s_memrealtime s[54:55]")
    a("v_lshrrev_b32 v1, 6, v0")
    a(f"v_and_b32 v{vLane}, 63, v0")
    a("v_readfirstlane_b32 s3, v1")
    a("s_lshr_b32 s40, s2, 4"); a("s_lshl_b32 s40, s40, 3"); a("s_and_b32 s41, s2, 7"); a("s_or_b32 s40, s40, s41")
    a("s_bfe_u32 s41, s2, 0x10003")
    a(f"s_mul_i32 s{sLB}, s3, {WB}")
    a(f"s_lshl_b32 s{sK}, s3, 13")
    a(f"s_mov_b32 s{sV}, s{sK}")
    a(f"s_mov_b32 s{sC}, {f32(c)}")
    a("s_lshl_b32 s48, s40, 21")
    a("s_lshl_b32 s49, s41, 7")
    a("s_mov_b32 s22, 0x200000"); a("s_mov_b32 s23, 0x20000")
    a("s_mov_b32 s26, 0x200000"); a("s_mov_b32 s27, 0x20000")
    a(f"v_lshlrev_b32 v1, 4, v{vLane}")
    a(f"v_and_b32 v{vTmp[0]}, 0x30, v{vLane}")
    a(f"v_xor_b32 v{vKoff[0]}, v1, v{vTmp[0]}")
    for j in range(1, 4): a(f"v_xor_b32 v{vKoff[j]}, {64*j}, v{vKoff[0]}")
    a(f"v_lshrrev_b32 v{vTmp[0]}, 3, v{vLane}")
    a(f"v_lshlrev_b32 v{vTmp[0]}, 8, v{vTmp[0]}")
    a(f"v_and_b32 v{vTmp[1]}, 0x70, v1")
    a(f"v_or_b32 v{vTmp[0]}, v{vTmp[0]}, v{vTmp[1]}")
    a(f"v_lshlrev_b32 v{vTmp[1]}, 2, v{vLane}")
    a(f"v_and_b32 v{vTmp[1]}, 64, v{vTmp[1]}")
    a(f"v_xor_b32 v{vTmp[0]}, v{vTmp[0]}, v{vTmp[1]}")
    a(f"v_add_u32 v{vVoff[0]}, s49, v{vTmp[0]}")
    for j in range(1, 4): a(f"v_add_u32 v{vVoff[j]}, {1024*j}, v{vVoff[0]}")
    a(f"v_lshrrev_b32 v{vH}, 5, v{vLane}")
    a(f"v_and_b32 v{vR}, 31, v{vLane}")
    a("s_cmp_eq_u32 s3, 4")
    a("s_waitcnt lgkmcnt(0)")
    a("s_cbranch_scc1 L_tree")
    a("s_add_u32 s20, s6, s48"); a("s_addc_u32 s21, s7, 0")
    a("s_add_u32 s24, s8, s48"); a("s_addc_u32 s25, s9, 0")

    stream = [("K", 0, j) for j in range(8)]
    for p in range(NT - 1):
        stream += [("K", p + 1, j) for j in range(8)] + [("V", p, j) for j in range(4)]
    stream += [("V", NT - 1, j) for j in range(4)]
    def issue(n):
        if n >= len(stream): return
        kind, t, j = stream[n]
        if kind == "K":
            if j == 0:
                a(f"s_add_u32 m0, s{sLB}, {KB[t & 1]}"); a(f"s_add_u32 s{sKh}, s{sK}, 4096")
            if j == 4:
                a(f"s_add_u32 m0, s{sLB}, {KB[t & 1] + 4096}"); a(f"s_add_u32 s{sK}, s{sK}, 32768")
            a(f"buffer_load_dwordx4 v{vKoff[j & 3]}, {SK}, s{sK if j < 4 else sKh} offen offset:{(j & 3) * 1024} {kfl} lds")
        else:
            if j == 0:
                a(f"s_add_u32 m0, s{sLB}, {VB[t & 1]}"); a("s_nop 0")
            a(f"buffer_load_dwordx4 v{vVoff[j]}, {SV}, s{sV} offen offset:{j * 1024} {vfl} lds")
            if j == 3: a(f"s_add_u32 s{sV}, s{sV}, 32768")
    def slot(n, extra=0):
        younger = min(n + INFL, len(stream)) - 1 - n
        a(f"s_waitcnt vmcnt({younger + extra})")
        issue(n + INFL)

    def q_loads():
        a("s_lshl_b32 s50, s40, 13")
        a("s_add_u32 s28, s4, s50"); a("s_addc_u32 s29, s5, 0"); a("s_mov_b32 s30, 8192"); a("s_mov_b32 s31, 0x20000")
        a(f"v_lshlrev_b32 v{vTmp[0]}, 8, v{vR}")
        a(f"v_lshl_add_u32 v{vTmp[0]}, v{vH}, 4, v{vTmp[0]}")
        for s in range(8):
            a(f"buffer_load_dwordx4 {vr(Q0 + 4*s, 4)}, v{vTmp[0]}, {SQ}, 0 offen offset:{32*s}")
    def vrd_addr(base_sgpr_or_const):
        a(f"v_bfe_u32 v{vTmp[0]}, v{vLane}, 2, 2")
        a(f"v_lshl_add_u32 v{vTmp[1]}, v{vH}, 2, v{vTmp[0]}")
        a(f"v_lshlrev_b32 v{vVrd[0]}, 7, v{vTmp[1]}")
        a(f"v_and_b32 v{vTmp[1]}, 3, v{vLane}")
        a(f"v_lshl_add_u32 v{vVrd[0]}, v{vTmp[1]}, 3, v{vVrd[0]}")
        a(f"v_and_b32 v{vTmp[1]}, 16, v{vLane}")
        a(f"v_lshl_add_u32 v{vVrd[0]}, v{vTmp[1]}, 1, v{vVrd[0]}")
        a(f"v_and_b32 v{vTmp[0]}, 2, v{vTmp[0]}")
        a(f"v_lshl_add_u32 v{vVrd[0]}, v{vTmp[0]}, 5, v{vVrd[0]}")
        a(f"v_add_u32 v{vVrd[0]}, {base_sgpr_or_const}, v{vVrd[0]}")
        a(f"v_xor_b32 v{vVrd[1]}, 64, v{vVrd[0]}")
    def k_reads(t):
        for s in range(8): a(f"ds_read_b128 {vr(KF + 4*s, 4)}, v{vKrd[s]} offset:{KB[t & 1]}")
    def qk(s, cinit="0"):
        cc = cinit if s == 0 else vr(S0, 16)
        a(f"v_mfma_f32_32x32x16_bf16 {vr(S0, 16)}, {vr(KF + 4*s, 4)}, {vr(Q0 + 4*s, 4)}, {cc}")
    def v_reads(off, u):
        for e in range(2):
            for z in range(2):
                a(f"ds_read_b64_tr_b16 {vr(VF + 8*u + 4*e + 2*z, 2)}, v{vVrd[e]} offset:{off + 2048*u + 1024*z}")
    def pv(u, e, cinit=None):
        cc = cinit or vr(O0 + 16*e, 16)
        a(f"v_mfma_f32_32x32x16_bf16 {vr(O0 + 16*e, 16)}, {vr(VF + 8*u + 4*e, 4)}, {vr(P0 + 4*u, 4)}, {cc}")
    def sm_max(n=16):
        a(f"v_max3_f32 v{vT}, v{S0}, v{S0+1}, v{vM}")
        for j in range(2, n, 2): a(f"v_max3_f32 v{vT}, v{S0+j}, v{S0+j+1}, v{vT}")
        a(f"v_mov_b32 v{vU}, v{vT}")
        a("s_nop 1")
        a(f"v_permlane32_swap_b32 v{vT}, v{vU}")
        a(f"v_max_f32 v{vM}, v{vT}, v{vU}")
        a(f"v_mul_f32 v{vT}, s{sC}, v{vM}")
        a(f"v_sub_f32 v{vAL}, v{vMC}, v{vT}")
        a(f"v_mov_b32 v{vMC}, v{vT}")
        a(f"v_exp_f32 v{vAL}, v{vAL}")
    def sm_exp(j0, j1):
        for j in range(j0, j1): a(f"v_fma_f32 v{S0+j}, v{S0+j}, s{sC}, -v{vMC}")
        for j in range(j0, j1): a(f"v_exp_f32 v{S0+j}, v{S0+j}")
    def sm_sum(n=16):
        a(f"v_fma_f32 v{vL}, v{vL}, v{vAL}, v{S0}")
        a(f"v_add_f32 v{vT}, v{S0+1}, v{S0+2}")
        for j in range(3, n):
            r = vL if j & 1 else vT
            a(f"v_add_f32 v{r}, v{r}, v{S0+j}")
        a(f"v_add_f32 v{vL}, v{vL}, v{vT}")
    def sm_cvt(n=8):
        for j in range(n): a(f"v_cvt_pk_bf16_f32 v{P0+j}, v{S0+2*j}, v{S0+2*j+1}")
    def sm_resc(j0, j1):
        for j in range(j0, j1): a(f"v_pk_mul_f32 {vr(O0+2*j, 2)}, {vr(O0+2*j, 2)}, {vr(vAL, 2)} op_sel_hi:[1,0]")
    def write_partial(o_base, ml_base):
        a(f"v_mov_b32 v{vU}, v{vL}")
        a(f"v_and_b32 v{vTmp[0]}, 15, v{vR}")
        a(f"v_xor_b32 v{vTmp[0]}, v{vTmp[0]}, v{vH}")
        a(f"v_permlane32_swap_b32 v{vL}, v{vU}")
        a(f"v_lshlrev_b32 v{vTmp[0]}, 4, v{vTmp[0]}")
        a(f"v_lshl_add_u32 v{vTmp[0]}, v{vR}, 8, v{vTmp[0]}")
        a(f"v_add_u32 v{vTmp[0]}, {o_base}, v{vTmp[0]}")
        a(f"v_add_f32 v{vT}, v{vL}, v{vU}")
        a(f"v_mov_b32 v{vL}, v{vMC}")
        a(f"v_lshlrev_b32 v{vTmp[1]}, 3, v{vR}")
        a(f"v_add_u32 v{vTmp[1]}, {ml_base}, v{vTmp[1]}")
        a(f"ds_write_b64 v{vTmp[1]}, {vr(vL, 2)}")
        for i in range(1, 8): a(f"v_xor_b32 v{vKrd[i]}, {32*i}, v{vTmp[0]}")
        return [vTmp[0]] + vKrd[1:]

    for n in range(8): issue(n)
    q_loads()
    for n in range(8, INFL): issue(n)
    a(f"v_and_b32 v{vTmp[1]}, 15, v{vR}")
    a(f"v_xor_b32 v{vTmp[1]}, v{vTmp[1]}, v{vH}")
    a(f"v_lshlrev_b32 v{vTmp[1]}, 4, v{vTmp[1]}")
    a(f"v_lshl_add_u32 v{vTmp[1]}, v{vR}, 8, v{vTmp[1]}")
    a(f"v_add_u32 v{vKrd[0]}, s{sLB}, v{vTmp[1]}")
    for s in range(1, 8): a(f"v_xor_b32 v{vKrd[s]}, {32*s}, v{vKrd[0]}")
    vrd_addr(f"s{sLB}")
    for j in range(32): a(f"v_mov_b32 v{O0+j}, 0")
    a(f"v_mov_b32 v{vL}, 0"); a(f"v_mov_b32 v{vM}, {f32(-3.0e38)}"); a(f"v_mov_b32 v{vMC}, {f32(-3.0e38)}")
    assert INFL >= 8
    for n in range(8): slot(n, extra=8)
    k_reads(0)
    a(f"s_waitcnt vmcnt({INFL})")
    for s in range(8):
        a(f"s_waitcnt lgkmcnt({7-s})"); qk(s)
    a("s_nop 7"); a("s_nop 1")
    a(f"s_mov_b32 s{sCnt}, {(NT - 2) // 2}")
    if dbg: a("s_memrealtime s[58:59]"); a("s_waitcnt lgkmcnt(0)")

    def period(p):
        n0 = 8 + 12 * p
        slot(n0 + 0); sm_max()
        slot(n0 + 1); sm_exp(0, 8)
        slot(n0 + 2); sm_exp(8, 16)
        slot(n0 + 3); sm_sum()
        slot(n0 + 4); sm_cvt()
        slot(n0 + 5); sm_resc(0, 8)
        slot(n0 + 6); sm_resc(8, 16)
        slot(n0 + 7); k_reads(p + 1)
        slot(n0 + 8)
        for s in range(4):
            a(f"s_waitcnt lgkmcnt({7-s})"); qk(s)
        slot(n0 + 9); v_reads(VB[p & 1], 0)
        a("s_waitcnt lgkmcnt(4)")
        for s in range(4, 8): qk(s)
        slot(n0 + 10)
        a("s_waitcnt lgkmcnt(0)"); pv(0, 0); pv(0, 1)
        slot(n0 + 11); v_reads(VB[p & 1], 1)
        a("s_waitcnt lgkmcnt(2)"); pv(1, 0); a("s_waitcnt lgkmcnt(0)"); pv(1, 1)
    lab("L_loop")
    period(0); period(1)
    a(f"s_sub_u32 s{sCnt}, s{sCnt}, 1"); a(f"s_cmp_lg_u32 s{sCnt}, 0"); a("s_cbranch_scc1 L_loop")
    assert INFL <= 12
    if dbg: a("s_memrealtime s[60:61]"); a("s_waitcnt lgkmcnt(0)")
    period(NT - 2)
    n0 = 8 + 12 * (NT - 1)
    sm_max(); sm_exp(0, 16); sm_cvt(); sm_resc(0, 16); sm_sum()
    a("s_waitcnt vmcnt(2)"); v_reads(VB[(NT - 1) & 1], 0)
    a(f"s_mul_i32 s50, s3, 256"); a(f"s_add_u32 s50, s50, {L_ML}")
    wa = write_partial(f"s{sLB}", "s50")
    a("s_waitcnt lgkmcnt(0)"); pv(0, 0); pv(0, 1)
    a("s_waitcnt vmcnt(0)"); v_reads(VB[(NT - 1) & 1], 1)
    a("s_waitcnt lgkmcnt(2)"); pv(1, 0); a("s_waitcnt lgkmcnt(0)"); pv(1, 1)
    vq, vc8, vra, vma, voo = 32, 33, 34, 36, 37
    a(f"v_lshrrev_b32 v{vq}, 3, v0"); a(f"v_and_b32 v{vc8}, 7, v0")
    a(f"v_lshlrev_b32 v{vra}, 1, v{vc8}"); a(f"v_and_b32 v{vma}, 15, v{vq}")
    a(f"v_xor_b32 v{vra}, v{vra}, v{vma}"); a(f"v_lshlrev_b32 v{vra}, 4, v{vra}")
    a(f"v_lshl_add_u32 v{vra}, v{vq}, 8, v{vra}"); a(f"v_xor_b32 v{vra+1}, 16, v{vra}")
    a(f"v_lshlrev_b32 v{vma}, 3, v{vq}"); a(f"v_add_u32 v{vma}, {L_ML}, v{vma}")
    a(f"v_lshlrev_b32 v{voo}, 8, v{vq}"); a(f"v_lshl_add_u32 v{voo}, v{vc8}, 4, v{voo}")
    for i in range(8):
        a(f"ds_write_b128 v{wa[i]}, {vr(O0 + 4*i, 4)}")
    a("s_lshl_b32 s50, s40, 13"); a("s_add_u32 s50, s50, s49")
    a("s_mov_b32 s32, s16"); a("s_mov_b32 s33, s17"); a("s_mov_b32 s34, 0x100000"); a("s_mov_b32 s35, 0x20000")
    a(f"v_add_u32 v{vra+4}, {3*WB}, v{vra}"); a(f"v_add_u32 v{vra+5}, {3*WB}, v{vra+1}")
    a("s_waitcnt lgkmcnt(0)")
    a("s_barrier")
    ML, OP = 40, 64
    for w in range(5): a(f"ds_read_b64 {vr(ML + 2*w, 2)}, v{vma} offset:{256*w}")
    for w in range(5):
        for x in range(2):
            if w < 3: a(f"ds_read_b128 {vr(OP + 8*w + 4*x, 4)}, v{vra+x} offset:{w*WB}")
            else: a(f"ds_read_b128 {vr(OP + 8*w + 4*x, 4)}, v{vra+4+x} offset:{0 if w == 3 else L_TO - 3*WB}")
    a("s_waitcnt lgkmcnt(10)")
    a(f"v_max3_f32 v50, v{ML}, v{ML+2}, v{ML+4}"); a(f"v_max3_f32 v50, v50, v{ML+6}, v{ML+8}")
    for w in range(5): a(f"v_sub_f32 v{ML+2*w}, v{ML+2*w}, v50")
    for w in range(5): a(f"v_exp_f32 v{ML+2*w}, v{ML+2*w}")
    a(f"v_mul_f32 v51, v{ML}, v{ML+1}")
    for w in range(1, 5): a(f"v_fma_f32 v51, v{ML+2*w}, v{ML+2*w+1}, v51")
    a("v_rcp_f32 v51, v51")
    a("s_nop 0")
    for w in range(5): a(f"v_mul_f32 v{ML+2*w}, v{ML+2*w}, v51")
    for w in range(5):
        a(f"s_waitcnt lgkmcnt({8 - 2*w})")
        for j in range(4):
            if w == 0: a(f"v_pk_mul_f32 {vr(52+2*j, 2)}, {vr(OP+2*j, 2)}, {vr(ML, 2)} op_sel_hi:[1,0]")
            else: a(f"v_pk_fma_f32 {vr(52+2*j, 2)}, {vr(OP+8*w+2*j, 2)}, {vr(ML+2*w, 2)}, {vr(52+2*j, 2)} op_sel_hi:[1,0,1]")
    for j in range(4): a(f"v_cvt_pk_bf16_f32 v{60+j}, v{52+2*j}, v{53+2*j}")
    a(f"buffer_store_dwordx4 v[60:63], v{voo}, {SO}, s50 offen")
    if dbg:
        a("s_waitcnt vmcnt(0)")
        a("s_memrealtime s[56:57]")
        a("s_waitcnt lgkmcnt(0)")
        a("s_not_b32 s54, s54")
        a("s_mov_b64 exec, 1")
        a("v_mov_b32 v0, 0")
        for i, r in enumerate((54, 56, 58, 60)):
            a(f"v_mov_b32 v1, s{r}"); a(f"global_atomic_umax v0, v1, s[18:19] offset:{4*i}")
        for i, r in enumerate((54, 56, 58, 60)):
            a(f"s_not_b32 s{r}, s{r}"); a(f"v_mov_b32 v1, s{r}"); a(f"global_atomic_umax v0, v1, s[18:19] offset:{16+4*i}")
    if stamp:
        a("s_waitcnt vmcnt(0)")
        a("s_memrealtime s[56:57]")
        a("s_getreg_b32 s58, hwreg(HW_REG_XCC_ID)")
        a("s_waitcnt lgkmcnt(0)")
        a("v_mov_b32 v0, s54"); a("v_mov_b32 v1, s56"); a("v_mov_b32 v2, s58");  a("v_mov_b32 v3, 0")
        a("s_mul_i32 s50, s2, 5"); a("s_add_u32 s50, s50, s3"); a("s_lshl_b32 s50, s50, 4")
        a("v_mov_b32 v4, s50")
        a("s_mov_b64 exec, 1")
        a("global_store_dwordx4 v4, v[0:3], s[52:53]")
    a("s_endpgm")

    lab("L_tree")
    a("s_lshl_b32 s48, s40, 12")
    a("s_add_u32 s20, s10, s48"); a("s_addc_u32 s21, s11, 0"); a("s_mov_b32 s22, 4096")
    a("s_add_u32 s24, s12, s48"); a("s_addc_u32 s25, s13, 0"); a("s_mov_b32 s26, 4096")
    a("s_lshr_b32 s50, s40, 4"); a("s_lshl_b32 s50, s50, 9")
    a("s_add_u32 s36, s14, s50"); a("s_addc_u32 s37, s15, 0"); a("s_mov_b32 s38, 512"); a("s_mov_b32 s39, 0x20000")
    q_loads()
    for s in range(8):
        a(f"buffer_load_dwordx4 {vr(KF + 4*s, 4)}, v{vTmp[0]}, {SK}, 0 offen offset:{32*s}")
    a(f"s_mov_b32 m0, {L_TV}")
    a(f"v_and_b32 v{vT}, 15, v{vR}"); a(f"v_lshlrev_b32 v{vT}, 5, v{vT}"); a(f"v_lshl_add_u32 v{vT}, v{vH}, 3, v{vT}")
    for j in range(2):
        a(f"buffer_load_dwordx4 v{vVoff[j]}, {SV}, 0 offen offset:{j * 1024} lds")
    a(f"buffer_load_dwordx2 {vr(P0, 2)}, v{vT}, {SM}, 0 offen")
    a(f"buffer_load_dwordx2 {vr(P0+2, 2)}, v{vT}, {SM}, 0 offen offset:16")
    vrd_addr(L_TV)
    big = 1e9 * math.sqrt(128)
    a(f"s_mov_b32 s51, {f32(big)}")
    a(f"v_mov_b32 v{vU}, {f32(-big)}")
    for j in range(8, 16): a(f"v_mov_b32 v{S0+j}, 0")
    a(f"v_mov_b32 v{vL}, 0"); a(f"v_mov_b32 v{vM}, {f32(-3.0e38)}"); a(f"v_mov_b32 v{vMC}, {f32(-3.0e38)}")
    a("s_waitcnt vmcnt(0)")
    v_reads(0, 0)
    for j in range(4):
        a(f"v_lshlrev_b32 v{S0+2*j}, 16, v{P0+j}"); a(f"v_and_b32 v{S0+2*j+1}, 0xffff0000, v{P0+j}")
    for j in range(8): a(f"v_fma_f32 v{S0+j}, v{S0+j}, s51, v{vU}")
    a("s_nop 1")
    for s in range(8): qk(s, vr(S0, 16))
    a("s_nop 7"); a("s_nop 3")
    sm_max(8); sm_exp(0, 8); a("s_nop 0"); sm_cvt(4); sm_sum(8)
    wa = write_partial(L_TO, L_ML + 4 * 256)
    a("s_waitcnt lgkmcnt(0)")
    pv(0, 0, "0"); pv(0, 1, "0")
    a("s_nop 7"); a("s_nop 3")
    for i in range(8):
        a(f"ds_write_b128 v{wa[i]}, {vr(O0 + 4*i, 4)}")
    a("s_waitcnt lgkmcnt(0)")
    if stamp:
        a("s_memrealtime s[56:57]")
        a("s_getreg_b32 s58, hwreg(HW_REG_XCC_ID)")
        a("s_waitcnt lgkmcnt(0)")
        a("v_mov_b32 v0, s54"); a("v_mov_b32 v1, s56"); a("v_mov_b32 v2, s58");  a("v_mov_b32 v3, 0")
        a("s_mul_i32 s50, s2, 5"); a("s_add_u32 s50, s50, s3"); a("s_lshl_b32 s50, s50, 4")
        a("v_mov_b32 v4, s50")
        a("s_mov_b64 exec, 1")
        a("global_store_dwordx4 v4, v[0:3], s[52:53]")
    lab("L_end")
    a("s_endpgm")
    check_hazards(L)
    out = HEADER + f"; @launch grid=(256,1,1) block=(320,1,1) lds={LDS}\n"
    out += '.amdgcn_target "amdgcn-amd-amdhsa--gfx950"\n.text\n' + f".globl {NAME}\n.p2align 8\n.type {NAME},@function\n{NAME}:\n"
    out += "\n".join(L) + "\n"
    out += '.section .rodata,"a"\n.p2align 6\n' + f".amdhsa_kernel {NAME}\n"
    out += f"  .amdhsa_next_free_vgpr {NV}\n  .amdhsa_next_free_sgpr 64\n  .amdhsa_accum_offset {NV}\n"
    out += "  .amdhsa_group_segment_fixed_size 0\n  .amdhsa_kernarg_size 72\n  .amdhsa_user_sgpr_count 2\n"
    out += "  .amdhsa_user_sgpr_kernarg_segment_ptr 1\n  .amdhsa_system_sgpr_workgroup_id_x 1\n.end_amdhsa_kernel\n"
    return out

if __name__ == "__main__":
    out = sys.argv[1]
    kw = {}
    for x in sys.argv[2:]:
        k, v = x.split("=", 1)
        if v in ("True", "False"): v = v == "True"
        else:
            try: v = int(v)
            except ValueError: pass
        kw[k] = v
    open(out, "w").write(gen(**kw))
```

```python
import sys, struct, math
from hz import check_hazards
NAME = "standalone__tree_speculative_verify_tree_attention_over_candidate_token_tree__sampling_kernel"
HEADER = open("standalone__tree_speculative_verify_tree_attention_over_candidate_token_tree__sampling.s.ref").read().split("; Override launch")[0]

def f32(x): return "0x%08x" % struct.unpack("<I", struct.pack("<f", x))[0]

def gen(INFL=10, stamp=False, dbg=False, cal=0, kfl="nt", vfl="nt", warm=False):
    L = []
    def a(s): L.append("    " + s)
    def lab(s): L.append(s + ":")
    def cm(s): L.append("    ; " + s)
    NT = 64
    WB = 24576
    KB = (0, 8192); VB = (16384, 20480)
    L_TV = 4 * WB
    L_TO = L_TV + 2048
    L_ML = L_TO + 8192
    LDS = L_ML + 5 * 256
    vKoff = [2, 3, 4, 5]; vVoff = [6, 7, 8, 9]
    vKrd = list(range(10, 18)); vVrd = [18, 19]
    vM, vMC, vL, vT, vU = 20, 21, 22, 23, 26
    vAL = 24
    vLane, vH, vR = 27, 28, 29
    vTmp = [30, 31]
    Q0, KF, VF, S0, P0, O0 = 32, 64, 96, 112, 128, 136
    NV = 168
    def vr(b, n): return f"v[{b}:{b+n-1}]"
    sK, sKh, sV, sLB, sC, sCnt = 42, 43, 44, 45, 46, 47
    SK, SV, SQ, SO, SM = "s[20:23]", "s[24:27]", "s[28:31]", "s[32:35]", "s[36:39]"
    c = (128 ** -0.5) * math.log2(math.e)

    a("s_cmp_ge_u32 s2, 256"); a("s_cbranch_scc1 L_end")
    a("s_load_dwordx16 s[4:19], s[0:1], 0")
    if stamp:
        a("s_load_dwordx2 s[52:53], s[0:1], 64"); a("s_memrealtime s[54:55]")
    if dbg or cal: a("s_memrealtime s[54:55]")
    a("v_lshrrev_b32 v1, 6, v0")
    a(f"v_and_b32 v{vLane}, 63, v0")
    a("v_readfirstlane_b32 s3, v1")
    a("s_lshr_b32 s40, s2, 4"); a("s_lshl_b32 s40, s40, 3"); a("s_and_b32 s41, s2, 7"); a("s_or_b32 s40, s40, s41")
    a("s_bfe_u32 s41, s2, 0x10003")
    a(f"s_mul_i32 s{sLB}, s3, {WB}")
    a(f"s_lshl_b32 s{sK}, s3, 13")
    a(f"s_mov_b32 s{sV}, s{sK}")
    a(f"s_mov_b32 s{sC}, {f32(c)}")
    a("s_lshl_b32 s48, s40, 21")
    a("s_lshl_b32 s49, s41, 7")
    a("s_mov_b32 s22, 0x200000"); a("s_mov_b32 s23, 0x20000")
    a("s_mov_b32 s26, 0x200000"); a("s_mov_b32 s27, 0x20000")
    a(f"v_lshlrev_b32 v1, 4, v{vLane}")
    a(f"v_and_b32 v{vTmp[0]}, 0x30, v{vLane}")
    a(f"v_xor_b32 v{vKoff[0]}, v1, v{vTmp[0]}")
    for j in range(1, 4): a(f"v_xor_b32 v{vKoff[j]}, {64*j}, v{vKoff[0]}")
    a(f"v_lshrrev_b32 v{vTmp[0]}, 3, v{vLane}")
    a(f"v_lshlrev_b32 v{vTmp[0]}, 8, v{vTmp[0]}")
    a(f"v_and_b32 v{vTmp[1]}, 0x70, v1")
    a(f"v_or_b32 v{vTmp[0]}, v{vTmp[0]}, v{vTmp[1]}")
    a(f"v_lshlrev_b32 v{vTmp[1]}, 2, v{vLane}")
    a(f"v_and_b32 v{vTmp[1]}, 64, v{vTmp[1]}")
    a(f"v_xor_b32 v{vTmp[0]}, v{vTmp[0]}, v{vTmp[1]}")
    a(f"v_add_u32 v{vVoff[0]}, s49, v{vTmp[0]}")
    for j in range(1, 4): a(f"v_add_u32 v{vVoff[j]}, {1024*j}, v{vVoff[0]}")
    a(f"v_lshrrev_b32 v{vH}, 5, v{vLane}")
    a(f"v_and_b32 v{vR}, 31, v{vLane}")
    a("s_cmp_eq_u32 s3, 4")
    a("s_waitcnt lgkmcnt(0)")
    a("s_cbranch_scc1 L_tree")
    a("s_add_u32 s20, s6, s48"); a("s_addc_u32 s21, s7, 0")
    a("s_add_u32 s24, s8, s48"); a("s_addc_u32 s25, s9, 0")

    stream = [("K", 0, j) for j in range(8)]
    for p in range(NT - 1):
        stream += [("K", p + 1, j) for j in range(8)] + [("V", p, j) for j in range(4)]
    stream += [("V", NT - 1, j) for j in range(4)]
    def issue(n):
        if n >= len(stream): return
        kind, t, j = stream[n]
        if kind == "K":
            if j == 0:
                a(f"s_add_u32 m0, s{sLB}, {KB[t & 1]}"); a(f"s_add_u32 s{sKh}, s{sK}, 4096")
            if j == 4:
                a(f"s_add_u32 m0, s{sLB}, {KB[t & 1] + 4096}"); a(f"s_add_u32 s{sK}, s{sK}, 32768")
            a(f"buffer_load_dwordx4 v{vKoff[j & 3]}, {SK}, s{sK if j < 4 else sKh} offen offset:{(j & 3) * 1024} {kfl} lds")
        else:
            if j == 0:
                a(f"s_add_u32 m0, s{sLB}, {VB[t & 1]}"); a("s_nop 0")
            a(f"buffer_load_dwordx4 v{vVoff[j]}, {SV}, s{sV} offen offset:{j * 1024} {vfl} lds")
            if j == 3: a(f"s_add_u32 s{sV}, s{sV}, 32768")
    def slot(n, extra=0):
        younger = min(n + INFL, len(stream)) - 1 - n
        a(f"s_waitcnt vmcnt({younger + extra})")
        issue(n + INFL)

    def q_loads():
        a("s_lshl_b32 s50, s40, 13")
        a("s_add_u32 s28, s4, s50"); a("s_addc_u32 s29, s5, 0"); a("s_mov_b32 s30, 8192"); a("s_mov_b32 s31, 0x20000")
        a(f"v_lshlrev_b32 v{vTmp[0]}, 8, v{vR}")
        a(f"v_lshl_add_u32 v{vTmp[0]}, v{vH}, 4, v{vTmp[0]}")
        for s in range(8):
            a(f"buffer_load_dwordx4 {vr(Q0 + 4*s, 4)}, v{vTmp[0]}, {SQ}, 0 offen offset:{32*s}")
    def vrd_addr(base_sgpr_or_const):
        a(f"v_bfe_u32 v{vTmp[0]}, v{vLane}, 2, 2")
        a(f"v_lshl_add_u32 v{vTmp[1]}, v{vH}, 2, v{vTmp[0]}")
        a(f"v_lshlrev_b32 v{vVrd[0]}, 7, v{vTmp[1]}")
        a(f"v_and_b32 v{vTmp[1]}, 3, v{vLane}")
        a(f"v_lshl_add_u32 v{vVrd[0]}, v{vTmp[1]}, 3, v{vVrd[0]}")
        a(f"v_and_b32 v{vTmp[1]}, 16, v{vLane}")
        a(f"v_lshl_add_u32 v{vVrd[0]}, v{vTmp[1]}, 1, v{vVrd[0]}")
        a(f"v_and_b32 v{vTmp[0]}, 2, v{vTmp[0]}")
        a(f"v_lshl_add_u32 v{vVrd[0]}, v{vTmp[0]}, 5, v{vVrd[0]}")
        a(f"v_add_u32 v{vVrd[0]}, {base_sgpr_or_const}, v{vVrd[0]}")
        a(f"v_xor_b32 v{vVrd[1]}, 64, v{vVrd[0]}")
    def k_reads(t):
        for s in range(8): a(f"ds_read_b128 {vr(KF + 4*s, 4)}, v{vKrd[s]} offset:{KB[t & 1]}")
    def qk(s, cinit="0"):
        cc = cinit if s == 0 else vr(S0, 16)
        a(f"v_mfma_f32_32x32x16_bf16 {vr(S0, 16)}, {vr(KF + 4*s, 4)}, {vr(Q0 + 4*s, 4)}, {cc}")
    def v_reads(off, u):
        for e in range(2):
            for z in range(2):
                a(f"ds_read_b64_tr_b16 {vr(VF + 8*u + 4*e + 2*z, 2)}, v{vVrd[e]} offset:{off + 2048*u + 1024*z}")
    def pv(u, e, cinit=None):
        cc = cinit or vr(O0 + 16*e, 16)
        a(f"v_mfma_f32_32x32x16_bf16 {vr(O0 + 16*e, 16)}, {vr(VF + 8*u + 4*e, 4)}, {vr(P0 + 4*u, 4)}, {cc}")
    def sm_max(n=16):
        a(f"v_max3_f32 v{vT}, v{S0}, v{S0+1}, v{vM}")
        for j in range(2, n, 2): a(f"v_max3_f32 v{vT}, v{S0+j}, v{S0+j+1}, v{vT}")
        a(f"v_mov_b32 v{vU}, v{vT}")
        a("s_nop 1")
        a(f"v_permlane32_swap_b32 v{vT}, v{vU}")
        a(f"v_max_f32 v{vM}, v{vT}, v{vU}")
        a(f"v_mul_f32 v{vT}, s{sC}, v{vM}")
        a(f"v_sub_f32 v{vAL}, v{vMC}, v{vT}")
        a(f"v_mov_b32 v{vMC}, v{vT}")
        a(f"v_exp_f32 v{vAL}, v{vAL}")
    def sm_exp(j0, j1):
        for j in range(j0, j1): a(f"v_fma_f32 v{S0+j}, v{S0+j}, s{sC}, -v{vMC}")
        for j in range(j0, j1): a(f"v_exp_f32 v{S0+j}, v{S0+j}")
    def sm_sum(n=16):
        a(f"v_fma_f32 v{vL}, v{vL}, v{vAL}, v{S0}")
        a(f"v_add_f32 v{vT}, v{S0+1}, v{S0+2}")
        for j in range(3, n):
            r = vL if j & 1 else vT
            a(f"v_add_f32 v{r}, v{r}, v{S0+j}")
        a(f"v_add_f32 v{vL}, v{vL}, v{vT}")
    def sm_cvt(n=8):
        for j in range(n): a(f"v_cvt_pk_bf16_f32 v{P0+j}, v{S0+2*j}, v{S0+2*j+1}")
    def sm_resc(j0, j1):
        for j in range(j0, j1): a(f"v_pk_mul_f32 {vr(O0+2*j, 2)}, {vr(O0+2*j, 2)}, {vr(vAL, 2)} op_sel_hi:[1,0]")
    def write_partial(o_base, ml_base):
        a(f"v_mov_b32 v{vU}, v{vL}")
        a(f"v_and_b32 v{vTmp[0]}, 15, v{vR}")
        a(f"v_xor_b32 v{vTmp[0]}, v{vTmp[0]}, v{vH}")
        a(f"v_permlane32_swap_b32 v{vL}, v{vU}")
        a(f"v_lshlrev_b32 v{vTmp[0]}, 4, v{vTmp[0]}")
        a(f"v_lshl_add_u32 v{vTmp[0]}, v{vR}, 8, v{vTmp[0]}")
        a(f"v_add_u32 v{vTmp[0]}, {o_base}, v{vTmp[0]}")
        a(f"v_add_f32 v{vT}, v{vL}, v{vU}")
        a(f"v_mov_b32 v{vL}, v{vMC}")
        a(f"v_lshlrev_b32 v{vTmp[1]}, 3, v{vR}")
        a(f"v_add_u32 v{vTmp[1]}, {ml_base}, v{vTmp[1]}")
        a(f"ds_write_b64 v{vTmp[1]}, {vr(vL, 2)}")
        for i in range(1, 8): a(f"v_xor_b32 v{vKrd[i]}, {32*i}, v{vTmp[0]}")
        return [vTmp[0]] + vKrd[1:]

    for n in range(8): issue(n)
    q_loads()
    for n in range(8, INFL): issue(n)
    a(f"v_and_b32 v{vTmp[1]}, 15, v{vR}")
    a(f"v_xor_b32 v{vTmp[1]}, v{vTmp[1]}, v{vH}")
    a(f"v_lshlrev_b32 v{vTmp[1]}, 4, v{vTmp[1]}")
    a(f"v_lshl_add_u32 v{vTmp[1]}, v{vR}, 8, v{vTmp[1]}")
    a(f"v_add_u32 v{vKrd[0]}, s{sLB}, v{vTmp[1]}")
    for s in range(1, 8): a(f"v_xor_b32 v{vKrd[s]}, {32*s}, v{vKrd[0]}")
    vrd_addr(f"s{sLB}")
    for j in range(32): a(f"v_mov_b32 v{O0+j}, 0")
    a(f"v_mov_b32 v{vL}, 0"); a(f"v_mov_b32 v{vM}, {f32(-3.0e38)}"); a(f"v_mov_b32 v{vMC}, {f32(-3.0e38)}")
    assert INFL >= 8
    for n in range(8): slot(n, extra=8)
    k_reads(0)
    a(f"s_waitcnt vmcnt({INFL})")
    for s in range(8):
        a(f"s_waitcnt lgkmcnt({7-s})"); qk(s)
    a("s_nop 7"); a("s_nop 1")
    a(f"s_mov_b32 s{sCnt}, {(NT - 2) // 2}")
    if dbg or cal: a("s_memrealtime s[58:59]"); a("s_waitcnt lgkmcnt(0)")

    def period(p):
        n0 = 8 + 12 * p
        slot(n0 + 0); sm_max()
        slot(n0 + 1); sm_exp(0, 8)
        slot(n0 + 2); sm_exp(8, 16)
        slot(n0 + 3); sm_sum()
        slot(n0 + 4); sm_cvt()
        slot(n0 + 5); sm_resc(0, 8)
        slot(n0 + 6); sm_resc(8, 16)
        slot(n0 + 7); k_reads(p + 1)
        slot(n0 + 8)
        for s in range(4):
            a(f"s_waitcnt lgkmcnt({7-s})"); qk(s)
        slot(n0 + 9); v_reads(VB[p & 1], 0)
        a("s_waitcnt lgkmcnt(4)")
        for s in range(4, 8): qk(s)
        slot(n0 + 10)
        a("s_waitcnt lgkmcnt(0)"); pv(0, 0); pv(0, 1)
        slot(n0 + 11); v_reads(VB[p & 1], 1)
        a("s_waitcnt lgkmcnt(2)"); pv(1, 0); a("s_waitcnt lgkmcnt(0)"); pv(1, 1)
    lab("L_loop")
    period(0); period(1)
    a(f"s_sub_u32 s{sCnt}, s{sCnt}, 1"); a(f"s_cmp_lg_u32 s{sCnt}, 0"); a("s_cbranch_scc1 L_loop")
    assert INFL <= 12
    if dbg: a("s_memrealtime s[60:61]"); a("s_waitcnt lgkmcnt(0)")
    period(NT - 2)
    n0 = 8 + 12 * (NT - 1)
    sm_max(); sm_exp(0, 16); sm_cvt(); sm_resc(0, 16); sm_sum()
    a("s_waitcnt vmcnt(2)"); v_reads(VB[(NT - 1) & 1], 0)
    a(f"s_mul_i32 s50, s3, 256"); a(f"s_add_u32 s50, s50, {L_ML}")
    wa = write_partial(f"s{sLB}", "s50")
    a("s_waitcnt lgkmcnt(0)"); pv(0, 0); pv(0, 1)
    a("s_waitcnt vmcnt(0)"); v_reads(VB[(NT - 1) & 1], 1)
    a("s_waitcnt lgkmcnt(2)"); pv(1, 0); a("s_waitcnt lgkmcnt(0)"); pv(1, 1)
    vq, vc8, vra, vma, voo = 32, 33, 34, 36, 37
    a(f"v_lshrrev_b32 v{vq}, 3, v0"); a(f"v_and_b32 v{vc8}, 7, v0")
    a(f"v_lshlrev_b32 v{vra}, 1, v{vc8}"); a(f"v_and_b32 v{vma}, 15, v{vq}")
    a(f"v_xor_b32 v{vra}, v{vra}, v{vma}"); a(f"v_lshlrev_b32 v{vra}, 4, v{vra}")
    a(f"v_lshl_add_u32 v{vra}, v{vq}, 8, v{vra}"); a(f"v_xor_b32 v{vra+1}, 16, v{vra}")
    a(f"v_lshlrev_b32 v{vma}, 3, v{vq}"); a(f"v_add_u32 v{vma}, {L_ML}, v{vma}")
    a(f"v_lshlrev_b32 v{voo}, 8, v{vq}"); a(f"v_lshl_add_u32 v{voo}, v{vc8}, 4, v{voo}")
    for i in range(8):
        a(f"ds_write_b128 v{wa[i]}, {vr(O0 + 4*i, 4)}")
    a("s_lshl_b32 s50, s40, 13"); a("s_add_u32 s50, s50, s49")
    a("s_mov_b32 s32, s16"); a("s_mov_b32 s33, s17"); a("s_mov_b32 s34, 0x100000"); a("s_mov_b32 s35, 0x20000")
    a(f"v_add_u32 v{vra+4}, {3*WB}, v{vra}"); a(f"v_add_u32 v{vra+5}, {3*WB}, v{vra+1}")
    a("s_waitcnt lgkmcnt(0)")
    a("s_barrier")
    ML, OP = 40, 64
    for w in range(5): a(f"ds_read_b64 {vr(ML + 2*w, 2)}, v{vma} offset:{256*w}")
    for w in range(5):
        for x in range(2):
            if w < 3: a(f"ds_read_b128 {vr(OP + 8*w + 4*x, 4)}, v{vra+x} offset:{w*WB}")
            else: a(f"ds_read_b128 {vr(OP + 8*w + 4*x, 4)}, v{vra+4+x} offset:{0 if w == 3 else L_TO - 3*WB}")
    a("s_waitcnt lgkmcnt(10)")
    a(f"v_max3_f32 v50, v{ML}, v{ML+2}, v{ML+4}"); a(f"v_max3_f32 v50, v50, v{ML+6}, v{ML+8}")
    for w in range(5): a(f"v_sub_f32 v{ML+2*w}, v{ML+2*w}, v50")
    for w in range(5): a(f"v_exp_f32 v{ML+2*w}, v{ML+2*w}")
    a(f"v_mul_f32 v51, v{ML}, v{ML+1}")
    for w in range(1, 5): a(f"v_fma_f32 v51, v{ML+2*w}, v{ML+2*w+1}, v51")
    a("v_rcp_f32 v51, v51")
    a("s_nop 0")
    for w in range(5): a(f"v_mul_f32 v{ML+2*w}, v{ML+2*w}, v51")
    for w in range(5):
        a(f"s_waitcnt lgkmcnt({8 - 2*w})")
        for j in range(4):
            if w == 0: a(f"v_pk_mul_f32 {vr(52+2*j, 2)}, {vr(OP+2*j, 2)}, {vr(ML, 2)} op_sel_hi:[1,0]")
            else: a(f"v_pk_fma_f32 {vr(52+2*j, 2)}, {vr(OP+8*w+2*j, 2)}, {vr(ML+2*w, 2)}, {vr(52+2*j, 2)} op_sel_hi:[1,0,1]")
    for j in range(4): a(f"v_cvt_pk_bf16_f32 v{60+j}, v{52+2*j}, v{53+2*j}")
    a(f"buffer_store_dwordx4 v[60:63], v{voo}, {SO}, s50 offen")
    if cal:
        a("s_waitcnt vmcnt(0)")
        a("s_mov_b32 s60, 15000")
        if cal == 2:
            a("s_sub_u32 s61, s58, s54"); a("s_mul_i32 s61, s61, 10"); a("s_add_u32 s60, s60, s61")
        lab("L_cal")
        a("s_memrealtime s[56:57]")
        a("s_waitcnt lgkmcnt(0)")
        a("s_sub_u32 s56, s56, s54")
        a("s_cmp_lt_u32 s56, s60")
        a("s_cbranch_scc1 L_cal")
    if dbg:
        a("s_waitcnt vmcnt(0)")
        a("s_memrealtime s[56:57]")
        a("s_waitcnt lgkmcnt(0)")
        a("s_not_b32 s54, s54")
        a("s_mov_b64 exec, 1")
        a("v_mov_b32 v0, 0")
        for i, r in enumerate((54, 56, 58, 60)):
            a(f"v_mov_b32 v1, s{r}"); a(f"global_atomic_umax v0, v1, s[18:19] offset:{4*i}")
        for i, r in enumerate((54, 56, 58, 60)):
            a(f"s_not_b32 s{r}, s{r}"); a(f"v_mov_b32 v1, s{r}"); a(f"global_atomic_umax v0, v1, s[18:19] offset:{16+4*i}")
    if stamp:
        a("s_waitcnt vmcnt(0)")
        a("s_memrealtime s[56:57]")
        a("s_getreg_b32 s58, hwreg(HW_REG_XCC_ID)")
        a("s_waitcnt lgkmcnt(0)")
        a("v_mov_b32 v0, s54"); a("v_mov_b32 v1, s56"); a("v_mov_b32 v2, s58");  a("v_mov_b32 v3, 0")
        a("s_mul_i32 s50, s2, 5"); a("s_add_u32 s50, s50, s3"); a("s_lshl_b32 s50, s50, 4")
        a("v_mov_b32 v4, s50")
        a("s_mov_b64 exec, 1")
        a("global_store_dwordx4 v4, v[0:3], s[52:53]")
    a("s_endpgm")

    lab("L_tree")
    a("s_lshl_b32 s48, s40, 12")
    a("s_add_u32 s20, s10, s48"); a("s_addc_u32 s21, s11, 0"); a("s_mov_b32 s22, 4096")
    a("s_add_u32 s24, s12, s48"); a("s_addc_u32 s25, s13, 0"); a("s_mov_b32 s26, 4096")
    a("s_lshr_b32 s50, s40, 4"); a("s_lshl_b32 s50, s50, 9")
    a("s_add_u32 s36, s14, s50"); a("s_addc_u32 s37, s15, 0"); a("s_mov_b32 s38, 512"); a("s_mov_b32 s39, 0x20000")
    q_loads()
    for s in range(8):
        a(f"buffer_load_dwordx4 {vr(KF + 4*s, 4)}, v{vTmp[0]}, {SK}, 0 offen offset:{32*s}")
    a(f"s_mov_b32 m0, {L_TV}")
    a(f"v_and_b32 v{vT}, 15, v{vR}"); a(f"v_lshlrev_b32 v{vT}, 5, v{vT}"); a(f"v_lshl_add_u32 v{vT}, v{vH}, 3, v{vT}")
    for j in range(2):
        a(f"buffer_load_dwordx4 v{vVoff[j]}, {SV}, 0 offen offset:{j * 1024} lds")
    a(f"buffer_load_dwordx2 {vr(P0, 2)}, v{vT}, {SM}, 0 offen")
    a(f"buffer_load_dwordx2 {vr(P0+2, 2)}, v{vT}, {SM}, 0 offen offset:16")
    vrd_addr(L_TV)
    big = 1e9 * math.sqrt(128)
    a(f"s_mov_b32 s51, {f32(big)}")
    a(f"v_mov_b32 v{vU}, {f32(-big)}")
    for j in range(8, 16): a(f"v_mov_b32 v{S0+j}, 0")
    a(f"v_mov_b32 v{vL}, 0"); a(f"v_mov_b32 v{vM}, {f32(-3.0e38)}"); a(f"v_mov_b32 v{vMC}, {f32(-3.0e38)}")
    a("s_waitcnt vmcnt(0)")
    v_reads(0, 0)
    for j in range(4):
        a(f"v_lshlrev_b32 v{S0+2*j}, 16, v{P0+j}"); a(f"v_and_b32 v{S0+2*j+1}, 0xffff0000, v{P0+j}")
    for j in range(8): a(f"v_fma_f32 v{S0+j}, v{S0+j}, s51, v{vU}")
    a("s_nop 1")
    for s in range(8): qk(s, vr(S0, 16))
    a("s_nop 7"); a("s_nop 3")
    sm_max(8); sm_exp(0, 8); a("s_nop 0"); sm_cvt(4); sm_sum(8)
    wa = write_partial(L_TO, L_ML + 4 * 256)
    a("s_waitcnt lgkmcnt(0)")
    pv(0, 0, "0"); pv(0, 1, "0")
    a("s_nop 7"); a("s_nop 3")
    for i in range(8):
        a(f"ds_write_b128 v{wa[i]}, {vr(O0 + 4*i, 4)}")
    a("s_waitcnt lgkmcnt(0)")
    if stamp:
        a("s_memrealtime s[56:57]")
        a("s_getreg_b32 s58, hwreg(HW_REG_XCC_ID)")
        a("s_waitcnt lgkmcnt(0)")
        a("v_mov_b32 v0, s54"); a("v_mov_b32 v1, s56"); a("v_mov_b32 v2, s58");  a("v_mov_b32 v3, 0")
        a("s_mul_i32 s50, s2, 5"); a("s_add_u32 s50, s50, s3"); a("s_lshl_b32 s50, s50, 4")
        a("v_mov_b32 v4, s50")
        a("s_mov_b64 exec, 1")
        a("global_store_dwordx4 v4, v[0:3], s[52:53]")
    lab("L_end")
    a("s_endpgm")
    check_hazards(L)
    out = HEADER + f"; @launch grid=(256,1,1) block=(320,1,1) lds={LDS}\n"
    out += '.amdgcn_target "amdgcn-amd-amdhsa--gfx950"\n.text\n' + f".globl {NAME}\n.p2align 8\n.type {NAME},@function\n{NAME}:\n"
    out += "\n".join(L) + "\n"
    out += '.section .rodata,"a"\n.p2align 6\n' + f".amdhsa_kernel {NAME}\n"
    out += f"  .amdhsa_next_free_vgpr {NV}\n  .amdhsa_next_free_sgpr 64\n  .amdhsa_accum_offset {NV}\n"
    out += "  .amdhsa_group_segment_fixed_size 0\n  .amdhsa_kernarg_size 72\n  .amdhsa_user_sgpr_count 2\n"
    out += "  .amdhsa_user_sgpr_kernarg_segment_ptr 1\n  .amdhsa_system_sgpr_workgroup_id_x 1\n.end_amdhsa_kernel\n"
    return out

if __name__ == "__main__":
    out = sys.argv[1]
    kw = {}
    for x in sys.argv[2:]:
        k, v = x.split("=", 1)
        if v in ("True", "False"): v = v == "True"
        else:
            try: v = int(v)
            except ValueError: pass
        kw[k] = v
    open(out, "w").write(gen(**kw))
```

```python
import sys, struct, math
from hz import check_hazards
NAME = "standalone__tree_speculative_verify_tree_attention_over_candidate_token_tree__sampling_kernel"
HEADER = open("standalone__tree_speculative_verify_tree_attention_over_candidate_token_tree__sampling.s.ref").read().split("; Override launch")[0]

def f32(x): return "0x%08x" % struct.unpack("<I", struct.pack("<f", x))[0]

def gen(INFL=30, INFLB=None, stamp=False, kfl="nt", vfl="nt", trace=False, warm=True, prio=3, st2=False, k0fl=None, drytail=True, ofl=""):
    L = []
    def a(s): L.append("    " + s)
    def lab(s): L.append(s + ":")
    NR = 64
    WB = 32768
    VO = 24576
    L_H = 4 * WB
    L_Q = L_H + 12288
    L_ML = L_Q + 8192
    LDS = L_ML + 5 * 256
    vKoff = [2, 3, 4, 5]; vVoff = [6, 7, 8, 9]
    vKrd = list(range(10, 18)); vVrd = [18, 19]
    vM, vMC, vL, vT, vU = 20, 21, 22, 23, 26
    vAL = 24
    vLane, vH, vR = 27, 28, 29
    vTmp = [30, 31]
    vVl = [2, 3]
    Q0, KF, VF, S0, P0, O0, B0 = 32, 64, 96, 112, 128, 136, 168
    NV = 184
    def vr(b, n): return f"v[{b}:{b+n-1}]"
    sK, sT, sV, sLB, sC, sCnt, sKb, sVb, sDK, sVt, sPh, sW = 42, 43, 44, 45, 46, 47, 60, 61, 62, 63, 51, 59
    SK, SV, SQ, SO, SM = "s[20:23]", "s[24:27]", "s[28:31]", "s[32:35]", "s[36:39]"
    c = (128 ** -0.5) * math.log2(math.e)
    if k0fl is None: k0fl = kfl

    def stamp_out(tr=False):
        a("s_waitcnt vmcnt(0)")
        a("s_memrealtime s[56:57]")
        a("s_getreg_b32 s58, hwreg(HW_REG_XCC_ID)")
        a("s_waitcnt lgkmcnt(0)")
        if tr:
            a("v_writelane_b32 v1, s56, 0"); a("v_writelane_b32 v1, s54, 32")
            a("s_lshl_b32 s50, s2, 2"); a(f"s_add_u32 s50, s50, s{sW}"); a("s_lshl_b32 s50, s50, 8"); a("s_add_u32 s50, s50, 0x200000")
            a(f"v_lshl_add_u32 v4, v{vLane}, 2, s50")
            a("global_store_dword v4, v1, s[52:53]")
        a("v_mov_b32 v0, s54"); a("v_mov_b32 v1, s56"); a("v_mov_b32 v2, s58");  a("v_mov_b32 v3, 0")
        a("s_mul_i32 s50, s2, 6"); a("s_add_u32 s50, s50, s3"); a("s_lshl_b32 s50, s50, 4")
        a("v_mov_b32 v4, s50")
        a("s_mov_b64 exec, 1")
        a("global_store_dwordx4 v4, v[0:3], s[52:53]")

    def v_dma_offsets():
        a(f"v_lshrrev_b32 v{vTmp[0]}, 3, v{vLane}")
        a(f"v_lshlrev_b32 v{vTmp[0]}, 8, v{vTmp[0]}")
        a(f"v_and_b32 v{vTmp[1]}, 0x70, v1")
        a(f"v_or_b32 v{vTmp[0]}, v{vTmp[0]}, v{vTmp[1]}")
        a(f"v_lshlrev_b32 v{vTmp[1]}, 2, v{vLane}")
        a(f"v_and_b32 v{vTmp[1]}, 64, v{vTmp[1]}")
        a(f"v_xor_b32 v{vTmp[0]}, v{vTmp[0]}, v{vTmp[1]}")
        a(f"v_add_u32 v{vVoff[0]}, s49, v{vTmp[0]}")
        for j in range(1, 4): a(f"v_add_u32 v{vVoff[j]}, {1024*j}, v{vVoff[0]}")

    a("s_load_dwordx16 s[4:19], s[0:1], 0")
    if stamp:
        a("s_load_dwordx2 s[52:53], s[0:1], 64"); a("s_memrealtime s[54:55]")
    a("s_cmp_ge_u32 s2, 256"); a("s_cbranch_scc1 L_end")
    a("v_lshrrev_b32 v1, 6, v0")
    a(f"v_and_b32 v{vLane}, 63, v0")
    a("v_readfirstlane_b32 s3, v1")
    a("s_lshr_b32 s40, s2, 4"); a("s_lshl_b32 s40, s40, 3"); a("s_and_b32 s41, s2, 7"); a("s_or_b32 s40, s40, s41")
    a("s_bfe_u32 s41, s2, 0x10003")
    a("s_lshl_b32 s48, s40, 21")
    a("s_lshl_b32 s49, s41, 7")
    a("s_mov_b32 s22, 0x200000"); a("s_mov_b32 s23, 0x20000")
    a("s_mov_b32 s26, 0x200000"); a("s_mov_b32 s27, 0x20000")
    a(f"v_lshlrev_b32 v1, 4, v{vLane}")
    a(f"v_and_b32 v{vTmp[0]}, 0x30, v{vLane}")
    a(f"v_xor_b32 v{vKoff[0]}, v1, v{vTmp[0]}")
    for j in range(1, 4): a(f"v_xor_b32 v{vKoff[j]}, {64*j}, v{vKoff[0]}")
    a("s_cmp_lg_u32 s3, 0")
    a("s_cbranch_scc1 L_notload")
    if prio: a(f"s_setprio {prio}")
    a(f"s_mov_b32 s{sK}, 0"); a(f"s_mov_b32 s{sV}, 0"); a(f"s_mov_b32 s{sKb}, 0"); a(f"s_mov_b32 s{sVb}, {VO}")
    a("s_waitcnt lgkmcnt(0)")
    a("s_add_u32 s20, s6, s48"); a("s_addc_u32 s21, s7, 0")
    if st2: a("s_memrealtime s[64:65]")
    def loader(infl, sfx):
        def emit(groups, first_wait, bar_at, sb=None, sa=None, fl=None):
            n = 0
            for kind, w, hf in groups:
                if kind == "K":
                    a(f"s_add_u32 m0, s{sKb}, {w*WB + hf*4096}"); a(f"s_add_u32 s{sT}, s{sK}, {w*8192 + hf*4096}")
                else:
                    a(f"s_add_u32 m0, s{sVb}, {w*WB}"); a(f"s_add_u32 s{sT}, s{sV}, {w*8192}")
                for j in range(4):
                    if n >= first_wait: a(f"s_waitcnt vmcnt({infl-1})")
                    if kind == "K": a(f"buffer_load_dwordx4 v{vKoff[j]}, {SK}, s{sT} offen offset:{j*1024} {fl if fl is not None else kfl} lds")
                    else: a(f"buffer_load_dwordx4 v{vVoff[j]}, {SV}, s{sT} offen offset:{j*1024} {vfl} lds")
                    if n == bar_at:
                        if sb: a(f"s_memrealtime {sb}")
                        a("s_barrier")
                        if sa: a(f"s_memrealtime {sa}")
                    n += 1
        def rot(kind):
            if kind == "K":
                a(f"s_add_u32 s{sK}, s{sK}, 32768"); a(f"s_add_u32 s{sKb}, s{sKb}, 8192")
                a(f"s_cmp_eq_u32 s{sKb}, 24576"); a(f"s_cselect_b32 s{sKb}, 0, s{sKb}")
            else:
                a(f"s_add_u32 s{sV}, s{sV}, 32768"); a(f"s_xor_b32 s{sVb}, s{sVb}, 4096")
        KG = [("K", w, hf) for w in range(4) for hf in range(2)]
        VG = [("V", w, 0) for w in range(4)]
        RG = KG + VG
        assert infl <= 32
        emit(KG[:7], 99, -1, fl=k0fl)
        if st2: a("s_memrealtime s[66:67]")
        a("s_add_u32 s24, s8, s48"); a("s_addc_u32 s25, s9, 0")
        v_dma_offsets()
        if st2: a("s_waitcnt vmcnt(27)"); a("s_memrealtime s[68:69]")
        emit(KG[7:], infl - 28, -1, fl=k0fl); rot("K")
        if st2:
            for it in range(3):
                emit(RG, 0, infl - 1, f"s[{70+4*it}:{71+4*it}]", f"s[{72+4*it}:{73+4*it}]"); rot("K"); rot("V")
        a(f"s_mov_b32 s{sCnt}, {NR - 1 - (3 if st2 else 0)}")
        lab("L_ld" + sfx)
        emit(RG, 0, infl - 1); rot("K"); rot("V")
        a(f"s_sub_u32 s{sCnt}, s{sCnt}, 1"); a(f"s_cmp_lg_u32 s{sCnt}, 0"); a(f"s_cbranch_scc1 L_ld{sfx}")
        a(f"s_mov_b32 s{sVb}, 8192")
        emit(VG, 0, -1)
        a("s_waitcnt vmcnt(16)"); a("s_barrier")
        a("s_waitcnt vmcnt(0)")
        if st2: a("s_memrealtime s[82:83]")
        a("s_barrier")
        if st2:
            a("s_memrealtime s[84:85]")
            a("s_waitcnt lgkmcnt(0)")
            a("v_writelane_b32 v1, s54, 0")
            for i in range(11): a(f"v_writelane_b32 v1, s{64+2*i}, {i+1}")
            a("s_lshl_b32 s50, s2, 10"); a("s_add_u32 s50, s50, 0x200000")
            a(f"v_lshl_add_u32 v4, v{vLane}, 2, s50")
            a("global_store_dword v4, v1, s[52:53]")
        if stamp: stamp_out()
        a("s_endpgm")
    if INFLB and INFLB != INFL:
        a("s_cmp_eq_u32 s41, 1"); a("s_cbranch_scc1 L_ldB0")
        loader(INFL, "A")
        lab("L_ldB0")
        loader(INFLB, "B")
    else:
        loader(INFL, "")

    def qk(s):
        cc = vr(B0, 16) if s == 0 else vr(S0, 16)
        a(f"v_mfma_f32_32x32x16_bf16 {vr(S0, 16)}, {vr(KF + 4*s, 4)}, {vr(Q0 + 4*s, 4)}, {cc}")
    def v_reads(u):
        for e in range(2):
            for z in range(2):
                a(f"ds_read_b64_tr_b16 {vr(VF + 8*u + 4*e + 2*z, 2)}, v{vVrd[e]} offset:{2048*u + 1024*z}")
    def pv(u, e):
        a(f"v_mfma_f32_32x32x16_bf16 {vr(O0 + 16*e, 16)}, {vr(VF + 8*u + 4*e, 4)}, {vr(P0 + 4*u, 4)}, {vr(O0 + 16*e, 16)}")

    lab("L_notload")
    a(f"v_lshrrev_b32 v{vH}, 5, v{vLane}")
    a(f"v_and_b32 v{vR}, 31, v{vLane}")
    a(f"s_sub_u32 s{sW}, s3, 1")
    a(f"s_lshl_b32 s{sLB}, s{sW}, 15")
    a(f"s_mov_b32 s{sCnt}, {NR}")
    for j in range(16): a(f"v_mov_b32 v{B0+j}, 0")
    a("s_cmp_lg_u32 s3, 5")
    a("s_waitcnt lgkmcnt(0)")
    a("s_cbranch_scc1 L_cons")
    a("s_lshl_b32 s50, s40, 13")
    a("s_add_u32 s28, s4, s50"); a("s_addc_u32 s29, s5, 0"); a("s_mov_b32 s30, 8192"); a("s_mov_b32 s31, 0x20000")
    a(f"s_mov_b32 m0, {L_Q}"); a("s_movk_i32 s51, 4096")
    for j in range(4): a(f"buffer_load_dwordx4 v{vKoff[j]}, {SQ}, 0 offen offset:{j*1024} lds")
    a(f"s_mov_b32 m0, {L_Q + 4096}"); a("s_lshl_b32 s48, s40, 12")
    for j in range(4): a(f"buffer_load_dwordx4 v{vKoff[j]}, {SQ}, s51 offen offset:{j*1024} lds")
    a("s_add_u32 s20, s10, s48"); a("s_addc_u32 s21, s11, 0"); a("s_mov_b32 s22, 4096")
    a(f"s_mov_b32 m0, {L_H}")
    a("s_add_u32 s24, s12, s48"); a("s_addc_u32 s25, s13, 0"); a("s_mov_b32 s26, 4096")
    for j in range(4): a(f"buffer_load_dwordx4 v{vKoff[j]}, {SK}, 0 offen offset:{j*1024} lds")
    v_dma_offsets()
    a(f"s_mov_b32 m0, {L_H + 8192}")
    a("s_lshr_b32 s50, s40, 4"); a("s_lshl_b32 s50, s50, 9")
    a("s_add_u32 s36, s14, s50"); a("s_addc_u32 s37, s15, 0"); a("s_mov_b32 s38, 512"); a("s_mov_b32 s39, 0x20000")
    for j in range(4): a(f"buffer_load_dwordx4 v{vVoff[j]}, {SV}, 0 offen offset:{j*1024} lds")
    a(f"v_and_b32 v{vU}, 15, v{vR}"); a(f"v_lshlrev_b32 v{vU}, 5, v{vU}"); a(f"v_lshl_add_u32 v{vU}, v{vH}, 3, v{vU}")
    a(f"s_mov_b32 m0, {L_H + 4096}")
    a(f"buffer_load_dwordx2 {vr(S0, 2)}, v{vU}, {SM}, 0 offen")
    a(f"buffer_load_dwordx2 {vr(S0+2, 2)}, v{vU}, {SM}, 0 offen offset:16")
    for j in range(4): a(f"buffer_load_dwordx4 v{vKoff[j]}, {SK}, s51 offen offset:{j*1024} lds")
    big = 1e9 * math.sqrt(128)
    a(f"s_mov_b32 s51, {f32(big)}")
    a(f"v_mov_b32 v{vU}, {f32(-big)}")
    for j in range(8, 16): a(f"v_mov_b32 v{B0+j}, 0xff800000")
    a(f"s_mov_b32 s{sCnt}, 1")
    a("s_waitcnt vmcnt(4)")
    for j in range(4):
        a(f"v_lshlrev_b32 v{B0+2*j}, 16, v{S0+j}"); a(f"v_and_b32 v{B0+2*j+1}, 0xffff0000, v{S0+j}")
    for j in range(8): a(f"v_fma_f32 v{B0+j}, v{B0+j}, s51, v{vU}")
    a("s_branch L_common")
    lab("L_cons")
    if warm:
        a("s_cmp_lg_u32 s3, 1"); a("s_cbranch_scc1 L_common")
        a("s_add_u32 s24, s8, s48"); a("s_addc_u32 s25, s9, 0")
        a(f"v_mov_b32 v{vT}, s49")
        a(f"buffer_load_dword v5, v{vT}, {SV}, 0 offen {vfl}")
    lab("L_common")
    a(f"s_mov_b32 s{sC}, {f32(c)}")
    a(f"v_mov_b32 v{vL}, 0"); a(f"v_mov_b32 v{vM}, {f32(-3.0e38)}"); a(f"v_mov_b32 v{vMC}, {f32(-3.0e38)}")
    a(f"v_and_b32 v{vTmp[1]}, 15, v{vR}")
    a(f"v_xor_b32 v{vTmp[1]}, v{vTmp[1]}, v{vH}")
    a(f"v_lshlrev_b32 v{vTmp[1]}, 4, v{vTmp[1]}")
    a(f"v_lshl_add_u32 v{vTmp[1]}, v{vR}, 8, v{vTmp[1]}")
    a(f"v_add_u32 v{vKrd[0]}, {L_Q}, v{vTmp[1]}")
    for s in range(1, 8): a(f"v_xor_b32 v{vKrd[s]}, {32*s}, v{vKrd[0]}")
    a(f"v_bfe_u32 v{vT}, v{vLane}, 2, 2")
    a(f"v_lshl_add_u32 v{vTmp[1]}, v{vH}, 2, v{vT}")
    a(f"v_lshlrev_b32 v{vVl[0]}, 7, v{vTmp[1]}")
    a(f"v_and_b32 v{vTmp[1]}, 3, v{vLane}")
    a(f"v_lshl_add_u32 v{vVl[0]}, v{vTmp[1]}, 3, v{vVl[0]}")
    a(f"v_and_b32 v{vTmp[1]}, 16, v{vLane}")
    a(f"v_lshl_add_u32 v{vVl[0]}, v{vTmp[1]}, 1, v{vVl[0]}")
    a(f"v_and_b32 v{vT}, 2, v{vT}")
    a(f"v_lshl_add_u32 v{vVl[0]}, v{vT}, 5, v{vVl[0]}")
    a(f"v_xor_b32 v{vVl[1]}, 64, v{vVl[0]}")
    a(f"v_add_u32 v{vVrd[0]}, {L_Q}, v{vVl[0]}"); a(f"v_add_u32 v{vVrd[1]}, {L_Q}, v{vVl[1]}")
    for j in range(32): a(f"v_mov_b32 v{O0+j}, 0")
    for j in range(8): a(f"v_mov_b32 v{P0+j}, 0")
    a(f"s_add_u32 s{sVb}, s{sLB}, {VO}")
    a(f"s_sub_u32 s{sDK}, s{sLB}, {L_Q}")
    a(f"s_mov_b32 s{sPh}, 0")
    a("s_cmp_lg_u32 s3, 5"); a("s_cbranch_scc1 L_b0")
    a("s_waitcnt vmcnt(0)")
    lab("L_b0")
    a("s_barrier")
    for s in range(8):
        a(f"ds_read_b128 {vr(Q0 + 4*s, 4)}, v{vKrd[s]}")
        a(f"v_add_u32 v{vKrd[s]}, s{sDK}, v{vKrd[s]}")
    a("s_waitcnt lgkmcnt(0)")
    a("s_branch L_body")
    lab("L_round")
    a("s_barrier")
    lab("L_body")
    if trace: a("s_memrealtime s[56:57]")
    for s in range(8): a(f"ds_read_b128 {vr(KF + 4*s, 4)}, v{vKrd[s]}")
    v_reads(0); v_reads(1)
    a(f"s_cmp_eq_u32 s{sPh}, 2"); a(f"s_cselect_b32 s{sDK}, -2, 1"); a(f"s_add_u32 s{sPh}, s{sPh}, s{sDK}")
    a(f"s_lshl_b32 s{sDK}, s{sDK}, 13")
    for s in range(8):
        a(f"s_waitcnt lgkmcnt({15-s})"); qk(s)
        a(f"v_add_u32 v{vKrd[s]}, s{sDK}, v{vKrd[s]}")
    a("s_waitcnt lgkmcnt(0)")
    pv(0, 0); pv(0, 1)
    a(f"v_add_u32 v{vVrd[0]}, s{sVb}, v{vVl[0]}"); a(f"v_add_u32 v{vVrd[1]}, s{sVb}, v{vVl[1]}")
    pv(1, 0); pv(1, 1)
    if trace:
        a(f"s_lshr_b32 s50, s{sCnt}, 1")
        a(f"v_cmp_eq_u32 vcc, s50, v{vLane}"); a("v_mov_b32 v31, s56"); a("s_nop 0"); a("v_cndmask_b32 v1, v1, v31, vcc")
    a(f"s_xor_b32 s{sVb}, s{sVb}, 4096")
    a(f"s_sub_u32 s{sCnt}, s{sCnt}, 1")
    a("s_nop 1")
    a(f"v_max3_f32 v{vT}, v{S0}, v{S0+1}, v{vM}")
    for j in range(2, 16, 2): a(f"v_max3_f32 v{vT}, v{S0+j}, v{S0+j+1}, v{vT}")
    a(f"v_mov_b32 v{vU}, v{vT}")
    a("s_nop 1")
    a(f"v_permlane32_swap_b32 v{vT}, v{vU}")
    a(f"v_max_f32 v{vM}, v{vT}, v{vU}")
    a(f"v_mul_f32 v{vT}, s{sC}, v{vM}")
    a(f"v_sub_f32 v{vAL}, v{vMC}, v{vT}")
    a(f"v_mov_b32 v{vMC}, v{vT}")
    a(f"v_exp_f32 v{vAL}, v{vAL}")
    for j in range(16): a(f"v_fma_f32 v{S0+j}, v{S0+j}, s{sC}, -v{vMC}")
    for j in range(16): a(f"v_exp_f32 v{S0+j}, v{S0+j}")
    for j in range(16): a(f"v_pk_mul_f32 {vr(O0+2*j, 2)}, {vr(O0+2*j, 2)}, {vr(vAL, 2)} op_sel_hi:[1,0]")
    for j in range(8): a(f"v_cvt_pk_bf16_f32 v{P0+j}, v{S0+2*j}, v{S0+2*j+1}")
    for j in range(4): a(f"v_pk_add_f32 {vr(S0+2*j, 2)}, {vr(S0+2*j, 2)}, {vr(S0+8+2*j, 2)}")
    for j in range(2): a(f"v_pk_add_f32 {vr(S0+2*j, 2)}, {vr(S0+2*j, 2)}, {vr(S0+4+2*j, 2)}")
    a(f"v_pk_add_f32 {vr(S0, 2)}, {vr(S0, 2)}, {vr(S0+2, 2)}")
    a(f"v_fma_f32 v{vL}, v{vL}, v{vAL}, v{S0}")
    a(f"s_cmp_lg_u32 s{sCnt}, 0")
    a(f"v_add_f32 v{vL}, v{vL}, v{S0+1}")
    a("s_cbranch_scc1 L_round")
    a(f"s_add_u32 s{sVt}, s{sLB}, 8192")
    a(f"v_mov_b32 v{vU}, v{vL}")
    a(f"v_add_u32 v{vVrd[0]}, s{sVt}, v{vVl[0]}"); a(f"v_add_u32 v{vVrd[1]}, s{sVt}, v{vVl[1]}")
    a(f"s_lshl_b32 s50, s{sW}, 8"); a(f"s_add_u32 s50, s50, {L_ML}")
    a(f"v_permlane32_swap_b32 v{vL}, v{vU}")
    a(f"v_and_b32 v{vTmp[0]}, 15, v{vR}")
    a(f"v_xor_b32 v{vTmp[0]}, v{vTmp[0]}, v{vH}")
    a(f"v_add_f32 v{vT}, v{vL}, v{vU}")
    a(f"v_mov_b32 v{vL}, v{vMC}")
    a(f"v_lshl_add_u32 v{vTmp[1]}, v{vR}, 3, s50")
    a(f"ds_write_b64 v{vTmp[1]}, {vr(vL, 2)}")
    a("s_barrier")
    v_reads(0); v_reads(1)
    a(f"v_lshlrev_b32 v{vTmp[0]}, 4, v{vTmp[0]}")
    a(f"v_lshl_add_u32 v{vTmp[0]}, v{vR}, 8, v{vTmp[0]}")
    a(f"v_add_u32 v{vKrd[0]}, s{sLB}, v{vTmp[0]}")
    for i in range(1, 8): a(f"v_xor_b32 v{vKrd[i]}, {32*i}, v{vKrd[0]}")
    a("s_waitcnt lgkmcnt(6)"); pv(0, 0); a("s_waitcnt lgkmcnt(2)"); pv(1, 0)
    pv(0, 1); a("s_waitcnt lgkmcnt(0)"); pv(1, 1)
    vq, vc8, vra, vma, voo = 32, 33, 34, 36, 37
    a(f"v_subrev_u32 v0, 64, v0")
    a(f"v_bfe_u32 v{vq}, v0, 3, 5"); a(f"v_and_b32 v{vc8}, 7, v0")
    a(f"v_lshlrev_b32 v{vra}, 1, v{vc8}"); a(f"v_and_b32 v{vma}, 15, v{vq}")
    a(f"v_xor_b32 v{vra}, v{vra}, v{vma}"); a(f"v_lshlrev_b32 v{vra}, 4, v{vra}")
    a(f"v_lshl_add_u32 v{vra}, v{vq}, 8, v{vra}"); a(f"v_xor_b32 v{vra+1}, 16, v{vra}")
    for i in range(4): a(f"ds_write_b128 v{vKrd[i]}, {vr(O0 + 4*i, 4)}")
    for i in range(4, 8): a(f"ds_write_b128 v{vKrd[i]}, {vr(O0 + 4*i, 4)}")
    a(f"v_lshlrev_b32 v{vma}, 3, v{vq}"); a(f"v_add_u32 v{vma}, {L_ML}, v{vma}")
    a(f"v_lshlrev_b32 v{voo}, 8, v{vq}"); a(f"v_lshl_add_u32 v{voo}, v{vc8}, 4, v{voo}")
    a(f"v_add_u32 v{vra+4}, {2*WB}, v{vra}"); a(f"v_add_u32 v{vra+5}, {2*WB}, v{vra+1}")
    a(f"v_add_u32 v{vra+6}, {4*WB}, v{vra}"); a(f"v_add_u32 v{vra+7}, {4*WB}, v{vra+1}")
    a("s_lshl_b32 s50, s40, 13"); a("s_add_u32 s50, s50, s49")
    a("s_mov_b32 s32, s16"); a("s_mov_b32 s33, s17"); a("s_mov_b32 s34, 0x100000"); a("s_mov_b32 s35, 0x20000")
    a("s_cmp_eq_u32 s3, 5")
    a("s_waitcnt lgkmcnt(0)")
    if not drytail: a("s_cbranch_scc1 L_hend")
    a("s_barrier")
    ML, OP = 42, 64
    for w in range(5): a(f"ds_read_b64 {vr(ML + 2*w, 2)}, v{vma} offset:{256*w}")
    for w in range(5):
        for x in range(2):
            base = vra + (0, 0, 4, 4, 6)[w] + x
            a(f"ds_read_b128 {vr(OP + 8*w + 4*x, 4)}, v{base} offset:{(0, WB, 0, WB, 0)[w]}")
    a("s_waitcnt lgkmcnt(10)")
    a(f"v_max3_f32 v52, v{ML}, v{ML+2}, v{ML+4}"); a(f"v_max3_f32 v52, v52, v{ML+6}, v{ML+8}")
    for w in range(5): a(f"v_sub_f32 v{ML+2*w}, v{ML+2*w}, v52")
    for w in range(5): a(f"v_exp_f32 v{ML+2*w}, v{ML+2*w}")
    a(f"v_mul_f32 v53, v{ML}, v{ML+1}")
    for w in range(1, 5): a(f"v_fma_f32 v53, v{ML+2*w}, v{ML+2*w+1}, v53")
    a("v_rcp_f32 v53, v53")
    a("s_nop 0")
    for w in range(5): a(f"v_mul_f32 v{ML+2*w}, v{ML+2*w}, v53")
    for w in range(5):
        a(f"s_waitcnt lgkmcnt({8 - 2*w})")
        for j in range(4):
            if w == 0: a(f"v_pk_mul_f32 {vr(54+2*j, 2)}, {vr(OP+2*j, 2)}, {vr(ML, 2)} op_sel_hi:[1,0]")
            else: a(f"v_pk_fma_f32 {vr(54+2*j, 2)}, {vr(OP+8*w+2*j, 2)}, {vr(ML+2*w, 2)}, {vr(54+2*j, 2)} op_sel_hi:[1,0,1]")
    for j in range(4): a(f"v_cvt_pk_bf16_f32 v{104+j}, v{54+2*j}, v{55+2*j}")
    a("s_cbranch_scc1 L_hend")
    a(f"buffer_store_dwordx4 v[104:107], v{voo}, {SO}, s50 offen {ofl}")
    if stamp:
        stamp_out(trace); a("s_endpgm")
    lab("L_hend")
    if stamp: stamp_out()
    lab("L_end")
    a("s_endpgm")
    check_hazards(L)
    out = HEADER + f"; @launch grid=(256,1,1) block=(384,1,1) lds={LDS}\n"
    out += '.amdgcn_target "amdgcn-amd-amdhsa--gfx950"\n.text\n' + f".globl {NAME}\n.p2align 8\n.type {NAME},@function\n{NAME}:\n"
    out += "\n".join(L) + "\n"
    out += '.section .rodata,"a"\n.p2align 6\n' + f".amdhsa_kernel {NAME}\n"
    out += f"  .amdhsa_next_free_vgpr {NV}\n  .amdhsa_next_free_sgpr {96 if st2 else 64}\n  .amdhsa_accum_offset {NV}\n"
    out += "  .amdhsa_group_segment_fixed_size 0\n  .amdhsa_kernarg_size 72\n  .amdhsa_user_sgpr_count 2\n"
    out += "  .amdhsa_user_sgpr_kernarg_segment_ptr 1\n  .amdhsa_system_sgpr_workgroup_id_x 1\n.end_amdhsa_kernel\n"
    return out

if __name__ == "__main__":
    out = sys.argv[1]
    kw = {}
    for x in sys.argv[2:]:
        k, v = x.split("=", 1)
        if v in ("True", "False"): v = v == "True"
        else:
            try: v = int(v)
            except ValueError: pass
        kw[k] = v
    open(out, "w").write(gen(**kw))
```

```python
import sys, struct, math
from hz import check_hazards
NAME = "standalone__tree_speculative_verify_tree_attention_over_candidate_token_tree__sampling_kernel"
HEADER = open("standalone__tree_speculative_verify_tree_attention_over_candidate_token_tree__sampling.s.ref").read().split("; Override launch")[0]

def f32(x): return "0x%08x" % struct.unpack("<I", struct.pack("<f", x))[0]

def gen(INFL=30, PAR=0.5, jbits="16,12,13,14,11", INFLB=None, stamp=False, kfl="nt", vfl="nt", trace=False, warm=True, prio=3, st2=False, k0fl=None, drytail=True, ofl="", cal=0, st3=False, noload=False):
    L = []
    def a(s): L.append("    " + s)
    def lab(s): L.append(s + ":")
    NR = 64
    WB = 32768
    VO = 24576
    L_H = 4 * WB
    L_Q = L_H + 12288
    L_ML = L_Q + 8192
    LDS = L_ML + 2048
    vKoff = [2, 3, 4, 5]; vVoff = [6, 7, 8, 9]
    vKrd = list(range(10, 18)); vVrd = [18, 19]
    vM, vMC, vL, vT, vU = 20, 21, 22, 23, 26
    vAL = 24
    vLane, vH, vR = 27, 28, 29
    vTmp = [30, 31]
    vVl = [2, 3]
    Q0, KF, VF, S0, P0, O0, B0 = 32, 64, 96, 112, 128, 136, 168
    vMa = [184, 185, 186, 187, 188]; vWa = [189, 190, 191, 192]; vRa = [193, 194]; voo = 195
    NV = 196
    def vr(b, n): return f"v[{b}:{b+n-1}]"
    sK, sT, sV, sLB, sC, sCnt, sKb, sVb, sDK, sVt, sPh, sW = 42, 43, 44, 45, 46, 47, 60, 61, 62, 63, 51, 59
    SK, SV, SQ, SO, SM = "s[20:23]", "s[24:27]", "s[28:31]", "s[32:35]", "s[36:39]"
    c = (128 ** -0.5) * math.log2(math.e)
    if k0fl is None: k0fl = kfl
    jb = [int(x) for x in str(jbits).split(",")]
    def B(j): return sum(((j >> i) & 1) << b for i, b in enumerate(jb))
    maskR = sum(1 << b for b in range(10, 21) if b not in jb)

    def stamp_out(tr=False):
        a("s_waitcnt vmcnt(0)")
        a("s_memrealtime s[56:57]")
        a("s_getreg_b32 s58, hwreg(HW_REG_XCC_ID)")
        a("s_waitcnt lgkmcnt(0)")
        if tr:
            a("v_writelane_b32 v1, s56, 0"); a("v_writelane_b32 v1, s54, 32")
            a("s_lshl_b32 s50, s2, 2"); a(f"s_add_u32 s50, s50, s{sW}"); a("s_lshl_b32 s50, s50, 8"); a("s_add_u32 s50, s50, 0x200000")
            a(f"v_lshl_add_u32 v4, v{vLane}, 2, s50")
            a("global_store_dword v4, v1, s[52:53]")
        a("v_mov_b32 v0, s54"); a("v_mov_b32 v1, s56"); a("v_mov_b32 v2, s58");  a("v_mov_b32 v3, 0")
        a("s_mul_i32 s50, s2, 6"); a("s_add_u32 s50, s50, s3"); a("s_lshl_b32 s50, s50, 4")
        a("v_mov_b32 v4, s50")
        a("s_mov_b64 exec, 1")
        a("global_store_dwordx4 v4, v[0:3], s[52:53]")

    def v_dma_offsets(perm):
        a(f"v_bfe_u32 v{vTmp[0]}, v{vLane}, 3, 2")
        a(f"v_lshlrev_b32 v{vTmp[0]}, 8, v{vTmp[0]}")
        a(f"v_lshrrev_b32 v{vTmp[1]}, 5, v{vLane}")
        a(f"v_lshl_add_u32 v{vTmp[0]}, v{vTmp[1]}, {jb[0] if perm else 10}, v{vTmp[0]}")
        a(f"v_and_b32 v{vTmp[1]}, 0x70, v1")
        a(f"v_or_b32 v{vTmp[0]}, v{vTmp[0]}, v{vTmp[1]}")
        a(f"v_lshlrev_b32 v{vTmp[1]}, 2, v{vLane}")
        a(f"v_and_b32 v{vTmp[1]}, 64, v{vTmp[1]}")
        a(f"v_xor_b32 v{vTmp[0]}, v{vTmp[0]}, v{vTmp[1]}")
        a(f"v_add_u32 v{vVoff[0]}, s49, v{vTmp[0]}")
        for j in range(1, 4):
            d = (B(2*j) if perm else 2048*j) - 1024*j
            assert d >= 0
            a(f"v_add_u32 v{vVoff[j]}, {d}, v{vVoff[0]}")

    a("s_load_dwordx16 s[4:19], s[0:1], 0")
    if stamp:
        a("s_load_dwordx2 s[52:53], s[0:1], 64"); a("s_memrealtime s[54:55]")
    if cal: a("s_memrealtime s[54:55]")
    a("s_cmp_ge_u32 s2, 256"); a("s_cbranch_scc1 L_end")
    a("v_lshrrev_b32 v1, 6, v0")
    a(f"v_and_b32 v{vLane}, 63, v0")
    a("v_readfirstlane_b32 s3, v1")
    a("s_lshr_b32 s40, s2, 4"); a("s_lshl_b32 s40, s40, 3"); a("s_and_b32 s41, s2, 7"); a("s_or_b32 s40, s40, s41")
    a("s_bfe_u32 s41, s2, 0x10003")
    a("s_lshl_b32 s48, s40, 21")
    a("s_lshl_b32 s49, s41, 7")
    a("s_mov_b32 s22, 0x200000"); a("s_mov_b32 s23, 0x20000")
    a("s_mov_b32 s26, 0x200000"); a("s_mov_b32 s27, 0x20000")
    a(f"v_lshlrev_b32 v1, 4, v{vLane}")
    a(f"v_and_b32 v{vTmp[0]}, 0x30, v{vLane}")
    a(f"v_xor_b32 v{vKoff[0]}, v1, v{vTmp[0]}")
    for j in range(1, 4): a(f"v_xor_b32 v{vKoff[j]}, {64*j}, v{vKoff[0]}")
    a("s_cmp_lg_u32 s3, 0")
    a("s_cbranch_scc1 L_notload")
    if prio: a(f"s_setprio {prio}")
    a(f"s_mov_b32 s{sK}, 0"); a(f"s_mov_b32 s{sV}, 0"); a(f"s_mov_b32 s{sKb}, 0"); a(f"s_mov_b32 s{sVb}, {VO}")
    for j in range(1, 4):
        assert B(j) >= 1024*j
        if B(j) != 1024*j: a(f"v_add_u32 v{vKoff[j]}, {B(j) - 1024*j}, v{vKoff[j]}")
    a("s_waitcnt lgkmcnt(0)")
    a("s_add_u32 s20, s6, s48"); a("s_addc_u32 s21, s7, 0")
    if st2: a("s_memrealtime s[64:65]")
    def vm(x, n):
        lo = int(x); fr = x - lo
        return lo + (1 if n < fr * 48 else 0) - 1
    def emit(groups, x, first_wait, bar_at, sb=None, sa=None, fl=None):
        n = 0
        for kind, w, hf in groups:
            if kind == "K":
                a(f"s_add_u32 m0, s{sKb}, {w*WB + hf*4096}"); a(f"s_add_u32 s{sT}, s{sK}, {B(8*w + 4*hf)}")
            else:
                a(f"s_add_u32 m0, s{sVb}, {w*WB}"); a(f"s_add_u32 s{sT}, s{sV}, {B(8*w)}")
            for j in range(4):
                if n >= first_wait: a(f"s_waitcnt vmcnt({vm(x, n)})")
                if noload: pass
                elif kind == "K": a(f"buffer_load_dwordx4 v{vKoff[j]}, {SK}, s{sT} offen offset:{j*1024} {fl if fl is not None else kfl} lds")
                else: a(f"buffer_load_dwordx4 v{vVoff[j]}, {SV}, s{sT} offen offset:{j*1024} {vfl} lds")
                if n == bar_at:
                    assert vm(x, n) <= n < 32
                    if sb: a(f"s_memrealtime {sb}")
                    a("s_barrier")
                    if sa: a(f"s_memrealtime {sa}")
                n += 1
    def barpos(x):
        return min(n for n in range(48) if vm(x, n) <= n)
    def rot():
        a(f"s_mov_b32 s{sV}, s{sK}")
        a(f"s_or_b32 s{sK}, s{sK}, {(~maskR) & 0xffffffff:#x}"); a(f"s_add_u32 s{sK}, s{sK}, 1"); a(f"s_and_b32 s{sK}, s{sK}, {maskR:#x}")
        a(f"s_add_u32 s{sKb}, s{sKb}, 8192")
        a(f"s_cmp_eq_u32 s{sKb}, 24576"); a(f"s_cselect_b32 s{sKb}, 0, s{sKb}")
    KG = [("K", w, hf) for w in range(4) for hf in range(2)]
    VG = [("V", w, 0) for w in range(4)]
    RG = KG + VG
    xo, xe = float(INFL), float(INFL) + float(PAR)
    emit(KG[:7], xo, 99, -1, fl=k0fl)
    if st2: a("s_memrealtime s[66:67]")
    a("s_add_u32 s24, s8, s48"); a("s_addc_u32 s25, s9, 0")
    v_dma_offsets(True)
    if st2: a("s_waitcnt vmcnt(27)"); a("s_memrealtime s[68:69]")
    emit(KG[7:], int(xo), int(xo) - 28, -1, fl=k0fl); rot()
    if st2:
        for it in range(3):
            emit(RG, xo, 0, barpos(xo), f"s[{70+4*it}:{71+4*it}]", f"s[{72+4*it}:{73+4*it}]"); rot(); a(f"s_xor_b32 s{sVb}, s{sVb}, 4096")
    a(f"s_mov_b32 s{sCnt}, {NR - 1 - (3 if st2 else 0)}")
    def loop(x, sfx):
        lab("L_ld" + sfx)
        emit(RG, x, 0, barpos(x)); rot(); a(f"s_xor_b32 s{sVb}, s{sVb}, 4096")
        a(f"s_sub_u32 s{sCnt}, s{sCnt}, 1"); a(f"s_cmp_lg_u32 s{sCnt}, 0"); a(f"s_cbranch_scc1 L_ld{sfx}")
    if xe != xo:
        a("s_getreg_b32 s50, hwreg(HW_REG_XCC_ID)"); a("s_bitcmp1_b32 s50, 0"); a("s_cbranch_scc1 L_ldO")
        loop(xe, "E")
        a("s_branch L_ldfin")
    loop(xo, "O")
    lab("L_ldfin")
    a(f"s_mov_b32 s{sVb}, 8192")
    emit(VG, 32, 0, -1)
    a("s_waitcnt vmcnt(16)"); a("s_barrier")
    a("s_waitcnt vmcnt(0)")
    if st2: a("s_memrealtime s[82:83]")
    a("s_barrier")
    if st2:
        a("s_memrealtime s[84:85]")
        a("s_waitcnt lgkmcnt(0)")
        a("v_writelane_b32 v1, s54, 0")
        for i in range(11): a(f"v_writelane_b32 v1, s{64+2*i}, {i+1}")
        a("s_lshl_b32 s50, s2, 10"); a("s_add_u32 s50, s50, 0x200000")
        a(f"v_lshl_add_u32 v4, v{vLane}, 2, s50")
        a("global_store_dword v4, v1, s[52:53]")
    if stamp: stamp_out()
    a("s_endpgm")

    def qk(s):
        cc = vr(B0, 16) if s == 0 else vr(S0, 16)
        a(f"v_mfma_f32_32x32x16_bf16 {vr(S0, 16)}, {vr(KF + 4*s, 4)}, {vr(Q0 + 4*s, 4)}, {cc}")
    def v_reads(u):
        for e in range(2):
            for z in range(2):
                a(f"ds_read_b64_tr_b16 {vr(VF + 8*u + 4*e + 2*z, 2)}, v{vVrd[e]} offset:{2048*u + 1024*z}")
    def pv(u, e):
        a(f"v_mfma_f32_32x32x16_bf16 {vr(O0 + 16*e, 16)}, {vr(VF + 8*u + 4*e, 4)}, {vr(P0 + 4*u, 4)}, {vr(O0 + 16*e, 16)}")

    lab("L_notload")
    a(f"v_lshrrev_b32 v{vH}, 5, v{vLane}")
    a(f"v_and_b32 v{vR}, 31, v{vLane}")
    a(f"s_sub_u32 s{sW}, s3, 1")
    a(f"s_lshl_b32 s{sLB}, s{sW}, 15")
    a(f"s_mov_b32 s{sCnt}, {NR}")
    for j in range(16): a(f"v_mov_b32 v{B0+j}, 0")
    a("s_cmp_lg_u32 s3, 5")
    a("s_waitcnt lgkmcnt(0)")
    a("s_cbranch_scc1 L_cons")
    a("s_lshl_b32 s50, s40, 13")
    a("s_add_u32 s28, s4, s50"); a("s_addc_u32 s29, s5, 0"); a("s_mov_b32 s30, 8192"); a("s_mov_b32 s31, 0x20000")
    a(f"s_mov_b32 m0, {L_Q}"); a("s_movk_i32 s51, 4096")
    for j in range(4): a(f"buffer_load_dwordx4 v{vKoff[j]}, {SQ}, 0 offen offset:{j*1024} lds")
    a(f"s_mov_b32 m0, {L_Q + 4096}"); a("s_lshl_b32 s48, s40, 12")
    for j in range(4): a(f"buffer_load_dwordx4 v{vKoff[j]}, {SQ}, s51 offen offset:{j*1024} lds")
    a("s_add_u32 s20, s10, s48"); a("s_addc_u32 s21, s11, 0"); a("s_mov_b32 s22, 4096")
    a(f"s_mov_b32 m0, {L_H}")
    a("s_add_u32 s24, s12, s48"); a("s_addc_u32 s25, s13, 0"); a("s_mov_b32 s26, 4096")
    for j in range(4): a(f"buffer_load_dwordx4 v{vKoff[j]}, {SK}, 0 offen offset:{j*1024} lds")
    v_dma_offsets(False)
    a(f"s_mov_b32 m0, {L_H + 8192}")
    a("s_lshr_b32 s50, s40, 4"); a("s_lshl_b32 s50, s50, 9")
    a("s_add_u32 s36, s14, s50"); a("s_addc_u32 s37, s15, 0"); a("s_mov_b32 s38, 512"); a("s_mov_b32 s39, 0x20000")
    for j in range(4): a(f"buffer_load_dwordx4 v{vVoff[j]}, {SV}, 0 offen offset:{j*1024} lds")
    a(f"v_and_b32 v{vU}, 15, v{vR}"); a(f"v_lshlrev_b32 v{vU}, 5, v{vU}"); a(f"v_lshl_add_u32 v{vU}, v{vH}, 3, v{vU}")
    a(f"s_mov_b32 m0, {L_H + 4096}")
    a(f"buffer_load_dwordx2 {vr(S0, 2)}, v{vU}, {SM}, 0 offen")
    a(f"buffer_load_dwordx2 {vr(S0+2, 2)}, v{vU}, {SM}, 0 offen offset:16")
    for j in range(4): a(f"buffer_load_dwordx4 v{vKoff[j]}, {SK}, s51 offen offset:{j*1024} lds")
    big = 1e9 * math.sqrt(128)
    a(f"s_mov_b32 s51, {f32(big)}")
    a(f"v_mov_b32 v{vU}, {f32(-big)}")
    for j in range(8, 16): a(f"v_mov_b32 v{B0+j}, 0xff800000")
    a(f"s_mov_b32 s{sCnt}, 1")
    a("s_waitcnt vmcnt(4)")
    for j in range(4):
        a(f"v_lshlrev_b32 v{B0+2*j}, 16, v{S0+j}"); a(f"v_and_b32 v{B0+2*j+1}, 0xffff0000, v{S0+j}")
    for j in range(8): a(f"v_fma_f32 v{B0+j}, v{B0+j}, s51, v{vU}")
    a("s_branch L_common")
    lab("L_cons")
    if warm:
        a("s_cmp_lg_u32 s3, 1"); a("s_cbranch_scc1 L_common")
        a("s_add_u32 s24, s8, s48"); a("s_addc_u32 s25, s9, 0")
        a(f"v_mov_b32 v{vT}, s49")
        a(f"buffer_load_dword v5, v{vT}, {SV}, 0 offen {vfl}")
    lab("L_common")
    a(f"s_mov_b32 s{sC}, {f32(c)}")
    a(f"v_mov_b32 v{vL}, 0"); a(f"v_mov_b32 v{vM}, {f32(-3.0e38)}"); a(f"v_mov_b32 v{vMC}, {f32(-3.0e38)}")
    a(f"v_and_b32 v{vTmp[1]}, 15, v{vR}")
    a(f"v_xor_b32 v{vTmp[1]}, v{vTmp[1]}, v{vH}")
    a(f"v_lshlrev_b32 v{vTmp[1]}, 4, v{vTmp[1]}")
    a(f"v_lshl_add_u32 v{vTmp[1]}, v{vR}, 8, v{vTmp[1]}")
    a(f"v_add_u32 v{vKrd[0]}, {L_Q}, v{vTmp[1]}")
    for s in range(1, 8): a(f"v_xor_b32 v{vKrd[s]}, {32*s}, v{vKrd[0]}")
    a(f"v_bfe_u32 v{vT}, v{vLane}, 2, 2")
    a(f"v_lshl_add_u32 v{vTmp[1]}, v{vH}, 2, v{vT}")
    a(f"v_lshlrev_b32 v{vVl[0]}, 7, v{vTmp[1]}")
    a(f"v_and_b32 v{vTmp[1]}, 3, v{vLane}")
    a(f"v_lshl_add_u32 v{vVl[0]}, v{vTmp[1]}, 3, v{vVl[0]}")
    a(f"v_and_b32 v{vTmp[1]}, 16, v{vLane}")
    a(f"v_lshl_add_u32 v{vVl[0]}, v{vTmp[1]}, 1, v{vVl[0]}")
    a(f"v_and_b32 v{vT}, 2, v{vT}")
    a(f"v_lshl_add_u32 v{vVl[0]}, v{vT}, 5, v{vVl[0]}")
    a(f"s_and_b32 s50, s{sW}, 3"); a("s_lshl_b32 s50, s50, 5")
    a(f"v_xor_b32 v{vVl[0]}, s50, v{vVl[0]}")
    a(f"v_xor_b32 v{vVl[1]}, 64, v{vVl[0]}")
    a(f"v_mov_b32 v{vAL}, 1.0")
    a(f"v_add_u32 v{vVrd[0]}, {L_Q}, v{vVl[0]}"); a(f"v_add_u32 v{vVrd[1]}, {L_Q}, v{vVl[1]}")
    for j in range(32): a(f"v_mov_b32 v{O0+j}, 0")
    for j in range(8): a(f"v_mov_b32 v{P0+j}, 0")
    a(f"s_add_u32 s{sVt}, s{sLB}, 8192")
    a(f"s_lshl_b32 s50, s{sW}, 8"); a(f"s_add_u32 s50, s50, {L_ML}")
    a(f"v_lshl_add_u32 v{vMa[0]}, v{vR}, 3, s50")
    for k in range(1, 4): a(f"v_xor_b32 v{vMa[k]}, {256*k}, v{vMa[0]}")
    a(f"v_lshlrev_b32 v{vMa[4]}, 3, v{vR}"); a(f"v_add_u32 v{vMa[4]}, {L_ML + 1024}, v{vMa[4]}")
    a(f"v_lshl_add_u32 v{vRa[0]}, v{vLane}, 4, s{sLB}")
    a(f"s_and_b32 s50, s{sW}, 3"); a("s_lshl_b32 s51, s50, 11"); a(f"s_add_u32 s51, s51, {L_H}")
    a(f"v_lshl_add_u32 v{vRa[1]}, v{vLane}, 4, s51")
    a("s_cmp_eq_u32 s3, 5"); a(f"s_cselect_b32 s51, 0, {WB}"); a("s_add_u32 s51, s51, 2048")
    a(f"v_mov_b32 v{vWa[0]}, v{vRa[0]}")
    a(f"v_xor_b32 v{vWa[1]}, s51, v{vWa[0]}"); a("s_lshl_b32 s51, s51, 1")
    a(f"v_xor_b32 v{vWa[2]}, s51, v{vWa[0]}"); a(f"v_xor_b32 v{vWa[3]}, s51, v{vWa[1]}")
    a(f"v_lshlrev_b32 v{voo}, 8, v{vR}"); a(f"v_lshl_add_u32 v{voo}, v{vH}, 4, v{voo}")
    a("s_lshl_b32 s50, s50, 5"); a("s_add_u32 s49, s49, s50"); a("s_lshl_b32 s50, s40, 13"); a("s_add_u32 s49, s49, s50")
    a("s_mov_b32 s32, s16"); a("s_mov_b32 s33, s17"); a("s_mov_b32 s34, 0x100000"); a("s_mov_b32 s35, 0x20000")
    a(f"s_add_u32 s{sVb}, s{sLB}, {VO}")
    a(f"s_sub_u32 s{sDK}, s{sLB}, {L_Q}")
    a(f"s_mov_b32 s{sPh}, 0")
    a("s_cmp_lg_u32 s3, 5"); a("s_cbranch_scc1 L_b0")
    a("s_waitcnt vmcnt(0)")
    lab("L_b0")
    a("s_barrier")
    for s in range(8):
        a(f"ds_read_b128 {vr(Q0 + 4*s, 4)}, v{vKrd[s]}")
        a(f"v_add_u32 v{vKrd[s]}, s{sDK}, v{vKrd[s]}")
    a("s_waitcnt lgkmcnt(0)")
    a("s_branch L_body")
    lab("L_round")
    a("s_barrier")
    lab("L_body")
    if trace: a("s_memrealtime s[56:57]")
    if st3: a("s_memtime s[64:65]")
    for s in range(8): a(f"ds_read_b128 {vr(KF + 4*s, 4)}, v{vKrd[s]}")
    v_reads(0); v_reads(1)
    a(f"s_cmp_eq_u32 s{sPh}, 2"); a(f"s_cselect_b32 s{sDK}, -2, 1"); a(f"s_add_u32 s{sPh}, s{sPh}, s{sDK}")
    a(f"s_lshl_b32 s{sDK}, s{sDK}, 13")
    def resc(j0, j1):
        for j in range(j0, j1): a(f"v_mul_f32 v{O0+j}, v{vAL}, v{O0+j}")
    for s in range(8):
        a(f"s_waitcnt lgkmcnt({15-s})"); qk(s)
        a(f"v_add_u32 v{vKrd[s]}, s{sDK}, v{vKrd[s]}")
        resc(4*s, 4*s + 4)
    a(f"v_add_u32 v{vVrd[0]}, s{sVb}, v{vVl[0]}")
    a("s_waitcnt lgkmcnt(0)")
    pv(0, 0)
    a(f"v_add_u32 v{vVrd[1]}, s{sVb}, v{vVl[1]}")
    if trace:
        a(f"s_lshr_b32 s50, s{sCnt}, 1")
        a(f"v_cmp_eq_u32 vcc, s50, v{vLane}"); a("v_mov_b32 v31, s56"); a("s_nop 0"); a("v_cndmask_b32 v1, v1, v31, vcc")
    a(f"s_xor_b32 s{sVb}, s{sVb}, 4096")
    a(f"s_sub_u32 s{sCnt}, s{sCnt}, 1")
    pv(0, 1)
    a(f"v_max3_f32 v{vT}, v{S0}, v{S0+1}, v{vM}")
    for j in range(2, 12, 2): a(f"v_max3_f32 v{vT}, v{S0+j}, v{S0+j+1}, v{vT}")
    pv(1, 0)
    for j in range(12, 16, 2): a(f"v_max3_f32 v{vT}, v{S0+j}, v{S0+j+1}, v{vT}")
    a(f"v_mov_b32 v{vU}, v{vT}")
    a("s_nop 1")
    a(f"v_permlane32_swap_b32 v{vT}, v{vU}")
    a(f"v_max_f32 v{vM}, v{vT}, v{vU}")
    pv(1, 1)
    a(f"v_mul_f32 v{vT}, s{sC}, v{vM}")
    a(f"v_sub_f32 v{vAL}, v{vMC}, v{vT}")
    a(f"v_mov_b32 v{vMC}, v{vT}")
    a(f"v_exp_f32 v{vAL}, v{vAL}")
    for j in range(16): a(f"v_fma_f32 v{S0+j}, v{S0+j}, s{sC}, -v{vMC}")
    for j in range(16): a(f"v_exp_f32 v{S0+j}, v{S0+j}")
    for j in range(8): a(f"v_cvt_pk_bf16_f32 v{P0+j}, v{S0+2*j}, v{S0+2*j+1}")
    for j in range(4): a(f"v_pk_add_f32 {vr(S0+2*j, 2)}, {vr(S0+2*j, 2)}, {vr(S0+8+2*j, 2)}")
    for j in range(2): a(f"v_pk_add_f32 {vr(S0+2*j, 2)}, {vr(S0+2*j, 2)}, {vr(S0+4+2*j, 2)}")
    a(f"v_pk_add_f32 {vr(S0, 2)}, {vr(S0, 2)}, {vr(S0+2, 2)}")
    a(f"v_fma_f32 v{vL}, v{vL}, v{vAL}, v{S0}")
    a(f"s_cmp_lg_u32 s{sCnt}, 0")
    a(f"v_add_f32 v{vL}, v{vL}, v{S0+1}")
    a("s_cbranch_scc1 L_round")
    a(f"v_mov_b32 v{vU}, v{vL}")
    a(f"v_add_u32 v{vVrd[0]}, s{sVt}, v{vVl[0]}"); a(f"v_add_u32 v{vVrd[1]}, s{sVt}, v{vVl[1]}")
    a(f"v_permlane32_swap_b32 v{vL}, v{vU}")
    a(f"v_add_f32 v{vT}, v{vL}, v{vU}")
    a(f"v_mov_b32 v{vL}, v{vMC}")
    a(f"ds_write_b64 v{vMa[0]}, {vr(vL, 2)}")
    a("s_cmp_eq_u32 s3, 5")
    a("s_waitcnt lgkmcnt(0)")
    if st3: a("s_memtime s[66:67]")
    a("s_barrier")
    if st3: a("s_memtime s[68:69]")
    ML, OP, AC = 42, 64, 54
    for u in range(2):
        for z in range(2):
            a(f"ds_read_b64_tr_b16 {vr(VF + 8*u + 4 + 2*z, 2)}, v{vVrd[1]} offset:{2048*u + 1024*z}")
    for u in range(2):
        for z in range(2):
            a(f"ds_read_b64_tr_b16 {vr(VF + 8*u + 2*z, 2)}, v{vVrd[0]} offset:{2048*u + 1024*z}")
    for k in range(5): a(f"ds_read_b64 {vr(ML + 2*k, 2)}, v{vMa[k]}")
    for x in range(2): a(f"ds_read_b128 {vr(OP + 4*x, 4)}, v{vRa[1]} offset:{1024*x}")
    for j in list(range(8, 16)) + list(range(8)):
        a(f"v_pk_mul_f32 {vr(O0+2*j, 2)}, {vr(O0+2*j, 2)}, {vr(vAL, 2)} op_sel_hi:[1,0]")
    a("s_waitcnt lgkmcnt(11)"); pv(0, 1); pv(1, 1)
    a("s_waitcnt lgkmcnt(0)"); pv(0, 0)
    a(f"v_max3_f32 v52, v{ML}, v{ML+2}, v{ML+4}"); a(f"v_max3_f32 v52, v52, v{ML+6}, v{ML+8}")
    for w in range(4): a(f"v_sub_f32 v{ML+2*w}, v{ML+2*w}, v52")
    pv(1, 0)
    a(f"v_sub_f32 v{ML+8}, v{ML+8}, v52")
    for w in range(3): a(f"v_exp_f32 v{ML+2*w}, v{ML+2*w}")
    for i in range(4, 8): a(f"ds_write_b128 v{vWa[i >> 1]}, {vr(O0 + 4*i, 4)} offset:{1024 * (i & 1)}")
    for w in range(3, 5): a(f"v_exp_f32 v{ML+2*w}, v{ML+2*w}")
    a(f"v_mul_f32 v53, v{ML}, v{ML+1}")
    a(f"v_fma_f32 v53, v{ML+2}, v{ML+3}, v53")
    for i in range(2, 4): a(f"ds_write_b128 v{vWa[i >> 1]}, {vr(O0 + 4*i, 4)} offset:{1024 * (i & 1)}")
    a("s_cbranch_scc0 L_own")
    for i in range(0, 2): a(f"ds_write_b128 v{vWa[i >> 1]}, {vr(O0 + 4*i, 4)} offset:{1024 * (i & 1)}")
    lab("L_own")
    for w in range(2, 5): a(f"v_fma_f32 v53, v{ML+2*w}, v{ML+2*w+1}, v53")
    a("v_rcp_f32 v53, v53")
    a("s_nop 0")
    for w in range(5): a(f"v_mul_f32 v{ML+2*w}, v{ML+2*w}, v53")
    for j in range(4): a(f"v_pk_mul_f32 {vr(AC+2*j, 2)}, {vr(O0+2*j, 2)}, {vr(ML, 2)} op_sel_hi:[1,0]")
    for j in range(4): a(f"v_pk_fma_f32 {vr(AC+2*j, 2)}, {vr(OP+2*j, 2)}, {vr(ML+8, 2)}, {vr(AC+2*j, 2)} op_sel_hi:[1,0,1]")
    a("s_waitcnt lgkmcnt(0)")
    if not drytail: a("s_cbranch_scc1 L_hend")
    if st3: a("s_memtime s[70:71]")
    a("s_barrier")
    if st3: a("s_memtime s[72:73]")
    for k in range(1, 4):
        for x in range(2):
            a(f"ds_read_b128 {vr(OP + 8*k + 4*x, 4)}, v{vRa[0]} offset:{2048*k + 1024*x}")
    for k in range(1, 4):
        a(f"s_waitcnt lgkmcnt({6 - 2*k})")
        for j in range(4):
            a(f"v_pk_fma_f32 {vr(AC+2*j, 2)}, {vr(OP+8*k+2*j, 2)}, {vr(ML+2*k, 2)}, {vr(AC+2*j, 2)} op_sel_hi:[1,0,1]")
    for j in (0, 2, 1, 3): a(f"v_cvt_pk_bf16_f32 v{104+j}, v{AC+2*j}, v{AC+1+2*j}")
    a("v_permlane32_swap_b32 v104, v106")
    a("s_nop 0")
    a("v_permlane32_swap_b32 v105, v107")
    a("s_cbranch_scc1 L_hend")
    a(f"buffer_store_dwordx4 v[104:107], v{voo}, {SO}, s49 offen {ofl}")
    if st3:
        a("s_memtime s[74:75]"); a("s_waitcnt vmcnt(0)"); a("s_memtime s[76:77]"); a("s_waitcnt lgkmcnt(0)")
        for i in range(7): a(f"v_writelane_b32 v1, s{64+2*i}, {i}")
        a("s_lshl_b32 s50, s2, 2"); a(f"s_add_u32 s50, s50, s{sW}"); a("s_lshl_b32 s50, s50, 8"); a("s_add_u32 s50, s50, 0x200000")
        a(f"v_lshl_add_u32 v4, v{vLane}, 2, s50")
        a("global_store_dword v4, v1, s[52:53]")
    if cal:
        lab("L_cal")
        a("s_memrealtime s[56:57]")
        a("s_waitcnt lgkmcnt(0)")
        a("s_sub_u32 s56, s56, s54")
        a(f"s_cmp_lt_u32 s56, {cal}")
        a("s_cbranch_scc1 L_cal")
    if stamp:
        stamp_out(trace); a("s_endpgm")
    lab("L_hend")
    if stamp: stamp_out()
    lab("L_end")
    a("s_endpgm")
    check_hazards(L)
    out = HEADER + f"; @launch grid=(256,1,1) block=(384,1,1) lds={LDS}\n"
    out += '.amdgcn_target "amdgcn-amd-amdhsa--gfx950"\n.text\n' + f".globl {NAME}\n.p2align 8\n.type {NAME},@function\n{NAME}:\n"
    out += "\n".join(L) + "\n"
    out += '.section .rodata,"a"\n.p2align 6\n' + f".amdhsa_kernel {NAME}\n"
    out += f"  .amdhsa_next_free_vgpr {NV}\n  .amdhsa_next_free_sgpr {96 if (st2 or st3) else 64}\n  .amdhsa_accum_offset {NV}\n"
    out += "  .amdhsa_group_segment_fixed_size 0\n  .amdhsa_kernarg_size 72\n  .amdhsa_user_sgpr_count 2\n"
    out += "  .amdhsa_user_sgpr_kernarg_segment_ptr 1\n  .amdhsa_system_sgpr_workgroup_id_x 1\n.end_amdhsa_kernel\n"
    return out

if __name__ == "__main__":
    out = sys.argv[1]
    kw = {}
    for x in sys.argv[2:]:
        k, v = x.split("=", 1)
        if v in ("True", "False"): v = v == "True"
        else:
            try: v = int(v)
            except ValueError: pass
        kw[k] = v
    open(out, "w").write(gen(**kw))
```

```python
import sys, struct, math
from hz import check_hazards
NAME = "standalone__tree_speculative_verify_tree_attention_over_candidate_token_tree__sampling_kernel"
HEADER = open("standalone__tree_speculative_verify_tree_attention_over_candidate_token_tree__sampling.s.ref").read().split("; Override launch")[0]

def f32(x): return "0x%08x" % struct.unpack("<I", struct.pack("<f", x))[0]

def gen(INFL=29, PAR=0.5, jbits="12,16,13,14,11", order="d", LINFL=32, stamp=False, kfl="nt", vfl="nt", qfl="", trace=False, prio=3,
        drytail=True, ofl="", cal=0, st3=False, st4=False, st5=0, noload=False, pre=20):
    L = []
    def a(s): L.append("    " + s)
    def lab(s): L.append(s + ":")
    def cm(s): L.append("    ; " + s)
    NR = 64
    WB = 36864
    VO = 24576
    L_H = 4 * WB
    L_Q = VO + 4096
    L_ML = L_H + 12288
    LDS = L_ML + 2048
    vKoff = [2, 3, 4, 5]; vVoff = [6, 7, 8, 9]
    vKrd = list(range(10, 18)); vVrd = [18, 19]
    vM, vMC, vL, vT, vU = 20, 21, 22, 23, 26
    vAL = 24
    vLane, vH, vR = 27, 28, 29
    vTmp = [30, 31]
    Q0, KF, VF, S0, P0, O0, B0 = 32, 64, 96, 112, 128, 136, 168
    vMa = [184, 185, 186, 187, 188]; vWa = [189, 190, 191, 192]; vRa = [193, 194]; voo = 195
    NV = 196
    def vr(b, n): return f"v[{b}:{b+n-1}]"
    sV = 48
    sPair, sMem, sK, sT, sLB, sC, sCnt, sKb, sVb, sDK, sDV, sPh, sW, sOo = 40, 41, 42, 43, 45, 46, 47, 60, 61, 62, 63, 44, 59, 49
    SK, SV, SQ, SO, SM = "s[20:23]", "s[24:27]", "s[28:31]", "s[32:35]", "s[36:39]"
    c = (128 ** -0.5) * math.log2(math.e)
    jb = [int(x) for x in str(jbits).split(",")]
    def B(j): return sum(((j >> i) & 1) << b for i, b in enumerate(jb))
    maskR = sum(1 << b for b in range(10, 21) if b not in jb)

    def stamp_out(tr=False):
        a("s_waitcnt vmcnt(0)")
        a("s_memrealtime s[56:57]")
        a("s_getreg_b32 s58, hwreg(HW_REG_XCC_ID)")
        a("s_waitcnt lgkmcnt(0)")
        if tr:
            a("v_writelane_b32 v1, s56, 0"); a("v_writelane_b32 v1, s54, 32")
            a("s_lshl_b32 s50, s2, 2"); a(f"s_add_u32 s50, s50, s{sW}"); a("s_lshl_b32 s50, s50, 8"); a("s_add_u32 s50, s50, 0x200000")
            a(f"v_lshl_add_u32 v4, v{vLane}, 2, s50")
            a("global_store_dword v4, v1, s[52:53]")
        a("v_mov_b32 v0, s54"); a("v_mov_b32 v1, s56"); a("v_mov_b32 v2, s58");  a("v_mov_b32 v3, s76" if st5 else "v_mov_b32 v3, 0")
        a("s_mul_i32 s50, s2, 6"); a("s_add_u32 s50, s50, s3"); a("s_lshl_b32 s50, s50, 4")
        a("v_mov_b32 v4, s50")
        a("s_mov_b64 exec, 1")
        a("global_store_dwordx4 v4, v[0:3], s[52:53]")
    def ids():
        a(f"v_and_b32 v{vLane}, 63, v0")
        a(f"s_lshr_b32 s{sPair}, s2, 4"); a(f"s_lshl_b32 s{sPair}, s{sPair}, 3"); a("s_and_b32 s50, s2, 7"); a(f"s_or_b32 s{sPair}, s{sPair}, s50")
        a(f"s_and_b32 s{sMem}, s2, 8"); a(f"s_lshl_b32 s{sMem}, s{sMem}, 4")
    def k_dma_offsets():
        cm("K-shaped DMA source offsets: row rr = lane>>4, slot p = lane&15 -> rr*256 + ((p ^ (4j+rr)) * 16)")
        a(f"v_lshlrev_b32 v1, 4, v{vLane}")
        a(f"v_and_b32 v{vTmp[0]}, 0x30, v{vLane}")
        a(f"v_xor_b32 v{vKoff[0]}, v1, v{vTmp[0]}")
        for j in range(1, 4): a(f"v_xor_b32 v{vKoff[j]}, {64*j}, v{vKoff[0]}")
    def v_dma_offsets(perm):
        cm("V DMA source offsets: rr = lane>>3, p = lane&7 -> row(rr) + half + ((p ^ 4*((rr>>1)&1))*16) + piece offset - j*1024")
        a(f"v_bfe_u32 v{vTmp[0]}, v{vLane}, 3, 2")
        a(f"v_lshlrev_b32 v{vTmp[0]}, 8, v{vTmp[0]}")
        a(f"v_lshrrev_b32 v{vTmp[1]}, 5, v{vLane}")
        a(f"v_lshl_add_u32 v{vTmp[0]}, v{vTmp[1]}, {jb[0] if perm else 10}, v{vTmp[0]}")
        a(f"v_and_b32 v{vTmp[1]}, 0x70, v1")
        a(f"v_or_b32 v{vTmp[0]}, v{vTmp[0]}, v{vTmp[1]}")
        a(f"v_lshlrev_b32 v{vTmp[1]}, 2, v{vLane}")
        a(f"v_and_b32 v{vTmp[1]}, 64, v{vTmp[1]}")
        a(f"v_xor_b32 v{vTmp[0]}, v{vTmp[0]}, v{vTmp[1]}")
        a(f"v_add_u32 v{vVoff[0]}, s{sMem}, v{vTmp[0]}")
        for j in range(1, 4):
            d = (B(2*j) if perm else 2048*j) - 1024*j
            assert d >= 0
            a(f"v_add_u32 v{vVoff[j]}, {d}, v{vVoff[0]}")

    a("s_load_dwordx16 s[4:19], s[0:1], 0")
    if stamp:
        a("s_load_dwordx2 s[52:53], s[0:1], 64"); a("s_memrealtime s[54:55]")
    if cal: a("s_memrealtime s[54:55]")
    if st5: a("s_mov_b32 s76, 0")
    a("v_readfirstlane_b32 s3, v0")
    a("s_cmp_ge_u32 s2, 256"); a("s_cbranch_scc1 L_end")
    a("s_lshr_b32 s3, s3, 6")
    a("s_cbranch_scc1 L_cons")
    cm("=============== loader wave")
    if prio: a(f"s_setprio {prio}")
    ids(); k_dma_offsets(); v_dma_offsets(True)
    a(f"s_lshl_b32 s48, s{sPair}, 21"); a(f"s_lshl_b32 s50, s{sPair}, 13")
    a("s_mov_b32 s22, 0x200000"); a("s_mov_b32 s23, 0x20000")
    a("s_mov_b32 s26, 0x200000"); a("s_mov_b32 s27, 0x20000")
    a("s_mov_b32 s30, 8192"); a("s_mov_b32 s31, 0x20000")
    a(f"s_mov_b32 s{sK}, 0"); a(f"s_mov_b32 s{sKb}, 0"); a(f"s_mov_b32 s{sVb}, 8192"); a(f"s_mov_b32 s{sCnt}, {NR}")
    a(f"s_mov_b32 m0, {L_Q}"); a("s_movk_i32 s51, 4096")
    if st4: a("s_mov_b32 s74, 0"); a("v_mov_b32 v20, 0"); a("v_mov_b32 v21, 0")
    a("s_waitcnt lgkmcnt(0)")
    if st4: a("s_memrealtime s[64:65]")
    a("s_add_u32 s28, s4, s50"); a("s_addc_u32 s29, s5, 0")
    for j in range(4): a(f"buffer_load_dwordx4 v{vKoff[j]}, {SQ}, 0 offen offset:{j*1024} {qfl} lds")
    a(f"s_mov_b32 m0, {L_Q + WB}")
    a("s_add_u32 s20, s6, s48"); a("s_addc_u32 s21, s7, 0")
    for j in range(4): a(f"buffer_load_dwordx4 v{vKoff[j]}, {SQ}, s51 offen offset:{j*1024} {qfl} lds")
    a("s_add_u32 s24, s8, s48"); a("s_addc_u32 s25, s9, 0")
    a(f"s_mov_b32 s{sV}, 0x200000")
    for j in range(1, 4):
        assert B(j) >= 1024*j
        if B(j) != 1024*j: a(f"v_add_u32 v{vKoff[j]}, {B(j) - 1024*j}, v{vKoff[j]}")
    if st4: a("s_memrealtime s[66:67]")
    def vm(x, n):
        lo = int(x); fr = x - lo
        return lo + (1 if (n % 24) < fr * 24 else 0) - 1
    def emit(groups, x):
        bar_at = min(n for n in range(48) if vm(x, n) <= n)
        if len(groups) < 12: bar_at = -1
        n = 0
        for kind, w, hf in groups:
            if kind == "K":
                a(f"s_add_u32 m0, s{sKb}, {w*WB + hf*4096}"); a(f"s_add_u32 s{sT}, s{sK}, {B(8*w + 4*hf)}")
            else:
                a(f"s_add_u32 m0, s{sVb}, {w*WB + VO}"); a(f"s_add_u32 s{sT}, s{sV}, {B(8*w)}")
            for j in range(4):
                a(f"s_waitcnt vmcnt({vm(x, n)})")
                if noload: pass
                elif kind == "K": a(f"buffer_load_dwordx4 v{vKoff[j]}, {SK}, s{sT} offen offset:{j*1024} {kfl} lds")
                else: a(f"buffer_load_dwordx4 v{vVoff[j]}, {SV}, s{sT} offen offset:{j*1024} {vfl} lds")
                if n == bar_at:
                    if st4: a("s_memrealtime s[70:71]")
                    a("s_barrier")
                    if st4: a("s_memrealtime s[72:73]")
                n += 1
    KG = [("K", w, hf) for w in range(4) for hf in range(2)]
    VG = [("V", w, 0) for w in range(4)]
    RG = {"kv": KG + VG, "d": KG[:4] + VG[:2] + KG[4:] + VG[2:], "t": [g for w in range(4) for g in KG[2*w:2*w+2] + VG[w:w+1]]}[order]
    xo, xe = float(INFL), float(INFL) + float(PAR)
    def loop(x, sfx):
        lab("L_ld" + sfx)
        emit(RG, x)
        cm("next round: the source offset counts through the address bits a round leaves fixed; buffers rotate mod 3")
        a(f"s_mov_b32 s{sV}, s{sK}"); a(f"s_lshr_b32 s{sVb}, s{sKb}, 1")
        a(f"s_or_b32 s{sK}, s{sK}, {(~maskR) & 0xffffffff:#x}"); a(f"s_add_u32 s{sK}, s{sK}, 1"); a(f"s_and_b32 s{sK}, s{sK}, {maskR:#x}")
        a(f"s_add_u32 s{sKb}, s{sKb}, 8192")
        a(f"s_cmp_eq_u32 s{sKb}, 24576"); a(f"s_cselect_b32 s{sKb}, 0, s{sKb}")
        if st4:
            a("s_waitcnt lgkmcnt(0)"); a("s_mov_b32 m0, s74"); a("s_add_u32 s74, s74, 1")
            a("v_writelane_b32 v20, s70, m0"); a("v_writelane_b32 v21, s72, m0")
        a(f"s_sub_u32 s{sCnt}, s{sCnt}, 1"); a(f"s_cmp_lg_u32 s{sCnt}, 0"); a(f"s_cbranch_scc1 L_ld{sfx}")
    if xe != xo:
        cm("even-numbered dies see a slightly longer memory latency: a little more in flight there (speed only)")
        a("s_getreg_b32 s50, hwreg(HW_REG_XCC_ID)"); a("s_bitcmp1_b32 s50, 0"); a("s_cbranch_scc1 L_ldO")
        loop(xe, "E")
        a("s_branch L_ldfin")
    loop(xo, "O")
    lab("L_ldfin")
    emit(VG, float(LINFL))
    a("s_waitcnt vmcnt(16)"); a("s_barrier")
    a("s_waitcnt vmcnt(0)"); a("s_barrier")
    if st4:
        a("v_mov_b32 v22, 0"); a("v_writelane_b32 v22, s54, 0"); a("v_writelane_b32 v22, s64, 1"); a("v_writelane_b32 v22, s66, 2")
        a("s_lshl_b32 s50, s2, 10"); a("s_add_u32 s50, s50, 0x200000")
        a(f"v_lshl_add_u32 v4, v{vLane}, 2, s50")
        a("global_store_dword v4, v20, s[52:53]"); a("global_store_dword v4, v21, s[52:53] offset:256"); a("global_store_dword v4, v22, s[52:53] offset:512")
    if stamp: stamp_out()
    a("s_endpgm")

    def qk(s):
        cc = vr(B0, 16) if s == 0 else vr(S0, 16)
        a(f"v_mfma_f32_32x32x16_bf16 {vr(S0, 16)}, {vr(KF + 4*s, 4)}, {vr(Q0 + 4*s, 4)}, {cc}")
    def v_read(u, e, z):
        a(f"ds_read_b64_tr_b16 {vr(VF + 8*u + 4*e + 2*z, 2)}, v{vVrd[e]} offset:{2048*u + 1024*z}")
    def pv(u, e):
        a(f"v_mfma_f32_32x32x16_bf16 {vr(O0 + 16*e, 16)}, {vr(VF + 8*u + 4*e, 4)}, {vr(P0 + 4*u, 4)}, {vr(O0 + 16*e, 16)}")
    def resc(e):
        for j in range(8*e, 8*e + 8): a(f"v_pk_mul_f32 {vr(O0+2*j, 2)}, {vr(O0+2*j, 2)}, {vr(vAL, 2)} op_sel_hi:[1,0]")

    L.append(".p2align 6")
    lab("L_cons")
    cm("=============== consumers and helper")
    ids()
    a(f"v_lshrrev_b32 v{vH}, 5, v{vLane}")
    a(f"v_and_b32 v{vR}, 31, v{vLane}")
    a(f"s_sub_u32 s{sW}, s3, 1")
    a(f"s_mul_i32 s{sLB}, s{sW}, {WB}")
    cm("LDS read addresses for K-shaped tiles: r*256 + ((h ^ (r&15)) ^ 2s)*16")
    a(f"v_and_b32 v{vTmp[1]}, 15, v{vR}")
    a(f"v_xor_b32 v{vTmp[1]}, v{vTmp[1]}, v{vH}")
    a(f"v_lshlrev_b32 v{vTmp[1]}, 4, v{vTmp[1]}")
    a(f"v_lshl_add_u32 v{vTmp[1]}, v{vR}, 8, v{vTmp[1]}")
    a(f"v_and_b32 v{vT}, 16, v{vLane}")
    assert WB - 4096 == 16 << 11
    a(f"v_lshl_add_u32 v{VF}, v{vT}, 11, v{vTmp[1]}")
    for s in range(1, 8): a(f"v_xor_b32 v{VF+s}, {32*s}, v{VF}")
    if st5 == 1: a("s_memrealtime s[76:77]")
    a("s_barrier")
    for s in range(8): a(f"ds_read_b128 {vr(Q0 + 4*s, 4)}, v{VF+s} offset:{L_Q}")
    a(f"v_add_u32 v{vKrd[0]}, s{sLB}, v{vTmp[1]}")
    for s in range(1, 8): a(f"v_xor_b32 v{vKrd[s]}, {32*s}, v{vKrd[0]}")
    cm("transposing V reads: row = 4h + r', chunk = 2gg + (c>>1) (^4 if r'>=2), + 8*(c&1)")
    a(f"v_bfe_u32 v{vT}, v{vLane}, 2, 2")
    a(f"v_lshl_add_u32 v{vTmp[1]}, v{vH}, 2, v{vT}")
    a(f"v_lshlrev_b32 v{vVrd[0]}, 7, v{vTmp[1]}")
    a(f"v_and_b32 v{vTmp[1]}, 3, v{vLane}")
    a(f"v_lshl_add_u32 v{vVrd[0]}, v{vTmp[1]}, 3, v{vVrd[0]}")
    a(f"v_and_b32 v{vTmp[1]}, 16, v{vLane}")
    a(f"v_lshl_add_u32 v{vVrd[0]}, v{vTmp[1]}, 1, v{vVrd[0]}")
    a(f"v_and_b32 v{vT}, 2, v{vT}")
    a(f"v_lshl_add_u32 v{vVrd[0]}, v{vT}, 5, v{vVrd[0]}")
    a(f"s_and_b32 s48, s{sW}, 3"); a("s_lshl_b32 s50, s48, 5")
    a(f"v_xor_b32 v{vVrd[0]}, s50, v{vVrd[0]}")
    a(f"s_add_u32 s{sOo}, s{sMem}, s50"); a(f"s_lshl_b32 s50, s{sPair}, 13"); a(f"s_add_u32 s{sOo}, s{sOo}, s50")
    a(f"s_add_u32 s50, s{sLB}, {VO + 8192}"); a(f"s_min_u32 s50, s50, {L_H + 8192}")
    a(f"v_add_u32 v{vVrd[0]}, s50, v{vVrd[0]}")
    a(f"v_xor_b32 v{vVrd[1]}, 64, v{vVrd[0]}")
    a(f"s_mov_b32 s{sDV}, -8192"); a(f"v_mov_b32 v{vAL}, 0")
    a(f"s_mov_b32 s{sC}, {f32(c)}"); a(f"s_mov_b32 s{sCnt}, {NR}"); a(f"s_mov_b32 s{sPh}, 0")
    a(f"v_mov_b32 v{vL}, 0"); a(f"v_mov_b32 v{vM}, {f32(-3.0e38)}"); a(f"v_mov_b32 v{vMC}, v{vM}")
    for j in range(0, 56, 2): a(f"v_mov_b64 {vr(P0+j, 2)}, 0")
    cm("addresses of the closing exchange")
    a(f"s_lshl_b32 s50, s{sW}, 8"); a(f"s_add_u32 s50, s50, {L_ML}")
    a(f"v_lshl_add_u32 v{vMa[0]}, v{vR}, 3, s50")
    for k in range(1, 4): a(f"v_xor_b32 v{vMa[k]}, {256*k}, v{vMa[0]}")
    a(f"v_lshlrev_b32 v{vMa[4]}, 3, v{vR}"); a(f"v_add_u32 v{vMa[4]}, {L_ML + 1024}, v{vMa[4]}")
    a(f"v_lshl_add_u32 v{vRa[0]}, v{vLane}, 4, s{sLB}")
    a("s_lshl_b32 s51, s48, 11"); a(f"s_add_u32 s51, s51, {L_H}")
    a(f"v_lshl_add_u32 v{vRa[1]}, v{vLane}, 4, s51")
    for k in range(1, 4):
        a(f"s_xor_b32 s51, s{sW}, {k}"); a("s_min_u32 s51, s51, 4"); a(f"s_mul_i32 s51, s51, {WB}"); a(f"s_add_u32 s51, s51, {2048*k}")
        a(f"v_lshl_add_u32 v{vWa[k]}, v{vLane}, 4, s51")
    vWa[0] = vRa[0]
    a(f"v_lshlrev_b32 v{voo}, 8, v{vR}"); a(f"v_lshl_add_u32 v{voo}, v{vH}, 4, v{voo}")
    a("s_cmp_eq_u32 s3, 5")
    a("s_waitcnt lgkmcnt(0)")
    a("s_mov_b32 s32, s16"); a("s_mov_b32 s33, s17"); a("s_mov_b32 s34, 0x100000"); a("s_mov_b32 s35, 0x20000")
    if st5 == 2: a("s_memrealtime s[76:77]")
    a("s_cbranch_scc0 L_round")
    a("s_barrier")
    a("s_branch L_tree")
    lab("L_round")
    a("s_barrier")
    lab("L_body")
    if trace: a("s_memrealtime s[56:57]")
    if st3: a("s_memtime s[64:65]")
    for s in range(8): a(f"ds_read_b128 {vr(KF + 4*s, 4)}, v{vKrd[s]}")
    a(f"s_cmp_eq_u32 s{sPh}, 2"); a(f"s_cselect_b32 s50, -2, 1"); a(f"s_add_u32 s{sPh}, s{sPh}, s50")
    a(f"s_lshl_b32 s{sDK}, s50, 13")
    a(f"s_sub_u32 s{sCnt}, s{sCnt}, 1")
    vl = [(u, e, z) for u in range(2) for e in range(2) for z in range(2)]
    for s in range(8):
        a("s_waitcnt lgkmcnt(7)"); qk(s)
        v_read(*vl[s])
        for j in range(4*s, 4*s + 4): a(f"v_mul_f32 v{O0+j}, v{vAL}, v{O0+j}")
    if trace:
        a(f"s_add_u32 s51, s{sCnt}, 1"); a(f"s_lshr_b32 s51, s51, 1")
        a(f"v_cmp_eq_u32 vcc, s51, v{vLane}"); a("v_mov_b32 v31, s56"); a("s_nop 0"); a("v_cndmask_b32 v1, v1, v31, vcc")
    a("s_waitcnt lgkmcnt(4)")
    pv(0, 0)
    for s in range(4): a(f"v_add_u32 v{vKrd[s]}, s{sDK}, v{vKrd[s]}")
    pv(0, 1)
    cm("online softmax of the 16 scores this lane holds for its query")
    a(f"v_max3_f32 v{vT}, v{S0}, v{S0+1}, v{vM}")
    a(f"v_max3_f32 v{vU}, v{S0+2}, v{S0+3}, v{S0+4}")
    a(f"v_max3_f32 v{vT}, v{S0+5}, v{S0+6}, v{vT}")
    a(f"v_max3_f32 v{vU}, v{S0+7}, v{S0+8}, v{vU}")
    a(f"v_max3_f32 v{vT}, v{S0+9}, v{S0+10}, v{vT}")
    a("s_waitcnt lgkmcnt(0)")
    pv(1, 0)
    a(f"v_max3_f32 v{vU}, v{S0+11}, v{S0+12}, v{vU}")
    a(f"v_max3_f32 v{vT}, v{S0+13}, v{S0+14}, v{vT}")
    a(f"v_max3_f32 v{vT}, v{S0+15}, v{vU}, v{vT}")
    a(f"v_mov_b32 v{vU}, v{vT}")
    a(f"v_add_u32 v{vVrd[0]}, s{sDV}, v{vVrd[0]}"); a(f"v_add_u32 v{vVrd[1]}, s{sDV}, v{vVrd[1]}")
    a(f"v_permlane32_swap_b32 v{vT}, v{vU}")
    pv(1, 1)
    a(f"v_max_f32 v{vM}, v{vT}, v{vU}")
    a(f"v_mul_f32 v{vT}, s{sC}, v{vM}")
    a(f"v_sub_f32 v{vAL}, v{vMC}, v{vT}")
    a(f"v_mov_b32 v{vMC}, v{vT}")
    a(f"v_exp_f32 v{vAL}, v{vAL}")
    for j in range(16): a(f"v_fma_f32 v{S0+j}, v{S0+j}, s{sC}, -v{vMC}")
    for j in range(16): a(f"v_exp_f32 v{S0+j}, v{S0+j}")
    for j in range(8): a(f"v_cvt_pk_bf16_f32 v{P0+j}, v{S0+2*j}, v{S0+2*j+1}")
    for j in range(4): a(f"v_pk_add_f32 {vr(S0+2*j, 2)}, {vr(S0+2*j, 2)}, {vr(S0+8+2*j, 2)}")
    for j in range(2): a(f"v_pk_add_f32 {vr(S0+2*j, 2)}, {vr(S0+2*j, 2)}, {vr(S0+4+2*j, 2)}")
    a(f"v_pk_add_f32 {vr(S0, 2)}, {vr(S0, 2)}, {vr(S0+2, 2)}")
    a(f"v_fma_f32 v{vL}, v{vL}, v{vAL}, v{S0}")
    a(f"s_cmp_eq_u32 s{sCnt}, 0")
    a(f"v_add_f32 v{vL}, v{vL}, v{S0+1}")
    a("s_cbranch_scc1 L_tail")
    for s in range(4, 8): a(f"v_add_u32 v{vKrd[s]}, s{sDK}, v{vKrd[s]}")
    a(f"s_lshl_b32 s{sDV}, s50, 12")
    a("s_branch L_round")
    lab("L_tail")
    cm("publish (m, l); last V tile; exchange accumulator quarters through LDS")
    a(f"v_mov_b32 v{vU}, v{vL}")
    a("s_cmp_eq_u32 s3, 5")
    a("s_nop 0")
    a(f"v_permlane32_swap_b32 v{vL}, v{vU}")
    a(f"v_add_f32 v{vT}, v{vL}, v{vU}")
    a(f"v_mov_b32 v{vL}, v{vMC}")
    a(f"ds_write_b64 v{vMa[0]}, {vr(vL, 2)}")
    resc(1)
    a("s_waitcnt lgkmcnt(0)")
    if st3: a("s_memtime s[66:67]")
    a("s_barrier")
    if st3: a("s_memtime s[68:69]")
    ML, OP, AC = 42, 64, 54
    for e in (1, 0):
        for u in range(2):
            for z in range(2): v_read(u, e, z)
    for k in range(5): a(f"ds_read_b64 {vr(ML + 2*k, 2)}, v{vMa[k]}")
    for x in range(2): a(f"ds_read_b128 {vr(OP + 4*x, 4)}, v{vRa[1]} offset:{1024*x}")
    a("s_waitcnt lgkmcnt(13)"); pv(0, 1)
    a("s_waitcnt lgkmcnt(11)"); pv(1, 1)
    resc(0)
    a("s_waitcnt lgkmcnt(0)")
    a(f"v_max3_f32 v52, v{ML}, v{ML+2}, v{ML+4}")
    pv(0, 0)
    a(f"v_max3_f32 v52, v52, v{ML+6}, v{ML+8}")
    for i in range(4, 6): a(f"ds_write_b128 v{vWa[i >> 1]}, {vr(O0 + 4*i, 4)} offset:{1024 * (i & 1)}")
    pv(1, 0)
    for i in range(6, 8): a(f"ds_write_b128 v{vWa[i >> 1]}, {vr(O0 + 4*i, 4)} offset:{1024 * (i & 1)}")
    for w in range(5): a(f"v_sub_f32 v{ML+2*w}, v{ML+2*w}, v52")
    for w in range(5): a(f"v_exp_f32 v{ML+2*w}, v{ML+2*w}")
    for i in range(2, 4): a(f"ds_write_b128 v{vWa[i >> 1]}, {vr(O0 + 4*i, 4)} offset:{1024 * (i & 1)}")
    a("s_cbranch_scc0 L_own")
    for i in range(0, 2): a(f"ds_write_b128 v{vWa[i >> 1]}, {vr(O0 + 4*i, 4)} offset:{1024 * (i & 1)}")
    lab("L_own")
    a(f"v_mul_f32 v53, v{ML}, v{ML+1}")
    for w in range(1, 5): a(f"v_fma_f32 v53, v{ML+2*w}, v{ML+2*w+1}, v53")
    a("v_rcp_f32 v53, v53")
    a("s_waitcnt lgkmcnt(0)")
    if not drytail: a("s_cbranch_scc1 L_hend")
    if st3: a("s_memtime s[70:71]")
    a("s_barrier")
    if st3: a("s_memtime s[72:73]")
    for k in range(1, 4):
        for x in range(2):
            a(f"ds_read_b128 {vr(OP + 8*k + 4*x, 4)}, v{vRa[0]} offset:{2048*k + 1024*x}")
    for w in range(5): a(f"v_mul_f32 v{ML+2*w}, v{ML+2*w}, v53")
    for j in range(4): a(f"v_pk_mul_f32 {vr(AC+2*j, 2)}, {vr(O0+2*j, 2)}, {vr(ML, 2)} op_sel_hi:[1,0]")
    for j in range(4): a(f"v_pk_fma_f32 {vr(AC+2*j, 2)}, {vr(OP+2*j, 2)}, {vr(ML+8, 2)}, {vr(AC+2*j, 2)} op_sel_hi:[1,0,1]")
    for k in range(1, 4):
        a(f"s_waitcnt lgkmcnt({6 - 2*k})")
        for j in range(4):
            a(f"v_pk_fma_f32 {vr(AC+2*j, 2)}, {vr(OP+8*k+2*j, 2)}, {vr(ML+2*k, 2)}, {vr(AC+2*j, 2)} op_sel_hi:[1,0,1]")
    for j in (0, 2, 1, 3): a(f"v_cvt_pk_bf16_f32 v{104+j}, v{AC+2*j}, v{AC+1+2*j}")
    a("v_permlane32_swap_b32 v104, v106")
    a("s_cbranch_scc1 L_hend")
    a("v_permlane32_swap_b32 v105, v107")
    a(f"buffer_store_dwordx4 v[104:107], v{voo}, {SO}, s{sOo} offen {ofl}")
    if st3:
        a("s_memtime s[74:75]"); a("s_waitcnt vmcnt(0)"); a("s_memtime s[76:77]"); a("s_waitcnt lgkmcnt(0)")
        for i in range(7): a(f"v_writelane_b32 v1, s{64+2*i}, {i}")
        a("s_lshl_b32 s50, s2, 2"); a(f"s_add_u32 s50, s50, s{sW}"); a("s_lshl_b32 s50, s50, 8"); a("s_add_u32 s50, s50, 0x200000")
        a(f"v_lshl_add_u32 v4, v{vLane}, 2, s50")
        a("global_store_dword v4, v1, s[52:53]")
    if cal:
        lab("L_cal")
        a("s_memrealtime s[56:57]")
        a("s_waitcnt lgkmcnt(0)")
        a("s_sub_u32 s56, s56, s54")
        a(f"s_cmp_lt_u32 s56, {cal}")
        a("s_cbranch_scc1 L_cal")
    if stamp: stamp_out(trace)
    lab("L_hend")
    lab("L_end")
    a("s_endpgm")

    lab("L_tree")
    cm("=============== helper: tree K/V -> LDS, mask -> score bias, then one pass through the consumer code")
    if stamp:
        a("s_mov_b64 s[56:57], exec"); a("v_mov_b32 v0, s54"); a("v_mov_b32 v1, s54"); a("v_mov_b32 v2, 0"); a("v_mov_b32 v3, s76" if st5 else "v_mov_b32 v3, 0")
        a("s_mul_i32 s50, s2, 6"); a("s_add_u32 s50, s50, s3"); a("s_lshl_b32 s50, s50, 4"); a("v_mov_b32 v4, s50")
        a("s_mov_b64 exec, 1"); a("global_store_dwordx4 v4, v[0:3], s[52:53]"); a("s_mov_b64 exec, s[56:57]"); a("s_nop 1")
    k_dma_offsets()
    a(f"s_lshl_b32 s48, s{sPair}, 12"); a("s_movk_i32 s51, 4096")
    a("s_add_u32 s20, s10, s48"); a("s_addc_u32 s21, s11, 0"); a("s_mov_b32 s22, 4096"); a("s_mov_b32 s23, 0x20000")
    a(f"s_mov_b32 m0, {L_H}")
    a("s_add_u32 s24, s12, s48"); a("s_addc_u32 s25, s13, 0"); a("s_mov_b32 s26, 4096"); a("s_mov_b32 s27, 0x20000")
    for j in range(4): a(f"buffer_load_dwordx4 v{vKoff[j]}, {SK}, 0 offen offset:{j*1024} lds")
    v_dma_offsets(False)
    a(f"s_mov_b32 m0, {L_H + 8192}")
    a(f"s_lshr_b32 s50, s{sPair}, 4"); a("s_lshl_b32 s50, s50, 9")
    a("s_add_u32 s36, s14, s50"); a("s_addc_u32 s37, s15, 0"); a("s_mov_b32 s38, 512"); a("s_mov_b32 s39, 0x20000")
    for j in range(4): a(f"buffer_load_dwordx4 v{vVoff[j]}, {SV}, 0 offen offset:{j*1024} lds")
    a(f"v_and_b32 v{vU}, 15, v{vR}"); a(f"v_lshlrev_b32 v{vU}, 5, v{vU}"); a(f"v_lshl_add_u32 v{vU}, v{vH}, 3, v{vU}")
    a(f"s_mov_b32 m0, {L_H + 4096}")
    a(f"buffer_load_dwordx2 {vr(S0, 2)}, v{vU}, {SM}, 0 offen")
    a(f"buffer_load_dwordx2 {vr(S0+2, 2)}, v{vU}, {SM}, 0 offen offset:16")
    for j in range(4): a(f"buffer_load_dwordx4 v{vKoff[j]}, {SK}, s51 offen offset:{j*1024} lds")
    a("s_barrier")
    big = 1e9 * math.sqrt(128)
    a(f"s_mov_b32 s51, {f32(big)}")
    a(f"v_mov_b32 v{vU}, {f32(-big)}")
    for j in range(8, 16): a(f"v_mov_b32 v{B0+j}, 0xff800000")
    a(f"s_mov_b32 s{sCnt}, 1"); a(f"s_mov_b32 s{sDV}, 0")
    a("s_waitcnt vmcnt(0)")
    for j in range(4):
        a(f"v_lshlrev_b32 v{B0+2*j}, 16, v{S0+j}"); a(f"v_and_b32 v{B0+2*j+1}, 0xffff0000, v{S0+j}")
    for j in range(8): a(f"v_fma_f32 v{B0+j}, v{B0+j}, s51, v{vU}")
    a("s_branch L_round")
    check_hazards([x for x in L if not x.startswith(".")])
    out = HEADER + f"; @launch grid=(256,1,1) block=(384,1,1) lds={LDS}\n"
    out += '.amdgcn_target "amdgcn-amd-amdhsa--gfx950"\n.text\n' + f".globl {NAME}\n.p2align 8\n.type {NAME},@function\n{NAME}:\n"
    out += "\n".join(L) + "\n"
    out += '.section .rodata,"a"\n.p2align 6\n' + f".amdhsa_kernel {NAME}\n"
    out += f"  .amdhsa_next_free_vgpr {NV}\n  .amdhsa_next_free_sgpr {96 if (st3 or st4 or st5) else 64}\n  .amdhsa_accum_offset {NV}\n"
    out += "  .amdhsa_group_segment_fixed_size 0\n  .amdhsa_kernarg_size 72\n  .amdhsa_user_sgpr_count 2\n"
    out += "  .amdhsa_user_sgpr_kernarg_segment_ptr 1\n  .amdhsa_system_sgpr_workgroup_id_x 1\n.end_amdhsa_kernel\n"
    return out

if __name__ == "__main__":
    out = sys.argv[1]
    kw = {}
    for x in sys.argv[2:]:
        k, v = x.split("=", 1)
        if v in ("True", "False"): v = v == "True"
        else:
            try: v = int(v)
            except ValueError: pass
        kw[k] = v
    open(out, "w").write(gen(**kw))
```

```python
import sys, struct, math
from hz import check_hazards
NAME = "standalone__tree_speculative_verify_tree_attention_over_candidate_token_tree__sampling_kernel"
HEADER = open("standalone__tree_speculative_verify_tree_attention_over_candidate_token_tree__sampling.s.ref").read().split("; Override launch")[0]

def f32(x): return "0x%08x" % struct.unpack("<I", struct.pack("<f", x))[0]

def gen(levels="19.5,20,21,22", start=1, lmap="00111223", cps="4,10,16,22,28,34,40,46,52,58", jbits="12,13,14,10,11", mbit=16, stamp=False, fl="nt", prio=3, idx_direct=True, xat=8, st4=False, cal=0,
        ofl="", psl=1, WSOFF=0, BOUND=1<<22, LINFL=0, TK=2, dot=True):
    L = []
    def a(s): L.append("    " + s)
    def lab(s): L.append(s + ":")
    def cm(s): L.append("    ; " + s)
    def vr(b, n): return f"v[{b}:{b+n-1}]"
    RB = 32768
    L_PS = 3 * RB
    L_Q, L_TK = L_PS, L_PS + 8192
    L_MI = L_PS + 16384
    L_TV = L_MI + 17408
    L_TP = L_TV + 4096
    L_ML = L_TP + 2048
    L_CW = L_ML + 2048
    LDS = L_CW + 256
    W_WORD = WSOFF
    W_RANK = WSOFF + 65536
    W_DATA = WSOFF + 262144
    vOff = [2, 3, 4, 5]
    vLane, vH, vR, vMIa = 96, 97, 98, 99
    vM, vMC, vL, vT, vU, vAL = 101, 102, 103, 1, 6, 7
    vTmp = [0, 100]
    Q0, KF, S0, vKrd, PB = 8, 40, 72, list(range(88, 96)), 104
    PF, VF, O0, DT = 8, 40, 72, 88
    vVa, vPa, vZ = 2, 3, 4
    sPair, sMem, sK, sT, sBuf, sC, sCnt, sJ, sSlot, sCur, sBase, sW, sSnap, sSt, sMy, sOt = 40, 41, 42, 43, 44, 46, 47, 48, 49, 60, 61, 59, 62, 63, 64, 65
    SS, SQ, SO, SM, SD = "s[20:23]", "s[28:31]", "s[32:35]", "s[36:39]", "s[24:27]"
    c = (128 ** -0.5) * math.log2(math.e)
    jb = [int(x) for x in str(jbits).split(",")]
    def B(j): return sum(((j >> i) & 1) << b for i, b in enumerate(jb))
    maskR = sum(1 << b for b in range(10, 21) if b not in jb and b != mbit)

    def stamp_out():
        a("s_waitcnt vmcnt(0)")
        a("s_memrealtime s[56:57]")
        a("s_getreg_b32 s58, hwreg(HW_REG_XCC_ID)")
        a("s_waitcnt lgkmcnt(0)")
        a("v_mov_b32 v8, s54"); a("v_mov_b32 v9, s56"); a("v_mov_b32 v10, s58");  a("v_mov_b32 v11, 0")
        a("s_lshl_b32 s50, s2, 3"); a("s_add_u32 s50, s50, s3"); a("s_lshl_b32 s50, s50, 4")
        a("v_mov_b32 v12, s50")
        a("s_mov_b64 exec, 1")
        a("global_store_dwordx4 v12, v[8:11], s[52:53]")
    def ids():
        a(f"v_and_b32 v{vLane}, 63, v0")
        a(f"s_lshr_b32 s{sPair}, s2, 4"); a(f"s_lshl_b32 s{sPair}, s{sPair}, 3"); a("s_and_b32 s50, s2, 7"); a(f"s_or_b32 s{sPair}, s{sPair}, s50")
        a(f"s_bfe_u32 s{sMem}, s2, 0x10003")
    def k_offsets():
        cm("K-shaped DMA source offsets: row rr = lane>>4, slot p = lane&15 -> rr*256 + ((p ^ (4j+rr)) * 16)")
        a(f"v_lshlrev_b32 v{vTmp[0]}, 4, v{vLane}")
        a(f"v_and_b32 v{vTmp[1]}, 0x30, v{vLane}")
        a(f"v_xor_b32 v{vOff[0]}, v{vTmp[0]}, v{vTmp[1]}")
        for j in range(1, 4): a(f"v_xor_b32 v{vOff[j]}, {64*j}, v{vOff[0]}")
    def v_offset():
        cm("V DMA source offset: rr*256 + ((p ^ 4rr) * 16)")
        a(f"v_lshlrev_b32 v{vTmp[0]}, 4, v{vLane}")
        a(f"v_and_b32 v{vTmp[1]}, 0x30, v{vLane}")
        a(f"v_lshlrev_b32 v{vTmp[1]}, 2, v{vTmp[1]}")
        a(f"v_xor_b32 v{vOff[0]}, v{vTmp[0]}, v{vTmp[1]}")

    a("s_load_dwordx16 s[4:19], s[0:1], 0")
    a("s_load_dwordx2 s[52:53], s[0:1], 64")
    if stamp or cal: a("s_memrealtime s[54:55]")
    a("v_readfirstlane_b32 s3, v0")
    a("s_cmp_ge_u32 s2, 256"); a("s_cbranch_scc1 L_end")
    a("s_lshr_b32 s3, s3, 6")
    a("s_cbranch_scc1 L_cons")
    cm("=============== loader wave")
    if prio: a(f"s_setprio {prio}")
    ids(); k_offsets()
    a(f"s_lshl_b32 s45, s{sPair}, 21"); a(f"s_lshl_b32 s50, s{sMem}, {mbit}"); a("s_add_u32 s45, s45, s50")
    a("s_sub_u32 s22, 0x200000, s50"); a("s_mov_b32 s23, 0x20000")
    a(f"s_lshl_b32 s50, s{sPair}, 13")
    a("s_mov_b32 s30, 8192"); a("s_mov_b32 s31, 0x20000")
    a(f"s_mov_b32 s{sK}, 0"); a(f"s_mov_b32 s{sBuf}, 0"); a(f"s_mov_b32 s{sCnt}, 0")
    a(f"s_mov_b32 m0, {L_Q}"); a("s_movk_i32 s51, 4096")
    lv = [float(x) for x in str(levels).split(",")]
    cp = [int(x) for x in str(cps).split(",")] if cps != "" else []
    assert len(cp) <= 16
    lm = [int(ch) for ch in str(lmap).zfill(8)]
    cm("rounds at which something besides streaming is due: a progress check, its result, the switch to V, the end")
    ev = sum(1 << (r - 1) for r in set(cp) | set(r + 1 for r in cp) | {32, 64})
    cpm = sum(1 << r for r in cp)
    a(f"s_mov_b32 s84, {ev & 0xffffffff:#x}"); a(f"s_mov_b32 s85, {ev >> 32:#x}")
    a(f"s_mov_b32 s86, {cpm & 0xffffffff:#x}"); a(f"s_mov_b32 s87, {cpm >> 32:#x}")
    a(f"s_mov_b32 s88, {start}"); a("s_lshr_b32 s89, s2, 4"); a("s_and_b32 s90, s2, 7")
    a(f"s_lshl_b32 s91, s{sMem}, 8"); a(f"s_add_u32 s91, s91, {W_RANK}"); a("s_mov_b32 s92, -1")
    if st4: a("s_mov_b32 s74, 0"); a("v_mov_b32 v20, 0"); a("v_mov_b32 v21, 0"); a("v_mov_b32 v22, 0")
    a("s_waitcnt lgkmcnt(0)")
    a("s_add_u32 s28, s4, s50"); a("s_addc_u32 s29, s5, 0")
    for j in range(4): a(f"buffer_load_dwordx4 v{vOff[j]}, {SQ}, 0 offen offset:{j*1024} lds")
    a(f"s_mov_b32 m0, {L_Q + 4096}")
    a("s_add_u32 s20, s6, s45"); a("s_addc_u32 s21, s7, 0")
    for j in range(4): a(f"buffer_load_dwordx4 v{vOff[j]}, {SQ}, s51 offen offset:{j*1024} lds")
    for j in range(1, 4):
        assert B(j) >= 1024*j
        a(f"v_add_u32 v{vOff[j]}, {B(j) - 1024*j}, v{vOff[j]}")
    def vm(x, n):
        lo = int(x); fr = x - lo
        return lo + (1 if (n % 16) < fr * 16 else 0) - 1
    def rnd(x, sfx):
        bar_at = min(n for n in range(32) if vm(x, n) <= n)
        for g in range(8):
            if 4 * g == xat:
                a(f"s_cmp_lg_u32 s{sCnt}, 33"); a(f"s_cbranch_scc1 L_nx{sfx}")
                if st4: a("s_memrealtime s[76:77]")
                a("s_barrier")
                if st4: a("s_memrealtime s[78:79]")
                lab("L_nx" + sfx)
            a(f"s_add_u32 m0, s{sBuf}, {g*4096}"); a(f"s_add_u32 s{sT}, s{sK}, {B(4*g)}")
            for j in range(4):
                n = 4 * g + j
                a(f"s_waitcnt vmcnt({vm(x, n)})")
                a(f"buffer_load_dwordx4 v{vOff[j]}, {SS}, s{sT} offen offset:{j*1024} {fl} lds")
                if n == bar_at:
                    if st4: a("s_memrealtime s[70:71]")
                    a("s_barrier")
                    if st4: a("s_memrealtime s[72:73]")
    order = [start] + [i for i in range(len(lv)) if i != start]
    for i in order:
        lab(f"L_lv{i}")
        rnd(lv[i], str(i))
        cm("next round: the source offset counts through the address bits a round leaves fixed; buffers rotate mod 3")
        a(f"s_add_u32 s{sBuf}, s{sBuf}, {RB}")
        a(f"s_cmp_eq_u32 s{sBuf}, {3*RB}"); a(f"s_cselect_b32 s{sBuf}, 0, s{sBuf}")
        if st4:
            a("s_waitcnt lgkmcnt(0)"); a("s_mov_b32 m0, s74"); a("s_add_u32 s74, s74, 1")
            a("v_writelane_b32 v20, s70, m0"); a("v_writelane_b32 v21, s72, m0")
        a(f"s_or_b32 s{sK}, s{sK}, {(~maskR) & 0xffffffff:#x}"); a(f"s_add_u32 s{sK}, s{sK}, 1"); a(f"s_and_b32 s{sK}, s{sK}, {maskR:#x}")
        a(f"s_add_u32 s50, s{sCnt}, 1")
        a(f"s_bitcmp1_b64 s[84:85], s{sCnt}"); a(f"s_mov_b32 s{sCnt}, s50")
        a(f"s_cbranch_scc0 L_lv{i}")
        if i != order[-1]: a("s_branch L_event")
    lab("L_event")
    a(f"s_cmp_eq_u32 s{sCnt}, 64"); a("s_cbranch_scc1 L_ldfin")
    a(f"s_cmp_lg_u32 s{sCnt}, 32"); a("s_cbranch_scc1 L_nosw")
    cm("K is done, go on with V")
    a("s_add_u32 s20, s8, s45"); a("s_addc_u32 s21, s9, 0")
    v_offset()
    for j in range(1, 4): a(f"v_add_u32 v{vOff[j]}, {B(j) - 1024*j}, v{vOff[0]}")
    lab("L_nosw")
    if cp:
        cm("load balance: the later this workgroup reached the last check among its group of eight, the more it keeps in flight")
        a(f"s_cmp_lg_u32 s{sCnt}, s92"); a("s_cbranch_scc1 L_noapply")
        a("s_waitcnt lgkmcnt(0)")
        word = sum(v << (4 * i) for i, v in enumerate(lm))
        a("s_min_u32 s93, s93, 7"); a("s_lshl_b32 s93, s93, 2")
        a(f"s_lshr_b32 s93, {word:#x}, s93"); a("s_and_b32 s88, s93, 15")
        lab("L_noapply")
        a(f"s_bitcmp1_b64 s[86:87], s{sCnt}"); a("s_cbranch_scc0 L_nocp")
        a("s_and_b32 s50, s89, 15"); a("s_lshl_b32 s50, s50, 9"); a("s_add_u32 s50, s50, s91")
        a("s_add_u32 s66, s52, s50"); a("s_addc_u32 s67, s53, 0")
        a("s_mov_b32 s93, 1"); a("s_atomic_add s93, s[66:67], 0 glc")
        a("s_add_u32 s91, s91, 8192"); a("s_add_u32 s89, s89, s90"); a(f"s_add_u32 s92, s{sCnt}, 1")
        lab("L_nocp")
    for i in order[1:]:
        a(f"s_cmp_eq_u32 s88, {i}"); a(f"s_cbranch_scc1 L_lv{i}")
    a(f"s_branch L_lv{start}")
    lab("L_ldfin")
    a("s_waitcnt vmcnt(8)"); a("s_barrier")
    a("s_waitcnt vmcnt(0)")
    if st4: a("s_memrealtime s[80:81]")
    a("s_barrier")
    if st4:
        a("s_memrealtime s[82:83]"); a("s_waitcnt lgkmcnt(0)")
        for i, r in enumerate((54, 76, 78, 80, 82)): a(f"v_writelane_b32 v22, s{r}, {i}")
        a("s_lshl_b32 s50, s2, 10"); a("s_add_u32 s50, s50, 0x200000")
        a(f"v_lshl_add_u32 v4, v{vLane}, 2, s50")
        a("global_store_dword v4, v20, s[52:53]"); a("global_store_dword v4, v21, s[52:53] offset:256"); a("global_store_dword v4, v22, s[52:53] offset:512")
    if stamp: stamp_out()
    a("s_endpgm")

    L.append(".p2align 6")
    lab("L_cons")
    cm("=============== consumers")
    ids()
    a(f"v_lshrrev_b32 v{vH}, 5, v{vLane}")
    a(f"v_and_b32 v{vR}, 31, v{vLane}")
    a(f"s_sub_u32 s{sW}, s3, 1")
    cm("LDS read addresses for K-shaped tiles: r*256 + ((h ^ (r&15)) ^ 2s)*16, first pointing at Q")
    a(f"v_and_b32 v{vT}, 15, v{vR}")
    a(f"v_xor_b32 v{vT}, v{vT}, v{vH}")
    a(f"v_lshlrev_b32 v{vT}, 4, v{vT}")
    a(f"v_lshl_add_u32 v{vT}, v{vR}, 8, v{vT}")
    a(f"v_add_u32 v{vKrd[0]}, {L_Q}, v{vT}")
    for s in range(1, 8): a(f"v_xor_b32 v{vKrd[s]}, {32*s}, v{vKrd[0]}")
    a("s_barrier")
    for s in range(8): a(f"ds_read_b128 {vr(Q0 + 4*s, 4)}, v{vKrd[s]}")
    a(f"s_mov_b32 s{sBase}, {L_Q}"); a(f"s_mov_b32 s{sC}, {f32(c)}"); a(f"s_mov_b32 s{sCnt}, 32")
    a(f"s_mov_b32 s{sBuf}, 0"); a(f"s_mov_b32 s{sJ}, s{sW}"); a(f"s_mov_b32 s{sSlot}, 0"); a(f"s_mov_b32 s{sSt}, 0")
    a(f"s_mul_i32 s50, s{sW}, {19*128}"); a(f"s_add_u32 s50, s50, {L_MI}")
    a(f"v_lshl_add_u32 v{vMIa}, v{vR}, 2, s50")
    a(f"v_mov_b32 v{vL}, 0"); a(f"v_mov_b32 v{vM}, {f32(-3.0e38)}"); a(f"v_mov_b32 v{vMC}, v{vM}")
    a(f"s_lshl_b32 s{sMy}, s{sMem}, 3"); a(f"s_xor_b32 s{sOt}, s{sMy}, 8")
    a(f"s_lshl_b32 s50, s{sPair}, 8"); a(f"s_add_u32 s50, s50, {W_WORD}")
    a("s_waitcnt lgkmcnt(0)")
    a("s_add_u32 s66, s52, s50"); a("s_addc_u32 s67, s53, 0")
    a(f"s_mul_i32 s50, s{sPair}, 18432"); a(f"s_mul_i32 s51, s{sW}, 4608"); a("s_add_u32 s50, s50, s51"); a(f"s_add_u32 s50, s50, {W_DATA}")
    a("s_add_u32 s24, s52, s50"); a("s_addc_u32 s25, s53, 0"); a("s_movk_i32 s26, 4608"); a("s_mov_b32 s27, 0x20000")
    a("s_mov_b32 s32, s16"); a("s_mov_b32 s33, s17"); a("s_mov_b32 s34, 0x100000"); a("s_mov_b32 s35, 0x20000")
    a(f"s_lshl_b32 s50, s{sPair}, 13"); a(f"s_lshl_b32 s51, s{sW}, 6"); a("s_add_u32 s69, s50, s51")
    if cp:
        cm("wave 5 clears this workgroup's share of the arrival counters")
        a(f"s_cmp_lg_u32 s{sW}, 4"); a("s_cbranch_scc1 L_kr")
        a(f"s_lshl_b32 s50, s2, 8"); a(f"s_add_u32 s50, s50, {W_RANK}")
        a(f"v_lshl_add_u32 v{vT}, v{vLane}, 16, s50"); a(f"v_mov_b32 v{vU}, 0")
        a(f"s_cmp_lt_u32 s2, {max(0, 32 * len(cp) - 256)}"); a("s_cselect_b32 exec_lo, 3, 1"); a("s_mov_b32 exec_hi, 0")
        a(f"global_store_dword v{vT}, v{vU}, s[52:53] sc1")
        a("s_mov_b64 exec, -1")
    lab("L_kr")
    a("s_barrier")
    a(f"s_cmp_gt_u32 s{sJ}, 3"); a("s_cbranch_scc1 L_kidle")
    a(f"s_lshl_b32 s50, s{sJ}, 13"); a(f"s_add_u32 s50, s50, s{sBuf}")
    a(f"s_mov_b32 s{sCur}, s{sSlot}"); a(f"s_add_u32 s{sSlot}, s{sSlot}, 8")
    lab("L_ktile")
    a(f"s_sub_u32 s51, s50, s{sBase}"); a(f"s_mov_b32 s{sBase}, s50")
    for s in range(8):
        a(f"v_add_u32 v{vKrd[s]}, s51, v{vKrd[s]}")
        a(f"ds_read_b128 {vr(KF + 4*s, 4)}, v{vKrd[s]}")
    a(f"s_lshl_b32 s50, s{sCur}, 4")
    a(f"v_add_u32 v{vTmp[1]}, s50, v{vMIa}")
    a(f"s_cmp_gt_u32 s{sJ}, 3")
    a("s_waitcnt lgkmcnt(7)")
    a("s_cbranch_scc1 L_kbias")
    a(f"v_mfma_f32_32x32x16_bf16 {vr(S0, 16)}, {vr(KF, 4)}, {vr(Q0, 4)}, 0")
    lab("L_k1")
    for s in range(1, 8):
        a(f"s_waitcnt lgkmcnt({7-s})")
        a(f"v_mfma_f32_32x32x16_bf16 {vr(S0, 16)}, {vr(KF + 4*s, 4)}, {vr(Q0 + 4*s, 4)}, {vr(S0, 16)}")
    a("s_nop 11")
    cm("online softmax; the reference is the running maximum rounded up to a whole power of two")
    a(f"v_max3_f32 v{vT}, v{S0}, v{S0+1}, v{vM}")
    a(f"v_max3_f32 v{vU}, v{S0+2}, v{S0+3}, v{S0+4}")
    for j in range(5, 15, 4):
        a(f"v_max3_f32 v{vT}, v{S0+j}, v{S0+j+1}, v{vT}")
        if j + 3 < 15: a(f"v_max3_f32 v{vU}, v{S0+j+2}, v{S0+j+3}, v{vU}")
    a(f"v_max3_f32 v{vT}, v{S0+15}, v{vU}, v{vT}")
    a(f"v_mov_b32 v{vU}, v{vT}")
    a("s_nop 1")
    a(f"v_permlane32_swap_b32 v{vT}, v{vU}")
    a(f"v_max_f32 v{vM}, v{vT}, v{vU}")
    a(f"v_mul_f32 v{vT}, s{sC}, v{vM}")
    a(f"v_ceil_f32 v{vT}, v{vT}")
    a(f"v_sub_f32 v{vAL}, v{vMC}, v{vT}")
    a(f"v_mov_b32 v{vMC}, v{vT}")
    a(f"ds_write_b32 v{vTmp[1]}, v{vT}")
    a(f"v_exp_f32 v{vAL}, v{vAL}")
    for j in range(16): a(f"v_fma_f32 v{S0+j}, v{S0+j}, s{sC}, -v{vMC}")
    for j in range(16): a(f"v_exp_f32 v{S0+j}, v{S0+j}")
    if dot:
        a(f"v_mul_f32 v{vL}, v{vL}, v{vAL}")
        a(f"s_set_gpr_idx_on s{sCur}, gpr_idx(DST)"); a("s_mov_b32 s50, 0x3f803f80")
        for j in range(8): a(f"v_cvt_pk_bf16_f32 v{PB+j}, v{S0+2*j}, v{S0+2*j+1}")
        a(f"s_set_gpr_idx_on s{sCur}, gpr_idx(SRC0)"); a("s_nop 0")
        for j in range(8): a(f"v_dot2_f32_bf16 v{vL}, v{PB+j}, s50, v{vL}")
        a("s_set_gpr_idx_off")
        a("s_nop 1")
    else:
        if idx_direct:
            a(f"s_set_gpr_idx_on s{sCur}, gpr_idx(DST)"); a("s_nop 0")
            for j in range(8): a(f"v_cvt_pk_bf16_f32 v{PB+j}, v{S0+2*j}, v{S0+2*j+1}")
            a("s_set_gpr_idx_off")
        else:
            for j in range(8): a(f"v_cvt_pk_bf16_f32 v{KF+j}, v{S0+2*j}, v{S0+2*j+1}")
            a(f"s_set_gpr_idx_on s{sCur}, gpr_idx(DST)"); a("s_nop 0")
            for j in range(8): a(f"v_mov_b32 v{PB+j}, v{KF+j}")
            a("s_set_gpr_idx_off")
        for j in range(4): a(f"v_pk_add_f32 {vr(S0+2*j, 2)}, {vr(S0+2*j, 2)}, {vr(S0+8+2*j, 2)}")
        for j in range(2): a(f"v_pk_add_f32 {vr(S0+2*j, 2)}, {vr(S0+2*j, 2)}, {vr(S0+4+2*j, 2)}")
        a(f"v_pk_add_f32 {vr(S0, 2)}, {vr(S0, 2)}, {vr(S0+2, 2)}")
        a(f"v_fma_f32 v{vL}, v{vL}, v{vAL}, v{S0}")
        a(f"v_add_f32 v{vL}, v{vL}, v{S0+1}")
    lab("L_knext")
    def step():
        a(f"s_add_u32 s{sJ}, s{sJ}, 3"); a(f"s_sub_u32 s50, s{sJ}, 7"); a(f"s_cselect_b32 s{sJ}, s{sJ}, s50")
    step()
    a(f"s_add_u32 s{sBuf}, s{sBuf}, {RB}")
    a(f"s_cmp_eq_u32 s{sBuf}, {3*RB}"); a(f"s_cselect_b32 s{sBuf}, 0, s{sBuf}")
    a(f"s_sub_u32 s{sCnt}, s{sCnt}, 1"); a(f"s_cmp_lg_u32 s{sCnt}, 0"); a("s_cbranch_scc1 L_kr")

    cm("=============== between K and V: common reference M and sum L of this workgroup")
    a(f"v_mov_b32 v{vU}, v{vL}")
    a(f"s_lshl_b32 s50, s{sW}, 8"); a(f"s_add_u32 s50, s50, {L_ML}")
    a(f"v_permlane32_swap_b32 v{vL}, v{vU}")
    a(f"v_lshl_add_u32 v{vT}, v{vR}, 3, s50")
    a(f"v_add_f32 v{vL}, v{vL}, v{vU}")
    a(f"ds_write_b64 v{vT}, {vr(vMC, 2)}")
    a(f"v_lshlrev_b32 v{vT}, 3, v{vR}"); a(f"v_add_u32 v{vT}, {L_ML}, v{vT}")
    cm("transposing V reads of column block w: row = 4h + r', chunk = (4w + 2gg + (c>>1)) ^ 4r', + 8*(c&1)")
    a(f"v_bfe_u32 v{vU}, v{vLane}, 2, 2")
    a(f"v_lshl_add_u32 v{vTmp[0]}, v{vH}, 2, v{vU}")
    a(f"v_lshlrev_b32 v{vVa}, 8, v{vTmp[0]}")
    a(f"v_xor_b32 v{vU}, s{sW}, v{vU}"); a(f"v_and_b32 v{vU}, 3, v{vU}")
    a(f"v_lshl_add_u32 v{vVa}, v{vU}, 6, v{vVa}")
    a(f"v_and_b32 v{vU}, 3, v{vLane}")
    a(f"v_lshl_add_u32 v{vVa}, v{vU}, 3, v{vVa}")
    a(f"v_and_b32 v{vU}, 16, v{vLane}")
    a(f"v_lshl_add_u32 v{vVa}, v{vU}, 1, v{vVa}")
    a(f"v_lshlrev_b32 v{vPa}, 4, v{vLane}"); a(f"v_add_u32 v{vPa}, {L_PS}, v{vPa}")
    for j in range(0, 16, 2): a(f"v_mov_b64 {vr(O0+j, 2)}, 0")
    a(f"v_mov_b32 v{vZ}, 0")
    a(f"s_mov_b32 s{sJ}, s{sW}"); a(f"s_mov_b32 s{sSlot}, 0"); a(f"s_mov_b32 s{sCnt}, 32"); a(f"s_mov_b32 s{sBase}, 0")
    a("s_waitcnt lgkmcnt(0)")
    a("s_barrier")
    for k in range(7): a(f"ds_read_b64 {vr(KF + 2*k, 2)}, v{vT} offset:{256*k}")
    a("s_waitcnt lgkmcnt(0)")
    a(f"v_max3_f32 v{vMC}, v{KF}, v{KF+2}, v{KF+4}"); a(f"v_max3_f32 v{vMC}, v{vMC}, v{KF+6}, v{KF+8}"); a(f"v_max3_f32 v{vMC}, v{vMC}, v{KF+10}, v{KF+12}")
    for k in range(7): a(f"v_sub_f32 v{KF+2*k}, v{KF+2*k}, v{vMC}")
    for k in range(7): a(f"v_exp_f32 v{KF+2*k}, v{KF+2*k}")
    a(f"v_mul_f32 v{vL}, v{KF}, v{KF+1}")
    for k in range(1, 7): a(f"v_fma_f32 v{vL}, v{KF+2*k}, v{KF+2*k+1}, v{vL}")
    def dump_code():
        a(f"s_lshl_b32 s51, s{sCur}, 4")
        a(f"v_add_u32 v{vT}, s51, v{vMIa}")
        a(f"ds_read_b32 v{vT}, v{vT}")
        a(f"v_add_u32 v{vU}, s50, v{vPa}")
        a("s_waitcnt lgkmcnt(0)")
        a(f"v_sub_f32 v{vT}, v{vMC}, v{vT}")
        a(f"v_min_f32 v{vT}, {f32(255.0)}, v{vT}")
        a(f"v_cvt_u32_f32 v{vT}, v{vT}")
        a(f"v_mul_u32_u24 v{vT}, 0x800080, v{vT}")
        a(f"s_set_gpr_idx_on s{sCur}, gpr_idx(SRC0)"); a("s_nop 0")
        if idx_direct:
            for j in range(8): a(f"v_pk_sub_u16 v{DT+j}, v{PB+j}, v{vT} clamp")
            a("s_set_gpr_idx_off")
        else:
            for j in range(8): a(f"v_mov_b32 v{DT+j}, v{PB+j}")
            a("s_set_gpr_idx_off")
            for j in range(8): a(f"v_pk_sub_u16 v{DT+j}, v{DT+j}, v{vT} clamp")
        a(f"ds_write_b128 v{vU}, {vr(DT, 4)}"); a(f"ds_write_b128 v{vU}, {vr(DT+4, 4)} offset:1024")
    cm("wave 7 stages the tree tile's probabilities (slot 18) now; it owns no tile of round 0")
    a(f"s_mov_b32 s{sCur}, {18*8}"); a(f"s_mov_b32 s50, {L_TP - L_PS}")
    a(f"s_cmp_eq_u32 s{sW}, 6"); a("s_cbranch_scc1 L_dump")
    a(f"s_cmp_eq_u32 s{sW}, 5"); a("s_cbranch_scc1 L_hsfin")
    lab("L_stage")
    cm("stage my tile of the coming round, if I own one")
    a(f"s_cmp_gt_u32 s{sJ}, 3"); a("s_cbranch_scc1 L_vnext")
    a(f"s_lshl_b32 s50, s{sJ}, 11"); a(f"s_add_u32 s50, s50, s{sBase}")
    a(f"s_mov_b32 s{sCur}, s{sSlot}"); a(f"s_add_u32 s{sSlot}, s{sSlot}, 8")
    lab("L_dump")
    dump_code()
    lab("L_vnext")
    step()
    a(f"v_add_u32 v{vT}, s{sBuf}, v{vVa}"); a(f"v_add_u32 v{vU}, s{sBase}, v{vPa}")
    a(f"s_xor_b32 s{sBase}, s{sBase}, 8192")
    a(f"s_add_u32 s{sBuf}, s{sBuf}, {RB}")
    a(f"s_cmp_eq_u32 s{sBuf}, {3*RB}"); a(f"s_cselect_b32 s{sBuf}, 0, s{sBuf}")
    a(f"s_sub_u32 s{sCnt}, s{sCnt}, 1")
    a(f"s_cmp_gt_u32 s{sW}, 3")
    a("s_waitcnt lgkmcnt(0)")
    a("s_cbranch_scc1 L_vside")
    a("s_barrier")
    def vreads(t):
        for u in range(2):
            for z in range(2): a(f"ds_read_b64_tr_b16 {vr(VF + 8*t + 4*u + 2*z, 2)}, v{vT} offset:{8192*t + 4096*u + 2048*z}")
    def preads(t):
        for u in range(2): a(f"ds_read_b128 {vr(PF + 8*t + 4*u, 4)}, v{vU} offset:{2048*t + 1024*u}")
    def pvm(t):
        for u in range(2): a(f"v_mfma_f32_32x32x16_bf16 {vr(O0, 16)}, {vr(VF + 8*t + 4*u, 4)}, {vr(PF + 8*t + 4*u, 4)}, {vr(O0, 16)}")
    a(f"s_cmp_eq_u32 s{sCnt}, 0"); a("s_cbranch_scc1 L_last")
    preads(0); vreads(0); preads(1); vreads(1)
    a("s_waitcnt lgkmcnt(6)"); pvm(0)
    preads(2); vreads(2)
    a("s_waitcnt lgkmcnt(6)"); pvm(1)
    preads(3); vreads(3)
    a("s_waitcnt lgkmcnt(6)"); pvm(2)
    a(f"s_cmp_eq_u32 s{sCnt}, 28")
    a("s_waitcnt lgkmcnt(0)"); pvm(3)
    a("s_cbranch_scc0 L_stage")
    cm("once: the tree tile (keys 0..15 only), added by the first workgroup of the pair")
    a(f"s_cmp_lg_u32 s{sMem}, 0"); a("s_cbranch_scc1 L_stage")
    a(f"v_add_u32 v{vT}, {L_TV}, v{vVa}")
    a(f"ds_read_b128 {vr(PF, 4)}, v{vPa} offset:{L_TP - L_PS}")
    for z in range(2): a(f"ds_read_b64_tr_b16 {vr(VF + 2*z, 2)}, v{vT} offset:{2048*z}")
    a("s_waitcnt lgkmcnt(0)")
    a(f"v_mfma_f32_32x32x16_bf16 {vr(O0, 16)}, {vr(VF, 4)}, {vr(PF, 4)}, {vr(O0, 16)}")
    a("s_branch L_stage")

    lab("L_vside")
    cm("waves 5..7 only stage; wave 6 draws the pair's ticket two rounds before the end")
    a(f"s_cmp_eq_u32 s{sCnt}, 0"); a("s_cbranch_scc1 L_sidex")
    a("s_barrier")
    a(f"s_cmp_gt_u32 s{sCnt}, {TK}"); a("s_cbranch_scc1 L_stage")
    a(f"s_cmp_lg_u32 s{sW}, 5"); a("s_cbranch_scc1 L_stage")
    a(f"s_cmp_lg_u32 s{sCnt}, {TK}"); a("s_cbranch_scc1 L_look")
    a(f"s_lshl_b32 s68, 4, s{sMy}"); a("s_atomic_xor s68, s[66:67], 0 glc")
    a("s_waitcnt lgkmcnt(0)")
    a(f"s_xor_b32 s68, s68, s{sSnap}"); a(f"s_lshr_b32 s68, s68, s{sOt}")
    lab("L_tell")
    a(f"v_mov_b32 v{vT}, {L_CW}"); a(f"v_mov_b32 v{DT}, s68")
    a(f"ds_write_b32 v{vT}, v{DT}")
    a("s_branch L_stage")
    lab("L_look")
    a(f"s_cmp_lg_u32 s{sCnt}, 1"); a("s_cbranch_scc1 L_stage")
    a("s_and_b32 s50, s68, 12"); a("s_cmp_lg_u32 s50, 4"); a("s_cbranch_scc1 L_stage")
    a(f"global_load_dword v{vU}, v{vZ}, s[66:67] sc1")
    a("s_waitcnt vmcnt(0)")
    a(f"v_readfirstlane_b32 s50, v{vU}")
    a(f"s_xor_b32 s50, s50, s{sSnap}"); a(f"s_lshr_b32 s68, s50, s{sOt}")
    a("s_branch L_tell")
    lab("L_sidex")
    a(f"s_cmp_lg_u32 s{sW}, 5"); a("s_cbranch_scc1 L_end")
    a("s_and_b32 s50, s68, 12"); a("s_cmp_lg_u32 s50, 4"); a("s_cbranch_scc1 L_end")
    cm("this workgroup merges but the other result is not there yet: watch the word, then release waves 1..4")
    a("s_barrier")
    a(f"global_load_dword v{vU}, v{vZ}, s[66:67] sc1")
    a(f"s_mov_b32 s71, {BOUND}")
    a("s_barrier")
    lab("L_poll")
    a("s_waitcnt vmcnt(0)")
    a(f"v_readfirstlane_b32 s50, v{vU}")
    a(f"s_xor_b32 s50, s50, s{sSnap}"); a(f"s_lshr_b32 s50, s50, s{sOt}")
    a("s_bitcmp1_b32 s50, 3"); a("s_cbranch_scc1 L_seen")
    if psl: a(f"s_sleep {psl}")
    a(f"global_load_dword v{vU}, v{vZ}, s[66:67] sc1")
    a("s_sub_u32 s71, s71, 1"); a("s_cbranch_scc0 L_poll")
    lab("L_seen")
    a("s_barrier")
    a("s_endpgm")

    lab("L_last")
    cm("=============== last round and hand-off")
    PP, PM = 104, 120
    def fetch():
        for x in range(4): a(f"buffer_load_dwordx4 {vr(PP + 4*x, 4)}, v{DT+2}, {SD}, 0 offen offset:{1024*x} sc1")
        a(f"buffer_load_dwordx2 {vr(PM, 2)}, v{DT+3}, {SD}, 0 offen sc1")
    a(f"v_mov_b32 v{vTmp[0]}, {L_CW}")
    a(f"ds_read_b32 v{DT}, v{vTmp[0]}")
    preads(0); vreads(0); preads(1); vreads(1)
    a(f"v_lshlrev_b32 v{DT+2}, 4, v{vLane}"); a(f"v_lshlrev_b32 v{DT+3}, 3, v{vLane}"); a(f"v_add_u32 v{DT+3}, 4096, v{DT+3}")
    a("s_waitcnt lgkmcnt(6)"); pvm(0)
    a(f"v_readfirstlane_b32 s68, v{DT}")
    preads(2); vreads(2)
    a("s_bitcmp1_b32 s68, 3"); a("s_cbranch_scc0 L_nopre")
    fetch()
    lab("L_nopre")
    a("s_waitcnt lgkmcnt(6)"); pvm(1)
    preads(3)
    a(f"v_lshlrev_b32 v{DT+4}, 8, v{vR}"); a(f"v_lshl_add_u32 v{DT+4}, v{vH}, 4, v{DT+4}")
    a("s_waitcnt lgkmcnt(2)"); pvm(2)
    a("s_barrier")
    vreads(3)
    a("s_bitcmp1_b32 s68, 2")
    a("s_waitcnt lgkmcnt(2)")
    a(f"v_mfma_f32_32x32x16_bf16 {vr(O0, 16)}, {vr(VF + 24, 4)}, {vr(PF + 24, 4)}, {vr(O0, 16)}")
    a("s_waitcnt lgkmcnt(0)")
    a(f"v_mfma_f32_32x32x16_bf16 {vr(O0, 16)}, {vr(VF + 28, 4)}, {vr(PF + 28, 4)}, {vr(O0, 16)}")
    a("s_cbranch_scc1 L_merge")
    cm("first at the end: publish, then raise the flag")
    a(f"buffer_store_dwordx2 {vr(vMC, 2)}, v{DT+3}, {SD}, 0 offen sc1")
    a("s_nop 9")
    for x in range(4): a(f"buffer_store_dwordx4 {vr(O0 + 4*x, 4)}, v{DT+2}, {SD}, 0 offen offset:{1024*x} sc1")
    a(f"s_lshl_b32 s50, 8, s{sMy}")
    a(f"s_cmp_lg_u32 s{sW}, 0")
    a("s_waitcnt vmcnt(0)")
    a("s_barrier")
    a("s_cbranch_scc1 L_done")
    a("s_atomic_xor s50, s[66:67], 0")
    a("s_branch L_done")
    lab("L_merge")
    a("s_bitcmp1_b32 s68, 3"); a("s_cbranch_scc1 L_have")
    a("s_barrier")
    fetch()
    lab("L_have")
    a("s_waitcnt vmcnt(0)")
    FA, FB = 122, 124
    a(f"v_max_f32 v{vT}, v{vMC}, v{PM}")
    a(f"v_sub_f32 v{FA}, v{vMC}, v{vT}"); a(f"v_sub_f32 v{FB}, v{PM}, v{vT}")
    a(f"v_exp_f32 v{FA}, v{FA}"); a(f"v_exp_f32 v{FB}, v{FB}")
    cm("both factors are powers of two, so the sums do not depend on which workgroup merges")
    FI = 126
    a(f"v_mul_f32 v{FI}, v{FA}, v{vL}")
    a(f"v_fma_f32 v{FI}, v{FB}, v{PM+1}, v{FI}")
    a(f"v_rcp_f32 v{FI}, v{FI}")
    for j in range(8): a(f"v_pk_mul_f32 {vr(PP+2*j, 2)}, {vr(PP+2*j, 2)}, {vr(FB, 2)} op_sel_hi:[1,0]")
    for j in range(8): a(f"v_pk_fma_f32 {vr(PP+2*j, 2)}, {vr(O0+2*j, 2)}, {vr(FA, 2)}, {vr(PP+2*j, 2)} op_sel_hi:[1,0,1]")
    for j in range(8): a(f"v_pk_mul_f32 {vr(PP+2*j, 2)}, {vr(PP+2*j, 2)}, {vr(FI, 2)} op_sel_hi:[1,0]")
    for j in range(8): a(f"v_cvt_pk_bf16_f32 v{KF+j}, v{PP+2*j}, v{PP+2*j+1}")
    a(f"v_permlane32_swap_b32 v{KF}, v{KF+2}"); a(f"v_permlane32_swap_b32 v{KF+1}, v{KF+3}")
    a(f"buffer_store_dwordx4 {vr(KF, 4)}, v{DT+4}, {SO}, s69 offen {ofl}")
    a(f"v_permlane32_swap_b32 v{KF+4}, v{KF+6}"); a(f"v_permlane32_swap_b32 v{KF+5}, v{KF+7}")
    a(f"buffer_store_dwordx4 {vr(KF+4, 4)}, v{DT+4}, {SO}, s69 offen offset:32 {ofl}")
    lab("L_done")
    if cal:
        lab("L_cal")
        a("s_memrealtime s[56:57]"); a("s_waitcnt lgkmcnt(0)"); a("s_sub_u32 s56, s56, s54"); a(f"s_cmp_lt_u32 s56, {cal}"); a("s_cbranch_scc1 L_cal")
    if stamp: stamp_out()
    lab("L_end")
    a("s_endpgm")

    cm("=============== out-of-line pieces of the K phase")
    lab("L_kbias")
    a(f"v_mfma_f32_32x32x16_bf16 {vr(S0, 16)}, {vr(KF, 4)}, {vr(Q0, 4)}, {vr(S0, 16)}")
    a("s_branch L_k1")
    lab("L_kidle")
    a(f"s_cmp_eq_u32 s{sW}, 5"); a("s_cbranch_scc1 L_hs")
    a(f"s_cmp_eq_u32 s{sW}, 6"); a("s_cbranch_scc1 L_tree")
    a("s_branch L_knext")
    lab("L_tree")
    a(f"s_cmp_lg_u32 s{sMem}, 0"); a("s_cbranch_scc1 L_knext")
    a(f"s_cmp_eq_u32 s{sCnt}, 30"); a("s_cbranch_scc1 L_tree2")
    a(f"s_cmp_lg_u32 s{sCnt}, 32"); a("s_cbranch_scc1 L_knext")
    cm("tree tokens, step 1: K/V -> LDS, mask -> registers")
    k_offsets()
    a(f"s_lshl_b32 s45, s{sPair}, 12"); a("s_movk_i32 s51, 4096")
    a("s_add_u32 s20, s10, s45"); a("s_addc_u32 s21, s11, 0"); a("s_mov_b32 s22, 4096"); a("s_mov_b32 s23, 0x20000")
    a(f"s_mov_b32 m0, {L_TK}")
    a("s_add_u32 s28, s12, s45"); a("s_addc_u32 s29, s13, 0"); a("s_mov_b32 s30, 4096"); a("s_mov_b32 s31, 0x20000")
    for j in range(4): a(f"buffer_load_dwordx4 v{vOff[j]}, {SS}, 0 offen offset:{j*1024} lds")
    a(f"s_mov_b32 m0, {L_TK + 4096}")
    a(f"s_lshr_b32 s50, s{sPair}, 4"); a("s_lshl_b32 s50, s50, 9")
    for j in range(4): a(f"buffer_load_dwordx4 v{vOff[j]}, {SS}, s51 offen offset:{j*1024} lds")
    v_offset()
    a(f"s_mov_b32 m0, {L_TV}")
    a("s_add_u32 s36, s14, s50"); a("s_addc_u32 s37, s15, 0"); a("s_mov_b32 s38, 512"); a("s_mov_b32 s39, 0x20000")
    for j in range(4): a(f"buffer_load_dwordx4 v{vOff[0]}, {SQ}, 0 offen offset:{j*1024} lds")
    a(f"v_and_b32 v{vU}, 15, v{vR}"); a(f"v_lshlrev_b32 v{vU}, 5, v{vU}"); a(f"v_lshl_add_u32 v{vU}, v{vH}, 3, v{vU}")
    TM = PB + 18 * 8
    a(f"buffer_load_dwordx2 {vr(TM, 2)}, v{vU}, {SM}, 0 offen")
    a(f"buffer_load_dwordx2 {vr(TM+2, 2)}, v{vU}, {SM}, 0 offen offset:16")
    a("s_branch L_knext")
    lab("L_tree2")
    cm("tree tokens, step 2: score bias (1-mask) * -1e9 / scale, then the ordinary tile code")
    big = 1e9 * math.sqrt(128)
    a(f"s_mov_b32 s51, {f32(big)}")
    a(f"v_mov_b32 v{vU}, {f32(-big)}")
    for j in range(8, 16): a(f"v_mov_b32 v{S0+j}, 0xff800000")
    a("s_waitcnt vmcnt(0)")
    for j in range(4):
        a(f"v_lshlrev_b32 v{S0+2*j}, 16, v{TM+j}"); a(f"v_and_b32 v{S0+2*j+1}, 0xffff0000, v{TM+j}")
    for j in range(8): a(f"v_fma_f32 v{S0+j}, v{S0+j}, s51, v{vU}")
    a(f"s_mov_b32 s{sCur}, {18*8}"); a(f"s_mov_b32 s50, {L_TK}")
    a("s_branch L_ktile")
    cm("hand-off word: bit 0 start, 1 acknowledge, 2 ticket, 3 data; +8 for the second workgroup. Only changes against the")
    cm("value seen at my own start count, and nobody draws a ticket before both have taken that snapshot.")
    def hs_poll(again, done):
        a(f"v_mov_b32 v{vU}, 0")
        a(f"global_load_dword v{vU}, v{vU}, s[66:67] sc1")
        a("s_waitcnt vmcnt(0)")
        a(f"v_readfirstlane_b32 s50, v{vU}")
        a(f"s_xor_b32 s50, s50, s{sSnap}"); a(f"s_lshr_b32 s50, s50, s{sOt}")
        a("s_and_b32 s51, s50, 3"); a(f"s_cbranch_scc0 {again}")
        a(f"s_mov_b32 s{sSt}, 2")
        a("s_bitcmp1_b32 s50, 0"); a(f"s_cbranch_scc0 {done}")
        a(f"s_lshl_b32 s51, 2, s{sMy}"); a("s_atomic_xor s51, s[66:67], 0")
        a("s_waitcnt lgkmcnt(0)")
        a(f"s_branch {done}")
    lab("L_hs")
    a(f"s_cmp_eq_u32 s{sSt}, 2"); a("s_cbranch_scc1 L_knext")
    a(f"s_cmp_eq_u32 s{sSt}, 1"); a("s_cbranch_scc1 L_hs1")
    a(f"s_add_u32 s50, s{sCnt}, s{sMem}"); a("s_cmp_gt_u32 s50, 32"); a("s_cbranch_scc1 L_knext")
    a(f"s_lshl_b32 s{sSnap}, 1, s{sMy}"); a(f"s_atomic_xor s{sSnap}, s[66:67], 0 glc")
    a(f"s_mov_b32 s{sSt}, 1")
    a("s_waitcnt lgkmcnt(0)")
    a("s_branch L_knext")
    lab("L_hs1")
    a(f"s_cmp_gt_u32 s{sCnt}, 28"); a("s_cbranch_scc1 L_knext")
    hs_poll("L_knext", "L_knext")
    lab("L_hsfin")
    a(f"s_mov_b32 s71, {BOUND}")
    lab("L_hsw")
    a(f"s_cmp_eq_u32 s{sSt}, 2"); a("s_cbranch_scc1 L_stage")
    a("s_sub_u32 s71, s71, 1"); a("s_cbranch_scc1 L_stage")
    hs_poll("L_hsw", "L_stage")
    check_hazards([x for x in L if not x.startswith(".")])
    out = HEADER + f"; @launch grid=(256,1,1) block=(512,1,1) lds={LDS}\n"
    out += '.amdgcn_target "amdgcn-amd-amdhsa--gfx950"\n.text\n' + f".globl {NAME}\n.p2align 8\n.type {NAME},@function\n{NAME}:\n"
    out += "\n".join(L) + "\n"
    out += '.section .rodata,"a"\n.p2align 6\n' + f".amdhsa_kernel {NAME}\n"
    out += f"  .amdhsa_next_free_vgpr 256\n  .amdhsa_next_free_sgpr 96\n  .amdhsa_accum_offset 256\n"
    out += "  .amdhsa_group_segment_fixed_size 0\n  .amdhsa_kernarg_size 72\n  .amdhsa_user_sgpr_count 2\n"
    out += "  .amdhsa_user_sgpr_kernarg_segment_ptr 1\n  .amdhsa_system_sgpr_workgroup_id_x 1\n.end_amdhsa_kernel\n"
    return out

if __name__ == "__main__":
    out = sys.argv[1]
    kw = {}
    for x in sys.argv[2:]:
        k, v = x.split("=", 1)
        if v in ("True", "False"): v = v == "True"
        else:
            try: v = int(v)
            except ValueError: pass
        kw[k] = v
    open(out, "w").write(gen(**kw))
```

```python
import sys, struct, math
from hz import check_hazards
NAME = "standalone__tree_speculative_verify_tree_attention_over_candidate_token_tree__sampling_kernel"
HEADER = open("standalone__tree_speculative_verify_tree_attention_over_candidate_token_tree__sampling.s.ref").read().split("; Override launch")[0]
DOC = """; Workgroups wg and wg^8 share one (batch, kv-head): the first takes 126 tiles of 32 keys plus the tree tokens, the second 130.
"""

def f32(x): return "0x%08x" % struct.unpack("<I", struct.pack("<f", x))[0]

def gen(levels="19.5,20,21,23,32", start=1, lmap="00111223", cps="4,10,16,22,28,34,40,46,52,57", SP=63, LH=32, jbits="12,13,14,10,11", mbit=16,
        stamp=False, fl="nt", prio=3, xat=8, st4=False, st6=False, cal=0, ofl="", WSOFF=0, BOUND=1 << 22, pre=False, LH0=0, SP2=0, spoll=0):
    L = []
    def a(s): L.append("    " + s)
    def lab(s): L.append(s + ":")
    def cm(s): L.append("    ; " + s)
    def vr(b, n): return f"v[{b}:{b+n-1}]"
    RB = 32768
    L_PS = 3 * RB
    L_Q, L_TK = L_PS, L_PS + 8192
    L_MI = L_PS + 16384
    L_TV = L_MI + 17408
    L_TP = L_TV + 4096
    L_ML = L_TP + 2048
    L_CW = L_ML + 1792
    LDS = L_ML + 2048 + 1024
    W_WORD = WSOFF
    W_RANK = WSOFF + 65536
    W_DATA = WSOFF + 262144
    vLane, vH, vR, vMIa = 96, 97, 98, 99
    vM, vMC, vL, vT, vU, vAL = 101, 102, 103, 1, 6, 7
    vTmp = [0, 100]
    Q0, KF, S0, vKrd, PB = 8, 40, 72, list(range(88, 96)), 104
    PF, VF, O0, DT = 8, 40, 72, 88
    vVa, vPa, vZ, vMla = 2, 3, 4, 5
    vOff = [40, 41, 42, 43]
    sPair, sMem, sK, sT, sBuf, sC, sCnt, sJ, sSlot, sCur, sBase, sW, sSnap, sSt, sMy, sOt = 40, 41, 42, 43, 44, 46, 47, 48, 49, 60, 61, 59, 62, 63, 64, 65
    sLim, sStep, sT0, sAck, sN = 68, 70, 48, 94, 95
    SS, SQ, SO, SM, SD = "s[20:23]", "s[28:31]", "s[32:35]", "s[36:39]", "s[24:27]"
    c = (128 ** -0.5) * math.log2(math.e)
    jb = [int(x) for x in str(jbits).split(",")]
    def B(j): return sum(((j >> i) & 1) << b for i, b in enumerate(jb))
    maskR = sum(1 << b for b in range(10, 21) if b not in jb and b != mbit)
    lowR = (maskR & -maskR).bit_length() - 1
    lv = [float(x) for x in str(levels).split(",")]
    cp = [int(x) for x in str(cps).split(",")] if cps != "" else []
    assert len(cp) <= 16
    lm = [int(ch) for ch in str(lmap).zfill(8)]
    def st(n):
        if st6: a(f"s_memrealtime s[{72+2*n}:{73+2*n}]")

    def stamp_out():
        a("s_waitcnt vmcnt(0)")
        a("s_memrealtime s[56:57]")
        a("s_getreg_b32 s58, hwreg(HW_REG_XCC_ID)")
        a("s_waitcnt lgkmcnt(0)")
        a("v_mov_b32 v8, s54"); a("v_mov_b32 v9, s56"); a("v_mov_b32 v10, s58");  a("v_mov_b32 v11, 0")
        a("s_lshl_b32 s50, s2, 3"); a("s_add_u32 s50, s50, s3"); a("s_lshl_b32 s50, s50, 4")
        a("v_mov_b32 v12, s50")
        a("s_mov_b64 exec, 1")
        a("global_store_dwordx4 v12, v[8:11], s[52:53]")
    def ids():
        a(f"v_and_b32 v{vLane}, 63, v0")
        a(f"s_lshr_b32 s{sPair}, s2, 4"); a(f"s_lshl_b32 s{sPair}, s{sPair}, 3"); a("s_and_b32 s50, s2, 7"); a(f"s_or_b32 s{sPair}, s{sPair}, s50")
        a(f"s_bfe_u32 s{sMem}, s2, 0x10003")
    def k_offsets():
        cm("K-shaped DMA source offsets: row rr = lane>>4, slot p = lane&15 -> rr*256 + ((p ^ (4j+rr)) * 16)")
        a(f"v_lshlrev_b32 v{vTmp[0]}, 4, v{vLane}")
        a(f"v_and_b32 v{vTmp[1]}, 0x30, v{vLane}")
        a(f"v_xor_b32 v{vOff[0]}, v{vTmp[0]}, v{vTmp[1]}")
        for j in range(1, 4): a(f"v_xor_b32 v{vOff[j]}, {64*j}, v{vOff[0]}")
    def v_offset():
        cm("V DMA source offset: rr*256 + ((p ^ 4rr) * 16)")
        a(f"v_lshlrev_b32 v{vTmp[0]}, 4, v{vLane}")
        a(f"v_and_b32 v{vTmp[1]}, 0x30, v{vLane}")
        a(f"v_lshlrev_b32 v{vTmp[1]}, 2, v{vTmp[1]}")
        a(f"v_xor_b32 v{vOff[0]}, v{vTmp[0]}, v{vTmp[1]}")
    def nextbuf():
        a(f"s_add_u32 s{sBuf}, s{sBuf}, {RB}")
        a(f"s_cmp_eq_u32 s{sBuf}, {3*RB}"); a(f"s_cselect_b32 s{sBuf}, 0, s{sBuf}")

    a("s_load_dwordx16 s[4:19], s[0:1], 0")
    a("s_load_dwordx2 s[52:53], s[0:1], 64")
    if stamp or cal: a("s_memrealtime s[54:55]")
    a("v_readfirstlane_b32 s3, v0")
    a("s_cmp_ge_u32 s2, 256"); a("s_cbranch_scc1 L_end")
    a("s_lshr_b32 s3, s3, 6")
    a("s_cbranch_scc1 L_cons")
    cm("=============== loader wave")
    if prio: a(f"s_setprio {prio}")
    ids(); k_offsets()
    for j in range(1, 4):
        assert B(j) >= 1024*j
        a(f"v_mov_b32 v{vOff[j]+4}, v{vOff[j]}")
        a(f"v_add_u32 v{vOff[j]}, {B(j) - 1024*j}, v{vOff[j]}")
    a(f"s_lshl_b32 s50, s{sPair}, 13"); a("s_mov_b32 s30, 8192"); a("s_mov_b32 s31, 0x20000"); a("s_movk_i32 s51, 4096")
    a(f"s_lshl_b32 s45, s{sPair}, 21")
    a("s_mov_b32 s22, 0x200000"); a("s_mov_b32 s23, 0x20000")
    a(f"s_mul_i32 s46, s{sMem}, {B(16)}"); a(f"s_add_u32 s46, s46, {maskR}")
    a(f"s_mov_b32 s{sBuf}, 0")
    def vm(x, n):
        lo = int(x); fr = x - lo
        return lo + (1 if (n % 16) < fr * 16 else 0) - 1
    def half(x):
        for g in range(4):
            a(f"s_add_u32 m0, s{sBuf}, {g*4096}"); a(f"s_add_u32 s{sT}, s46, {B(4*g)}")
            for j in range(4):
                if x: a(f"s_waitcnt vmcnt({vm(x, 0)})")
                a(f"buffer_load_dwordx4 v{vOff[j]}, {SS}, s{sT} offen offset:{j*1024} {fl} lds")
    a("s_waitcnt lgkmcnt(0)")
    a("s_add_u32 s20, s6, s45"); a("s_addc_u32 s21, s7, 0")
    half(0)
    a(f"s_mov_b32 m0, {L_Q}"); a("s_add_u32 s28, s4, s50"); a("s_addc_u32 s29, s5, 0")
    for j in range(4): a(f"buffer_load_dwordx4 v{vOff[j] + (4 if j else 0)}, {SQ}, 0 offen offset:{j*1024} lds")
    a(f"s_mov_b32 m0, {L_Q + 4096}"); a("s_nop 0")
    for j in range(4): a(f"buffer_load_dwordx4 v{vOff[j] + (4 if j else 0)}, {SQ}, s51 offen offset:{j*1024} lds")
    cm("rounds at which something besides streaming is due: a progress check, its result, the switch to V, the sprint, the end")
    def evm(n): return sum(1 << (r - 1) for r in set(cp) | set(r + 1 for r in cp) | {n, 2 * n} | ({SP} if SP < 2 * n else set()) | ({SP2} if SP2 else set()))
    cpm = sum(1 << r for r in cp)
    a(f"s_lshl_b32 s48, s{sMem}, {mbit}"); a(f"s_mov_b32 s{sK}, s48"); a(f"s_mov_b32 s{sBuf}, {RB}"); a(f"s_mov_b32 s{sCnt}, 0")
    a(f"s_add_u32 s{sN}, s{sMem}, 31"); a(f"s_add_u32 s49, s{sN}, 1")
    a(f"s_mov_b32 s84, {(evm(31) | evm(32)) & 0xffffffff:#x}"); a(f"s_mov_b32 s85, {(evm(31) | evm(32)) >> 32:#x}")
    a(f"s_mov_b32 s86, {cpm & 0xffffffff:#x}"); a(f"s_mov_b32 s87, {cpm >> 32:#x}")
    a(f"s_mov_b32 s88, {start}"); a("s_lshr_b32 s89, s2, 4"); a("s_and_b32 s90, s2, 7")
    a(f"s_lshl_b32 s91, s{sMem}, 8"); a(f"s_add_u32 s91, s91, {W_RANK}"); a("s_mov_b32 s92, -1")
    if st4: a("s_mov_b32 s74, 0"); a("v_mov_b32 v20, 0"); a("v_mov_b32 v21, 0"); a("v_mov_b32 v22, 0")
    def rnd(x, sfx):
        bar_at = min(n for n in range(32) if vm(x, n) <= n)
        for g in range(8):
            if 4 * g == xat:
                a(f"s_cmp_lg_u32 s{sCnt}, s49"); a(f"s_cbranch_scc1 L_nx{sfx}")
                if st4: a("s_memrealtime s[76:77]")
                a("s_barrier")
                if st4: a("s_memrealtime s[78:79]")
                lab("L_nx" + sfx)
            a(f"s_add_u32 m0, s{sBuf}, {g*4096}"); a(f"s_add_u32 s{sT}, s{sK}, {B(4*g)}")
            for j in range(4):
                n = 4 * g + j
                a(f"s_waitcnt vmcnt({vm(x, n)})")
                a(f"buffer_load_dwordx4 v{vOff[j]}, {SS}, s{sT} offen offset:{j*1024} {fl} lds")
                if n == bar_at:
                    if st4: a("s_memrealtime s[70:71]")
                    a("s_barrier")
                    if st4: a("s_memrealtime s[72:73]")
    order = [start] + [i for i in range(len(lv)) if i != start]
    for i in order:
        lab(f"L_lv{i}")
        rnd(lv[i], str(i))
        cm("next round: the source offset counts through the address bits a round leaves fixed; buffers rotate mod 3")
        nextbuf()
        if st4:
            a("s_waitcnt lgkmcnt(0)"); a("s_mov_b32 m0, s74"); a("s_add_u32 s74, s74, 1")
            a("v_writelane_b32 v20, s70, m0"); a("v_writelane_b32 v21, s72, m0")
        a(f"s_or_b32 s{sK}, s{sK}, {(~maskR) & 0xffffffff:#x}"); a(f"s_add_u32 s{sK}, s{sK}, 1"); a(f"s_and_b32 s{sK}, s{sK}, {maskR:#x}")
        a(f"s_or_b32 s{sK}, s{sK}, s48")
        a(f"s_add_u32 s50, s{sCnt}, 1")
        a(f"s_bitcmp1_b64 s[84:85], s{sCnt}"); a(f"s_mov_b32 s{sCnt}, s50")
        a(f"s_cbranch_scc0 L_lv{i}")
        if i != order[-1]: a("s_branch L_event")
    lab("L_event")
    a(f"s_lshl_b32 s50, s{sN}, 1"); a(f"s_cmp_eq_u32 s{sCnt}, s50"); a("s_cbranch_scc1 L_ldfin")
    a(f"s_cmp_lg_u32 s{sCnt}, s{sN}"); a("s_cbranch_scc1 L_nosw")
    cm("K is done, go on with V (the second workgroup, one round behind by now, starts at round 1 to stay beside the first)")
    a("s_add_u32 s20, s8, s45"); a("s_addc_u32 s21, s9, 0")
    a(f"s_lshl_b32 s{sK}, s{sMem}, {lowR}"); a(f"s_or_b32 s{sK}, s{sK}, s48")
    v_offset()
    for j in range(1, 4): a(f"v_add_u32 v{vOff[j]}, {B(j) - 1024*j}, v{vOff[0]}")
    lab("L_nosw")
    if cp:
        cm("load balance: the later this workgroup reached the last check among its group of eight, the more it keeps in flight")
        a(f"s_cmp_lg_u32 s{sCnt}, s92"); a("s_cbranch_scc1 L_noapply")
        a("s_waitcnt lgkmcnt(0)")
        word = sum(v << (4 * i) for i, v in enumerate(lm))
        a("s_min_u32 s93, s93, 7"); a("s_lshl_b32 s93, s93, 2")
        a(f"s_lshr_b32 s93, {word:#x}, s93"); a("s_and_b32 s88, s93, 15")
        lab("L_noapply")
        a(f"s_bitcmp1_b64 s[86:87], s{sCnt}"); a("s_cbranch_scc0 L_nocp")
        a("s_and_b32 s50, s89, 15"); a("s_lshl_b32 s50, s50, 9"); a("s_add_u32 s50, s50, s91")
        a("s_add_u32 s66, s52, s50"); a("s_addc_u32 s67, s53, 0")
        a("s_mov_b32 s93, 1"); a("s_atomic_add s93, s[66:67], 0 glc")
        a("s_add_u32 s91, s91, 8192"); a("s_add_u32 s89, s89, s90"); a(f"s_add_u32 s92, s{sCnt}, 1")
        lab("L_nocp")
    a(f"s_mul_i32 s50, s{sCnt}, s{sMem}")
    a(f"s_cmp_ge_u32 s50, {SP}"); a(f"s_cbranch_scc1 L_lv{len(lv) - 1}")
    if SP2: a(f"s_cmp_ge_u32 s50, {SP2}"); a(f"s_cbranch_scc1 L_lv{len(lv) - 2}")
    for i in order[1:-1]:
        a(f"s_cmp_eq_u32 s88, {i}"); a(f"s_cbranch_scc1 L_lv{i}")
    a(f"s_branch L_lv{start}")
    lab("L_ldfin")
    if LH0:
        a(f"s_cmp_lg_u32 s{sMem}, 0"); a("s_cbranch_scc1 L_h1")
        half(float(LH0))
        a("s_branch L_h2")
        lab("L_h1")
    half(float(LH))
    lab("L_h2")
    a("s_waitcnt vmcnt(16)"); a("s_barrier")
    a("s_waitcnt vmcnt(0)")
    if st4: a("s_memrealtime s[80:81]")
    a("s_barrier")
    if st4:
        a("s_memrealtime s[82:83]"); a("s_waitcnt lgkmcnt(0)")
        for i, r in enumerate((54, 76, 78, 80, 82)): a(f"v_writelane_b32 v22, s{r}, {i}")
        a("s_lshl_b32 s50, s2, 10"); a("s_add_u32 s50, s50, 0x200000")
        a(f"v_lshl_add_u32 v4, v{vLane}, 2, s50")
        a("global_store_dword v4, v20, s[52:53]"); a("global_store_dword v4, v21, s[52:53] offset:256"); a("global_store_dword v4, v22, s[52:53] offset:512")
    if stamp: stamp_out()
    a("s_endpgm")

    L.append(".p2align 6")
    lab("L_cons")
    cm("=============== consumers")
    ids()
    a(f"s_sub_u32 s{sW}, s3, 1")
    a(f"v_lshrrev_b32 v{vH}, 5, v{vLane}")
    a(f"v_and_b32 v{vR}, 31, v{vLane}")
    a(f"s_lshl_b32 s{sMy}, s{sMem}, 3"); a(f"s_xor_b32 s{sOt}, s{sMy}, 8")
    a(f"s_lshl_b32 s50, s{sPair}, 8"); a(f"s_add_u32 s50, s50, {W_WORD}")
    a(f"s_cmp_lg_u32 s{sW}, 4")
    a("s_waitcnt lgkmcnt(0)")
    a("s_cbranch_scc1 L_noq")
    cm("wave 5 clears this workgroup's share of the arrival counters")
    a("s_lshl_b32 s45, s2, 8")
    if cp:
        a(f"s_add_u32 s45, s45, {W_RANK}")
        a(f"v_lshl_add_u32 v{vT}, v{vLane}, 16, s45"); a(f"v_mov_b32 v{vU}, 0")
        a(f"s_cmp_lt_u32 s2, {max(0, 32 * len(cp) - 256)}"); a("s_cselect_b32 exec_lo, 3, 1"); a("s_mov_b32 exec_hi, 0")
        a(f"global_store_dword v{vT}, v{vU}, s[52:53] sc1")
        a("s_mov_b64 exec, -1")
    lab("L_noq")
    a("s_add_u32 s66, s52, s50"); a("s_addc_u32 s67, s53, 0")
    a(f"s_cmp_lg_u32 s{sW}, 5"); a("s_cbranch_scc1 L_nohs")
    a(f"s_lshl_b32 s{sSnap}, 1, s{sMy}"); a(f"s_atomic_xor s{sSnap}, s[66:67], 0 glc")
    lab("L_nohs")
    cm("LDS read addresses for K-shaped tiles: r*256 + ((h ^ (r&15)) ^ 2s)*16, first pointing at Q")
    a(f"v_and_b32 v{vT}, 15, v{vR}")
    a(f"v_xor_b32 v{vT}, v{vT}, v{vH}")
    a(f"v_lshlrev_b32 v{vT}, 4, v{vT}")
    a(f"v_lshl_add_u32 v{vT}, v{vR}, 8, v{vT}")
    a(f"v_add_u32 v{vKrd[0]}, {L_Q}, v{vT}")
    for s in range(1, 8): a(f"v_xor_b32 v{vKrd[s]}, {32*s}, v{vKrd[0]}")
    cm("transposing V reads of column block w: row = 4h + r', chunk = (4w + 2gg + (c>>1)) ^ 4r', + 8*(c&1)")
    a(f"v_bfe_u32 v{vU}, v{vLane}, 2, 2")
    a(f"v_lshl_add_u32 v{vT}, v{vH}, 2, v{vU}")
    a(f"v_lshlrev_b32 v{vVa}, 8, v{vT}")
    a(f"v_xor_b32 v{vU}, s{sW}, v{vU}"); a(f"v_and_b32 v{vU}, 3, v{vU}")
    a(f"v_lshl_add_u32 v{vVa}, v{vU}, 6, v{vVa}")
    a(f"v_and_b32 v{vU}, 3, v{vLane}")
    a(f"v_lshl_add_u32 v{vVa}, v{vU}, 3, v{vVa}")
    a(f"v_and_b32 v{vU}, 16, v{vLane}")
    a(f"v_lshl_add_u32 v{vVa}, v{vU}, 1, v{vVa}")
    a(f"v_lshlrev_b32 v{vPa}, 4, v{vLane}"); a(f"v_add_u32 v{vPa}, {L_PS}, v{vPa}")
    a(f"v_mov_b32 v{vZ}, 0")
    a(f"v_lshlrev_b32 v{vMla}, 3, v{vR}"); a(f"v_add_u32 v{vMla}, {L_ML}, v{vMla}")
    a(f"s_mov_b32 s{sBase}, {L_Q}"); a(f"s_mov_b32 s{sC}, {f32(c)}"); a(f"s_add_u32 s{sCnt}, s{sMem}, 32")
    a(f"s_mov_b32 s{sBuf}, 0"); a(f"s_mov_b32 s{sJ}, s{sW}"); a(f"s_mov_b32 s{sSlot}, 0"); a(f"s_mov_b32 s{sSt}, 0")
    a(f"s_mov_b32 s{sLim}, 1"); a(f"s_mov_b32 s{sStep}, 5")
    a(f"s_mul_i32 s50, s{sW}, {19*128}"); a(f"s_add_u32 s50, s50, {L_MI}")
    a(f"v_lshl_add_u32 v{vMIa}, v{vR}, 2, s50")
    a(f"v_mov_b32 v{vL}, 0"); a(f"v_mov_b32 v{vM}, {f32(-3.0e38)}"); a(f"v_mov_b32 v{vMC}, v{vM}")
    a(f"s_mul_i32 s50, s{sPair}, 18432"); a(f"s_mul_i32 s51, s{sW}, 4608"); a("s_add_u32 s50, s50, s51"); a(f"s_add_u32 s50, s50, {W_DATA}")
    a("s_add_u32 s24, s52, s50"); a("s_addc_u32 s25, s53, 0"); a("s_movk_i32 s26, 4608"); a("s_mov_b32 s27, 0x20000")
    a("s_mov_b32 s32, s16"); a("s_mov_b32 s33, s17"); a("s_mov_b32 s34, 0x100000"); a("s_mov_b32 s35, 0x20000")
    a(f"s_lshl_b32 s50, s{sPair}, 13"); a(f"s_lshl_b32 s51, s{sW}, 6"); a("s_add_u32 s69, s50, s51")
    a("s_barrier")
    for s in range(8): a(f"ds_read_b128 {vr(Q0 + 4*s, 4)}, v{vKrd[s]}")
    a("s_waitcnt lgkmcnt(0)")
    a("s_branch L_kgo")
    lab("L_kr")
    a("s_barrier")
    lab("L_kgo")
    a(f"s_cmp_gt_u32 s{sJ}, s{sLim}"); a("s_cbranch_scc1 L_kidle")
    a(f"s_lshl_b32 s50, s{sJ}, 13"); a(f"s_add_u32 s50, s50, s{sBuf}")
    a(f"s_mov_b32 s{sCur}, s{sSlot}"); a(f"s_add_u32 s{sSlot}, s{sSlot}, 8")
    lab("L_ktile")
    a(f"s_sub_u32 s51, s50, s{sBase}"); a(f"s_mov_b32 s{sBase}, s50")
    for s in range(8):
        a(f"v_add_u32 v{vKrd[s]}, s51, v{vKrd[s]}")
        a(f"ds_read_b128 {vr(KF + 4*s, 4)}, v{vKrd[s]}")
    a(f"s_lshl_b32 s50, s{sCur}, 4")
    a(f"v_add_u32 v{vTmp[1]}, s50, v{vMIa}")
    a(f"s_cmp_gt_u32 s{sJ}, 3")
    a("s_waitcnt lgkmcnt(7)")
    a("s_cbranch_scc1 L_kbias")
    a(f"v_mfma_f32_32x32x16_bf16 {vr(S0, 16)}, {vr(KF, 4)}, {vr(Q0, 4)}, 0")
    lab("L_k1")
    for s in range(1, 8):
        a(f"s_waitcnt lgkmcnt({7-s})")
        a(f"v_mfma_f32_32x32x16_bf16 {vr(S0, 16)}, {vr(KF + 4*s, 4)}, {vr(Q0 + 4*s, 4)}, {vr(S0, 16)}")
    a("s_nop 11")
    cm("online softmax; the reference is the running maximum rounded up to a whole power of two")
    a(f"v_max3_f32 v{vT}, v{S0}, v{S0+1}, v{vM}")
    a(f"v_max3_f32 v{vU}, v{S0+2}, v{S0+3}, v{S0+4}")
    for j in range(5, 15, 4):
        a(f"v_max3_f32 v{vT}, v{S0+j}, v{S0+j+1}, v{vT}")
        if j + 3 < 15: a(f"v_max3_f32 v{vU}, v{S0+j+2}, v{S0+j+3}, v{vU}")
    a(f"v_max3_f32 v{vT}, v{S0+15}, v{vU}, v{vT}")
    a(f"v_mov_b32 v{vU}, v{vT}")
    a("s_nop 1")
    a(f"v_permlane32_swap_b32 v{vT}, v{vU}")
    a(f"v_max_f32 v{vM}, v{vT}, v{vU}")
    a(f"v_mul_f32 v{vT}, s{sC}, v{vM}")
    a(f"v_ceil_f32 v{vT}, v{vT}")
    a(f"v_sub_f32 v{vAL}, v{vMC}, v{vT}")
    a(f"v_mov_b32 v{vMC}, v{vT}")
    a(f"ds_write_b32 v{vTmp[1]}, v{vT}")
    a(f"v_exp_f32 v{vAL}, v{vAL}")
    for j in range(16): a(f"v_fma_f32 v{S0+j}, v{S0+j}, s{sC}, -v{vMC}")
    for j in range(16): a(f"v_exp_f32 v{S0+j}, v{S0+j}")
    a(f"v_mul_f32 v{vL}, v{vL}, v{vAL}")
    a(f"s_set_gpr_idx_on s{sCur}, gpr_idx(DST)"); a("s_mov_b32 s50, 0x3f803f80")
    for j in range(8): a(f"v_cvt_pk_bf16_f32 v{PB+j}, v{S0+2*j}, v{S0+2*j+1}")
    a(f"s_set_gpr_idx_on s{sCur}, gpr_idx(SRC0)"); a("s_nop 0")
    for j in range(8): a(f"v_dot2_f32_bf16 v{vL}, v{PB+j}, s50, v{vL}")
    a("s_set_gpr_idx_off")
    lab("L_knext")
    cm("tile t belongs to consumer t mod 7")
    a(f"s_add_u32 s{sJ}, s{sJ}, s{sStep}"); a(f"s_sub_u32 s50, s{sJ}, 7"); a(f"s_cselect_b32 s{sJ}, s{sJ}, s50")
    a(f"s_mov_b32 s{sLim}, 3"); a(f"s_mov_b32 s{sStep}, 3")
    nextbuf()
    a(f"s_sub_u32 s{sCnt}, s{sCnt}, 1"); a(f"s_cmp_lg_u32 s{sCnt}, 0"); a("s_cbranch_scc1 L_kr")

    cm("=============== between K and V: common reference M and sum L of this workgroup")
    a(f"v_mov_b32 v{vU}, v{vL}")
    a(f"s_lshl_b32 s50, s{sW}, 8")
    a(f"v_add_u32 v{vT}, s50, v{vMla}")
    a(f"v_permlane32_swap_b32 v{vL}, v{vU}")
    a(f"v_add_f32 v{vL}, v{vL}, v{vU}")
    a(f"ds_write_b64 v{vT}, {vr(vMC, 2)}")
    for j in range(0, 16, 2): a(f"v_mov_b64 {vr(O0+j, 2)}, 0")
    a(f"s_lshl_b32 s{sT0}, s{sMem}, 2"); a(f"s_add_u32 s{sT0}, s{sT0}, 2")
    a(f"s_add_u32 s{sCnt}, s{sMem}, 32"); a(f"s_mov_b32 s{sBase}, 0")
    a(f"s_lshl_b32 s{sSlot}, s{sMem}, 1"); a(f"s_sub_u32 s{sSlot}, s{sSlot}, 1")
    a("s_waitcnt lgkmcnt(0)")
    a("s_barrier")
    for k in range(7): a(f"ds_read_b32 v{KF + k}, v{vMla} offset:{256*k}")
    cm("wave 7 of the first workgroup stages the tree tile's probabilities (slot 18) now; it owns no tile of the first V round")
    a(f"s_mov_b32 s{sCur}, {18*8}"); a(f"s_mov_b32 s50, {L_TP - L_PS}")
    a(f"s_sub_u32 s51, s{sW}, s{sMem}"); a("s_cmp_eq_u32 s51, 6")
    a("s_waitcnt lgkmcnt(0)")
    a(f"v_max3_f32 v{vMC}, v{KF}, v{KF+1}, v{KF+2}"); a(f"v_max3_f32 v{vMC}, v{vMC}, v{KF+3}, v{KF+4}"); a(f"v_max3_f32 v{vMC}, v{vMC}, v{KF+5}, v{KF+6}")
    a("s_cbranch_scc1 L_dump")
    lab("L_stage")
    cm("stage my tile of the coming round (tiles t0 .. t0+3; the closing half round is tiles 0, 1), if I own one")
    a(f"s_cmp_eq_u32 s{sCnt}, 1"); a(f"s_cselect_b32 s{sT0}, 0, s{sT0}"); a(f"s_cselect_b32 s{sLim}, 1, 3")
    a(f"s_add_u32 s50, s{sT0}, 6"); a(f"s_sub_u32 s50, s50, s{sW}")
    a("s_mul_i32 s50, s50, 9363"); a("s_lshr_b32 s50, s50, 16")
    a(f"s_lshl_b32 s{sCur}, s50, 3")
    a(f"s_sub_u32 s50, s{sCur}, s50"); a(f"s_add_u32 s50, s50, s{sW}"); a(f"s_sub_u32 s50, s50, s{sT0}")
    a(f"s_cmp_gt_u32 s50, s{sLim}"); a("s_cbranch_scc1 L_vnext")
    a(f"s_lshl_b32 s50, s50, 11"); a(f"s_add_u32 s50, s50, s{sBase}")
    lab("L_dump")
    a(f"s_lshl_b32 s51, s{sCur}, 4")
    a(f"v_add_u32 v{vT}, s51, v{vMIa}")
    a(f"ds_read_b32 v{vT}, v{vT}")
    a(f"v_add_u32 v{vU}, s50, v{vPa}")
    a("s_waitcnt lgkmcnt(0)")
    a(f"v_sub_f32 v{vT}, v{vMC}, v{vT}")
    a(f"v_min_f32 v{vT}, {f32(255.0)}, v{vT}")
    a(f"v_cvt_u32_f32 v{vT}, v{vT}")
    a(f"v_mul_u32_u24 v{vT}, 0x800080, v{vT}")
    a(f"s_set_gpr_idx_on s{sCur}, gpr_idx(SRC0)"); a("s_nop 0")
    for j in range(8): a(f"v_pk_sub_u16 v{DT+j}, v{PB+j}, v{vT} clamp")
    a("s_set_gpr_idx_off")
    a(f"ds_write_b128 v{vU}, {vr(DT, 4)}"); a(f"ds_write_b128 v{vU}, {vr(DT+4, 4)} offset:1024")
    lab("L_vnext")
    a(f"s_add_u32 s{sT0}, s{sT0}, 4"); a(f"s_cmp_eq_u32 s{sT0}, 130"); a(f"s_cselect_b32 s{sT0}, 2, s{sT0}")
    a(f"v_add_u32 v{vT}, s{sBuf}, v{vVa}"); a(f"v_add_u32 v{vU}, s{sBase}, v{vPa}")
    a(f"s_xor_b32 s{sBase}, s{sBase}, 8192")
    nextbuf()
    a(f"s_sub_u32 s{sCnt}, s{sCnt}, 1")
    a(f"s_cmp_gt_u32 s{sW}, 3")
    a("s_waitcnt lgkmcnt(0)")
    a("s_cbranch_scc1 L_vside")
    if pre:
        a(f"s_cmp_le_i32 s{sCnt}, s{sSlot}"); a("s_cbranch_scc1 L_look")
    lab("L_vbar")
    a(f"s_cmp_eq_u32 s{sCnt}, 0")
    if st6:
        a("s_memrealtime s[74:75]")
    a("s_barrier")
    if st6:
        a("s_memrealtime s[76:77]")
    lab("L_vbody")
    if spoll: a(f"ds_read_b32 v{vTmp[1]}, v{vPa} offset:{L_CW - L_PS}")
    def vreads(t):
        for u in range(2):
            for z in range(2): a(f"ds_read_b64_tr_b16 {vr(VF + 8*t + 4*u + 2*z, 2)}, v{vT} offset:{8192*t + 4096*u + 2048*z}")
    def preads(t):
        for u in range(2): a(f"ds_read_b128 {vr(PF + 8*t + 4*u, 4)}, v{vU} offset:{2048*t + 1024*u}")
    def pvm(t):
        for u in range(2): a(f"v_mfma_f32_32x32x16_bf16 {vr(O0, 16)}, {vr(VF + 8*t + 4*u, 4)}, {vr(PF + 8*t + 4*u, 4)}, {vr(O0, 16)}")
    preads(0); vreads(0); preads(1); vreads(1)
    a("s_waitcnt lgkmcnt(6)"); pvm(0)
    a("s_cbranch_scc1 L_last")
    preads(2); vreads(2)
    a("s_waitcnt lgkmcnt(6)"); pvm(1)
    preads(3); vreads(3)
    a("s_waitcnt lgkmcnt(6)"); pvm(2)
    a(f"s_cmp_eq_u32 s{sCnt}, 20")
    a("s_waitcnt lgkmcnt(0)"); pvm(3)
    a("s_cbranch_scc0 L_stage")
    cm("once: the sum L; the tree tile (keys 0..15 only)")
    for k in range(7): a(f"ds_read_b64 {vr(KF + 2*k, 2)}, v{vMla} offset:{256*k}")
    a(f"v_mov_b32 v{vU}, {L_CW}"); a(f"ds_read_b32 v{vU}, v{vU}")
    a(f"v_add_u32 v{vT}, {L_TV}, v{vVa}")
    a(f"ds_read_b128 {vr(PF, 4)}, v{vPa} offset:{L_TP - L_PS}")
    for z in range(2): a(f"ds_read_b64_tr_b16 {vr(PF + 4 + 2*z, 2)}, v{vT} offset:{2048*z}")
    a(f"s_cmp_lg_u32 s{sMem}, 0")
    a("s_waitcnt lgkmcnt(0)")
    a(f"v_readfirstlane_b32 s{sSnap}, v{vU}")
    for k in range(7): a(f"v_sub_f32 v{KF+2*k}, v{KF+2*k}, v{vMC}")
    for k in range(7): a(f"v_exp_f32 v{KF+2*k}, v{KF+2*k}")
    a(f"v_mul_f32 v{vL}, v{KF}, v{KF+1}")
    for k in range(1, 7): a(f"v_fma_f32 v{vL}, v{KF+2*k}, v{KF+2*k+1}, v{vL}")
    a("s_cbranch_scc1 L_stage")
    a(f"v_mfma_f32_32x32x16_bf16 {vr(O0, 16)}, {vr(PF + 4, 4)}, {vr(PF, 4)}, {vr(O0, 16)}")
    a("s_branch L_stage")

    lab("L_last")
    cm("=============== closing half round and hand-off")
    PP, PM = 120, 136
    def addrs(r): a(f"v_lshlrev_b32 v{r}, 4, v{vLane}"); a(f"v_lshlrev_b32 v{r+1}, 3, v{vLane}"); a(f"v_add_u32 v{r+1}, 4096, v{r+1}")
    def fetch(r):
        a(f"buffer_load_dwordx2 {vr(PM, 2)}, v{r+1}, {SD}, 0 offen sc1")
        for x in range(4): a(f"buffer_load_dwordx4 {vr(PP + 4*x, 4)}, v{r}, {SD}, 0 offen offset:{1024*x} sc1")
    addrs(DT + 2)
    if spoll:
        a(f"v_readfirstlane_b32 s{sSt}, v{vTmp[1]}")
        a(f"s_mul_i32 s{sSt}, s{sSt}, s{sMem}")
        a(f"s_bitcmp1_b32 s{sSt}, 3"); a("s_cbranch_scc0 L_notyet")
        fetch(DT + 2)
        lab("L_notyet")
    a(f"s_cmp_lg_u32 s{sMem}, 0")
    a("s_waitcnt lgkmcnt(0)"); pvm(1)
    a("s_cbranch_scc1 L_merge")
    cm("first workgroup: publish, then raise the flag")
    a(f"buffer_store_dwordx2 {vr(vMC, 2)}, v{DT+3}, {SD}, 0 offen sc1")
    a("s_nop 9")
    for x in range(4): a(f"buffer_store_dwordx4 {vr(O0 + 4*x, 4)}, v{DT+2}, {SD}, 0 offen offset:{1024*x} sc1")
    st(3)
    a("s_mov_b32 s50, 8")
    a(f"s_cmp_lg_u32 s{sW}, 0")
    a("s_waitcnt vmcnt(0)")
    st(4)
    a("s_barrier")
    st(5)
    a("s_cbranch_scc1 L_done")
    a("s_atomic_xor s50, s[66:67], 0")
    a("s_branch L_done")
    lab("L_merge")
    st(3)
    if pre or spoll: a(f"s_bitcmp1_b32 s{sSt}, 3"); a("s_cbranch_scc1 L_have")
    a("s_barrier")
    st(4)
    fetch(DT + 2)
    lab("L_have")
    a(f"v_lshlrev_b32 v{DT+4}, 8, v{vR}"); a(f"v_lshl_add_u32 v{DT+4}, v{vH}, 4, v{DT+4}")
    FA, FB = 138, 140
    a("s_waitcnt vmcnt(4)")
    a(f"v_max_f32 v{vT}, v{vMC}, v{PM}")
    a(f"v_sub_f32 v{FA}, v{vMC}, v{vT}"); a(f"v_sub_f32 v{FB}, v{PM}, v{vT}")
    a(f"v_exp_f32 v{FA}, v{FA}"); a(f"v_exp_f32 v{FB}, v{FB}")
    a(f"v_mul_f32 v{vT}, v{FA}, v{vL}")
    a(f"v_fma_f32 v{vT}, v{FB}, v{PM+1}, v{vT}")
    a(f"v_rcp_f32 v{vT}, v{vT}")
    a("s_nop 0")
    a(f"v_mul_f32 v{FA}, v{FA}, v{vT}"); a(f"v_mul_f32 v{FB}, v{FB}, v{vT}")
    for j in range(8): a(f"v_pk_mul_f32 {vr(O0+2*j, 2)}, {vr(O0+2*j, 2)}, {vr(FA, 2)} op_sel_hi:[1,0]")
    for b in range(2):
        a(f"s_waitcnt vmcnt({2 if b == 0 else 1})")
        if b == 1: st(5)
        for j in range(4*b, 4*b + 4): a(f"v_pk_fma_f32 {vr(O0+2*j, 2)}, {vr(PP+2*j, 2)}, {vr(FB, 2)}, {vr(O0+2*j, 2)} op_sel_hi:[1,0,1]")
        for j in (0, 2, 1, 3): a(f"v_cvt_pk_bf16_f32 v{KF+4*b+j}, v{O0+8*b+2*j}, v{O0+8*b+2*j+1}")
        a(f"v_permlane32_swap_b32 v{KF+4*b}, v{KF+4*b+2}"); a("s_nop 0"); a(f"v_permlane32_swap_b32 v{KF+4*b+1}, v{KF+4*b+3}")
        a(f"buffer_store_dwordx4 {vr(KF+4*b, 4)}, v{DT+4}, {SO}, s69 offen offset:{32*b} {ofl}")
    st(6)
    lab("L_done")
    if st6:
        a("s_waitcnt vmcnt(0)"); a("s_memrealtime s[86:87]"); a("s_waitcnt lgkmcnt(0)")
        a(f"s_lshl_b32 s50, s{sMem}, 2"); a("v_mov_b32 v20, s50")
        for i in range(1, 8): a(f"v_writelane_b32 v20, s{72+2*i}, {i}")
        a("s_lshl_b32 s50, s2, 2"); a(f"s_add_u32 s50, s50, s{sW}"); a("s_lshl_b32 s50, s50, 8"); a("s_add_u32 s50, s50, 0x200000")
        a(f"v_lshl_add_u32 v21, v{vLane}, 2, s50")
        a("global_store_dword v21, v20, s[52:53]")
    if cal:
        lab("L_cal")
        a("s_memrealtime s[56:57]"); a("s_waitcnt lgkmcnt(0)"); a("s_sub_u32 s56, s56, s54"); a(f"s_cmp_lt_u32 s56, {cal}"); a("s_cbranch_scc1 L_cal")
    if stamp: stamp_out()
    lab("L_end")
    a("s_endpgm")

    if pre:
        lab("L_look")
        cm("second workgroup: look at the word before the last full round; if the other result was there, fetch it before the last half")
        a(f"s_cmp_eq_u32 s{sCnt}, 0"); a("s_cbranch_scc1 L_look2")
        a(f"global_load_dword v{vTmp[1]}, v{vZ}, s[66:67] sc1")
        a("s_branch L_vbar")
        lab("L_look2")
        addrs(142)
        a("s_waitcnt vmcnt(0)")
        a(f"v_readfirstlane_b32 s50, v{vTmp[1]}")
        a(f"s_xor_b32 s{sSt}, s50, s{sSnap}")
        a(f"s_bitcmp1_b32 s{sSt}, 3"); a("s_cbranch_scc0 L_vbar")
        fetch(142)
        a("s_branch L_vbar")
    lab("L_vside")
    cm("waves 5..7 only stage")
    a(f"s_cmp_eq_u32 s{sCnt}, 0"); a("s_cbranch_scc1 L_sidex")
    a("s_barrier")
    a(f"s_cmp_lg_u32 s{sCnt}, 24"); a("s_cbranch_scc1 L_stage")
    a(f"s_cmp_eq_u32 s{sW}, 5"); a("s_cbranch_scc1 L_hsfin")
    a("s_branch L_stage")
    lab("L_sidex")
    a(f"s_lshl_b32 s50, s{sMem}, 3"); a(f"s_add_u32 s50, s50, s{sW}"); a("s_cmp_lg_u32 s50, 13"); a("s_cbranch_scc1 L_end")
    cm("wave 6 of the second workgroup watches the word, then releases waves 1..4")
    if spoll:
        a("s_mov_b32 s50, 0"); a("s_atomic_or s50, s[66:67], 0 glc")
        a(f"v_mov_b32 v{vT}, {L_CW}")
        a("s_waitcnt lgkmcnt(0)")
        a(f"s_xor_b32 s50, s50, s{sSnap}"); a(f"v_mov_b32 v{vU}, s50")
        a(f"ds_write_b32 v{vT}, v{vU}")
        a("s_bitcmp1_b32 s50, 3")
        a("s_waitcnt lgkmcnt(0)")
        a("s_cbranch_scc1 L_seen")
    a(f"global_load_dword v{vU}, v{vZ}, s[66:67] sc1")
    a(f"s_mov_b32 s71, {BOUND}")
    a("s_barrier")
    lab("L_poll")
    a("s_waitcnt vmcnt(0)")
    a(f"v_readfirstlane_b32 s50, v{vU}")
    a(f"s_xor_b32 s50, s50, s{sSnap}")
    a("s_bitcmp1_b32 s50, 3"); a("s_cbranch_scc1 L_seen")
    a(f"global_load_dword v{vU}, v{vZ}, s[66:67] sc1")
    a("s_sub_u32 s71, s71, 1"); a("s_cbranch_scc0 L_poll")
    lab("L_seen")
    a("s_barrier")
    a("s_endpgm")

    cm("=============== out-of-line pieces of the K phase")
    lab("L_kbias")
    a(f"v_mfma_f32_32x32x16_bf16 {vr(S0, 16)}, {vr(KF, 4)}, {vr(Q0, 4)}, {vr(S0, 16)}")
    a("s_branch L_k1")
    lab("L_kidle")
    a(f"s_cmp_eq_u32 s{sW}, 5"); a("s_cbranch_scc1 L_hs")
    a(f"s_sub_u32 s50, s{sW}, s{sMem}"); a("s_cmp_lg_u32 s50, 6"); a("s_cbranch_scc1 L_knext")
    a(f"s_cmp_eq_u32 s{sCnt}, 32"); a("s_cbranch_scc1 L_tree1")
    a(f"s_cmp_lg_u32 s{sCnt}, 28"); a("s_cbranch_scc1 L_knext")
    cm("tree tokens, step 2: score bias (1-mask) * -1e9 / scale, then the ordinary tile code")
    big = 1e9 * math.sqrt(128)
    TM = PB + 18 * 8
    a(f"s_mov_b32 s51, {f32(big)}")
    a(f"v_mov_b32 v{vU}, {f32(-big)}")
    for j in range(8, 16): a(f"v_mov_b32 v{S0+j}, 0xff800000")
    a("s_waitcnt vmcnt(0)")
    for j in range(4):
        a(f"v_lshlrev_b32 v{S0+2*j}, 16, v{TM+j}"); a(f"v_and_b32 v{S0+2*j+1}, 0xffff0000, v{TM+j}")
    for j in range(8): a(f"v_fma_f32 v{S0+j}, v{S0+j}, s51, v{vU}")
    a(f"s_mov_b32 s{sCur}, {18*8}"); a(f"s_mov_b32 s50, {L_TK}")
    a("s_branch L_ktile")
    lab("L_tree1")
    cm("tree tokens, step 1 (wave 7 of the first workgroup): K/V -> LDS, mask -> registers")
    k_offsets()
    a(f"s_lshl_b32 s45, s{sPair}, 12"); a("s_movk_i32 s51, 4096")
    a("s_add_u32 s20, s10, s45"); a("s_addc_u32 s21, s11, 0"); a("s_mov_b32 s22, 4096"); a("s_mov_b32 s23, 0x20000")
    a(f"s_mov_b32 m0, {L_TK}")
    a("s_add_u32 s28, s12, s45"); a("s_addc_u32 s29, s13, 0"); a("s_mov_b32 s30, 4096"); a("s_mov_b32 s31, 0x20000")
    for j in range(4): a(f"buffer_load_dwordx4 v{vOff[j]}, {SS}, 0 offen offset:{j*1024} lds")
    a(f"s_mov_b32 m0, {L_TK + 4096}")
    a(f"s_lshr_b32 s50, s{sPair}, 4"); a("s_lshl_b32 s50, s50, 9")
    for j in range(4): a(f"buffer_load_dwordx4 v{vOff[j]}, {SS}, s51 offen offset:{j*1024} lds")
    v_offset()
    a(f"s_mov_b32 m0, {L_TV}")
    a("s_add_u32 s36, s14, s50"); a("s_addc_u32 s37, s15, 0"); a("s_mov_b32 s38, 512"); a("s_mov_b32 s39, 0x20000")
    for j in range(4): a(f"buffer_load_dwordx4 v{vOff[0]}, {SQ}, 0 offen offset:{j*1024} lds")
    a(f"v_and_b32 v{vU}, 15, v{vR}"); a(f"v_lshlrev_b32 v{vU}, 5, v{vU}"); a(f"v_lshl_add_u32 v{vU}, v{vH}, 3, v{vU}")
    a(f"buffer_load_dwordx2 {vr(TM, 2)}, v{vU}, {SM}, 0 offen")
    a(f"buffer_load_dwordx2 {vr(TM+2, 2)}, v{vU}, {SM}, 0 offen offset:16")
    a("s_branch L_knext")
    cm("hand-off word: bit 0 started, bit 1 acknowledged, bit 3 result published; +8 for the second workgroup. Only changes")
    cm("against the value seen at my own start count, and nothing is published before both have taken that snapshot.")
    def hs_poll(again, done):
        a(f"global_load_dword v{vU}, v{vZ}, s[66:67] sc1")
        a("s_waitcnt vmcnt(0)")
        a(f"v_readfirstlane_b32 s50, v{vU}")
        a(f"s_xor_b32 s50, s50, s{sSnap}"); a(f"s_lshr_b32 s50, s50, s{sOt}")
        a("s_and_b32 s51, s50, 3"); a(f"s_cbranch_scc0 {again}")
        a(f"s_mov_b32 s{sSt}, 2")
        a("s_bitcmp1_b32 s50, 0"); a(f"s_cbranch_scc0 {done}")
        a(f"s_lshl_b32 s{sAck}, 2, s{sMy}"); a(f"s_atomic_xor s{sAck}, s[66:67], 0")
        a(f"s_branch {done}")
    lab("L_hs")
    a(f"s_cmp_eq_u32 s{sSt}, 2"); a("s_cbranch_scc1 L_knext")
    a(f"s_cmp_eq_u32 s{sLim}, 1"); a("s_cbranch_scc1 L_knext")
    hs_poll("L_knext", "L_knext")
    lab("L_hsfin")
    a(f"v_mov_b32 v{vT}, {L_CW}"); a(f"v_mov_b32 v{vU}, s{sSnap}"); a(f"ds_write_b32 v{vT}, v{vU}")
    a(f"s_mov_b32 s71, {BOUND}")
    lab("L_hsw")
    a(f"s_cmp_eq_u32 s{sSt}, 2"); a("s_cbranch_scc1 L_stage")
    a("s_sub_u32 s71, s71, 1"); a("s_cbranch_scc1 L_stage")
    hs_poll("L_hsw", "L_stage")
    check_hazards([x for x in L if not x.startswith(".")])
    out = HEADER + DOC + f"; @launch grid=(256,1,1) block=(512,1,1) lds={LDS}\n"
    out += '.amdgcn_target "amdgcn-amd-amdhsa--gfx950"\n.text\n' + f".globl {NAME}\n.p2align 8\n.type {NAME},@function\n{NAME}:\n"
    out += "\n".join(L) + "\n"
    out += '.section .rodata,"a"\n.p2align 6\n' + f".amdhsa_kernel {NAME}\n"
    out += f"  .amdhsa_next_free_vgpr 256\n  .amdhsa_next_free_sgpr 96\n  .amdhsa_accum_offset 256\n"
    out += "  .amdhsa_group_segment_fixed_size 0\n  .amdhsa_kernarg_size 72\n  .amdhsa_user_sgpr_count 2\n"
    out += "  .amdhsa_user_sgpr_kernarg_segment_ptr 1\n  .amdhsa_system_sgpr_workgroup_id_x 1\n.end_amdhsa_kernel\n"
    return out

if __name__ == "__main__":
    out = sys.argv[1]
    kw = {}
    for x in sys.argv[2:]:
        k, v = x.split("=", 1)
        if v in ("True", "False"): v = v == "True"
        else:
            try: v = int(v)
            except ValueError: pass
        kw[k] = v
    open(out, "w").write(gen(**kw))
```

```python
import sys, struct, math
from hz import check_hazards
NAME = "standalone__tree_speculative_verify_tree_attention_over_candidate_token_tree__sampling_kernel"
HEADER = open("standalone__tree_speculative_verify_tree_attention_over_candidate_token_tree__sampling.s.ref").read().split("; Override launch")[0]
DOC = """; Workgroups wg and wg^8 share one (batch, kv-head): the first takes 126 tiles of 32 keys plus the tree tokens, the second 130.
"""

def f32(x): return "0x%08x" % struct.unpack("<I", struct.pack("<f", x))[0]

def gen(levels="19,20,21,23,32", start=1, lmap="01111223", cps="4,10,16,22,28,34,40,45,50,54,57,59", SP=62, LH=32, jbits="12,13,14,11,10", mbit=16,
        stamp=False, fl="nt", prio=3, xat=8, st4=False, st6=False, cal=0, ofl="", WSOFF=0, BOUND=1 << 22, pre=False, LH0=0, SP2=0, spoll=0, boost=0, shalf=0, qfl="", hsf="sc1", hlf="sc1", R=8, rmap="011112223", rot=3):
    L = []
    def a(s): L.append("    " + s)
    def lab(s): L.append(s + ":")
    def cm(s): L.append("    ; " + s)
    def vr(b, n): return f"v[{b}:{b+n-1}]"
    RB = 32768
    L_PS = 3 * RB
    L_Q, L_TK = L_PS, L_PS + 8192
    L_MI = L_PS + 16384
    L_TV = L_MI + 17408
    L_TP = L_TV + 4096
    L_ML = L_TP + 2048
    LDS = L_ML + 2048
    W_WORD = WSOFF
    W_RANK = WSOFF + 65536
    W_DATA = WSOFF + 262144
    vLane, vH, vR, vMIa = 96, 97, 98, 99
    vM, vMC, vL, vT, vU, vAL = 101, 102, 103, 1, 6, 7
    vTmp = [0, 100]
    Q0, KF, S0, vKrd, PB = 8, 40, 72, list(range(88, 96)), 104
    PF, VF, O0, DT = 8, 40, 72, 88
    vVa, vPa, vZ, vMla = 2, 3, 4, 5
    vOff = [40, 41, 42, 43]
    sPair, sMem, sK, sT, sBuf, sC, sCnt, sJ, sSlot, sCur, sBase, sW, sSnap, sSt, sMy, sOt = 40, 41, 42, 43, 44, 46, 47, 48, 49, 60, 61, 59, 62, 63, 64, 65
    sLim, sStep, sT0, sAck, sN, sWo = 68, 70, 48, 94, 95, 93
    SS, SQ, SO, SM, SD = "s[20:23]", "s[28:31]", "s[32:35]", "s[36:39]", "s[24:27]"
    c = (128 ** -0.5) * math.log2(math.e)
    jb = [int(x) for x in str(jbits).split(",")]
    def B(j): return sum(((j >> i) & 1) << b for i, b in enumerate(jb))
    maskR = sum(1 << b for b in range(10, 21) if b not in jb and b != mbit)
    lowR = (maskR & -maskR).bit_length() - 1
    lv = [float(x) for x in str(levels).split(",")]
    cp = [int(x) for x in str(cps).split(",")] if cps != "" else []
    assert len(cp) <= 16
    lm = [int(ch) for ch in str(lmap).zfill(8)]
    def st(n):
        if st6: a(f"s_memrealtime s[{72+2*n}:{73+2*n}]")

    def stamp_out():
        a("s_waitcnt vmcnt(0)")
        a("s_memrealtime s[56:57]")
        a("s_getreg_b32 s58, hwreg(HW_REG_XCC_ID)")
        a("s_waitcnt lgkmcnt(0)")
        a("v_mov_b32 v8, s54"); a("v_mov_b32 v9, s56"); a("v_mov_b32 v10, s58");  a("v_mov_b32 v11, 0")
        a("s_lshl_b32 s50, s2, 3"); a("s_add_u32 s50, s50, s3"); a("s_lshl_b32 s50, s50, 4")
        a("v_mov_b32 v12, s50")
        a("s_mov_b64 exec, 1")
        a("global_store_dwordx4 v12, v[8:11], s[52:53]")
    def ids():
        a(f"v_and_b32 v{vLane}, 63, v0")
        a(f"s_lshr_b32 s{sPair}, s2, 4"); a(f"s_lshl_b32 s{sPair}, s{sPair}, 3"); a("s_and_b32 s50, s2, 7"); a(f"s_or_b32 s{sPair}, s{sPair}, s50")
        a(f"s_bfe_u32 s{sMem}, s2, 0x10003")
    def k_offsets():
        cm("K-shaped DMA source offsets: row rr = lane>>4, slot p = lane&15 -> rr*256 + ((p ^ (4j+rr)) * 16)")
        a(f"v_lshlrev_b32 v{vTmp[0]}, 4, v{vLane}")
        a(f"v_and_b32 v{vTmp[1]}, 0x30, v{vLane}")
        a(f"v_xor_b32 v{vOff[0]}, v{vTmp[0]}, v{vTmp[1]}")
        for j in range(1, 4): a(f"v_xor_b32 v{vOff[j]}, {64*j}, v{vOff[0]}")
    def v_offset():
        cm("V DMA source offset: rr*256 + ((p ^ 4rr) * 16)")
        a(f"v_lshlrev_b32 v{vTmp[0]}, 4, v{vLane}")
        a(f"v_and_b32 v{vTmp[1]}, 0x30, v{vLane}")
        a(f"v_lshlrev_b32 v{vTmp[1]}, 2, v{vTmp[1]}")
        a(f"v_xor_b32 v{vOff[0]}, v{vTmp[0]}, v{vTmp[1]}")
    def nextbuf():
        a(f"s_add_u32 s{sBuf}, s{sBuf}, {RB}")
        a(f"s_cmp_eq_u32 s{sBuf}, {3*RB}"); a(f"s_cselect_b32 s{sBuf}, 0, s{sBuf}")

    a("s_load_dwordx16 s[4:19], s[0:1], 0")
    a("s_load_dwordx2 s[52:53], s[0:1], 64")
    if stamp or cal: a("s_memrealtime s[54:55]")
    a("v_readfirstlane_b32 s3, v0")
    a("s_cmp_ge_u32 s2, 256"); a("s_cbranch_scc1 L_end")
    a("s_lshr_b32 s3, s3, 6")
    a("s_cbranch_scc1 L_cons")
    cm("=============== loader wave")
    if prio: a(f"s_setprio {prio}")
    ids(); k_offsets()
    for j in range(1, 4):
        assert B(j) >= 1024*j
        a(f"v_mov_b32 v{vOff[j]+4}, v{vOff[j]}")
        a(f"v_add_u32 v{vOff[j]}, {B(j) - 1024*j}, v{vOff[j]}")
    a(f"s_lshl_b32 s50, s{sPair}, 13"); a("s_mov_b32 s30, 8192"); a("s_mov_b32 s31, 0x20000"); a("s_movk_i32 s51, 4096")
    a(f"s_lshl_b32 s45, s{sPair}, 21")
    a("s_mov_b32 s22, 0x200000"); a("s_mov_b32 s23, 0x20000")
    a(f"s_mul_i32 s46, s{sMem}, {B(16)}"); a(f"s_add_u32 s46, s46, {maskR}")
    a(f"s_mov_b32 s{sBuf}, 0"); a(f"s_mov_b32 s{sCnt}, 0")
    def vm(x, n):
        lo = int(x); fr = x - lo
        return lo + (1 if (n % 16) < fr * 16 else 0) - 1
    def half(x):
        for g in range(4):
            a(f"s_add_u32 m0, s{sBuf}, {g*4096}"); a(f"s_add_u32 s{sT}, s46, {B(4*g)}")
            for j in range(4):
                if x: a(f"s_waitcnt vmcnt({vm(x, 0)})")
                a(f"buffer_load_dwordx4 v{vOff[j]}, {SS}, s{sT} offen offset:{j*1024} {fl} lds")
    a("s_waitcnt lgkmcnt(0)")
    a("s_add_u32 s20, s6, s45"); a("s_addc_u32 s21, s7, 0")
    if shalf:
        lab("L_half")
        half(float(LH))
        a(f"s_cmp_lg_u32 s{sCnt}, 0"); a("s_cbranch_scc1 L_h2")
    else: half(0)
    a(f"s_mov_b32 m0, {L_Q}"); a("s_add_u32 s28, s4, s50"); a("s_addc_u32 s29, s5, 0")
    for j in range(4): a(f"buffer_load_dwordx4 v{vOff[j] + (4 if j else 0)}, {SQ}, 0 offen offset:{j*1024} {qfl} lds")
    a(f"s_mov_b32 m0, {L_Q + 4096}"); a("s_nop 0")
    for j in range(4): a(f"buffer_load_dwordx4 v{vOff[j] + (4 if j else 0)}, {SQ}, s51 offen offset:{j*1024} {qfl} lds")
    cm("rounds at which something besides streaming is due: a progress check, its result, the switch to V, the sprint, the end")
    def evm(n): return sum(1 << (r - 1) for r in set(cp) | set(r + 1 for r in cp) | {n, 2 * n} | ({SP} if SP < 2 * n else set()) | ({SP2} if SP2 else set()) | ({boost} if boost else set()))
    cpm = sum(1 << r for r in cp)
    a(f"s_lshl_b32 s48, s{sMem}, {mbit}"); a(f"s_mov_b32 s{sK}, s48"); a(f"s_mov_b32 s{sBuf}, {RB}")
    a(f"s_add_u32 s{sN}, s{sMem}, 31"); a(f"s_add_u32 s49, s{sN}, 1")
    a(f"s_mov_b32 s84, {(evm(31) | evm(32)) & 0xffffffff:#x}"); a(f"s_mov_b32 s85, {(evm(31) | evm(32)) >> 32:#x}")
    a(f"s_mov_b32 s86, {cpm & 0xffffffff:#x}"); a(f"s_mov_b32 s87, {cpm >> 32:#x}")
    a(f"s_mov_b32 s88, {start}"); a("s_lshr_b32 s89, s2, 4"); a("s_and_b32 s90, s2, 7")
    if R == 32: a(f"s_lshl_b32 s91, s{sMem}, 8"); a(f"s_add_u32 s91, s91, {W_RANK}")
    else: a(f"s_mov_b32 s91, {W_RANK}"); a("s_lshr_b32 s89, s2, 3"); a("s_lshl_b32 s90, s90, 2"); a(f"s_add_u32 s90, s90, {rot}")
    a("s_mov_b32 s92, -1")
    if st4: a("s_mov_b32 s74, 0"); a("v_mov_b32 v20, 0"); a("v_mov_b32 v21, 0"); a("v_mov_b32 v22, 0")
    def rnd(x, sfx):
        bar_at = min(n for n in range(32) if vm(x, n) <= n)
        for g in range(8):
            if 4 * g == xat:
                a(f"s_cmp_lg_u32 s{sCnt}, s49"); a(f"s_cbranch_scc1 L_nx{sfx}")
                if st4: a("s_memrealtime s[76:77]")
                a("s_barrier")
                if st4: a("s_memrealtime s[78:79]")
                lab("L_nx" + sfx)
            a(f"s_add_u32 m0, s{sBuf}, {g*4096}"); a(f"s_add_u32 s{sT}, s{sK}, {B(4*g)}")
            for j in range(4):
                n = 4 * g + j
                a(f"s_waitcnt vmcnt({vm(x, n)})")
                a(f"buffer_load_dwordx4 v{vOff[j]}, {SS}, s{sT} offen offset:{j*1024} {fl} lds")
                if n == bar_at:
                    if st4: a("s_memrealtime s[70:71]")
                    a("s_barrier")
                    if st4: a("s_memrealtime s[72:73]")
    order = [start] + [i for i in range(len(lv)) if i != start]
    if boost: order = [order[-1]] + order[:-1]
    for i in order:
        lab(f"L_lv{i}")
        rnd(lv[i], str(i))
        cm("next round: the source offset counts through the address bits a round leaves fixed; buffers rotate mod 3")
        nextbuf()
        if st4:
            a("s_waitcnt lgkmcnt(0)"); a("s_mov_b32 m0, s74"); a("s_add_u32 s74, s74, 1")
            a("v_writelane_b32 v20, s70, m0"); a("v_writelane_b32 v21, s72, m0")
        a(f"s_or_b32 s{sK}, s{sK}, {(~maskR) & 0xffffffff:#x}"); a(f"s_add_u32 s{sK}, s{sK}, 1"); a(f"s_and_b32 s{sK}, s{sK}, {maskR:#x}")
        a(f"s_or_b32 s{sK}, s{sK}, s48")
        a(f"s_add_u32 s50, s{sCnt}, 1")
        a(f"s_bitcmp1_b64 s[84:85], s{sCnt}"); a(f"s_mov_b32 s{sCnt}, s50")
        a(f"s_cbranch_scc0 L_lv{i}")
        if i != order[-1]: a("s_branch L_event")
    lab("L_event")
    a(f"s_lshl_b32 s50, s{sN}, 1"); a(f"s_cmp_eq_u32 s{sCnt}, s50"); a("s_cbranch_scc1 " + ("L_half" if shalf else "L_ldfin"))
    a(f"s_cmp_lg_u32 s{sCnt}, s{sN}"); a("s_cbranch_scc1 L_nosw")
    cm("K is done, go on with V (the second workgroup, one round behind by now, starts at round 1 to stay beside the first)")
    a("s_add_u32 s20, s8, s45"); a("s_addc_u32 s21, s9, 0")
    a(f"s_lshl_b32 s{sK}, s{sMem}, {lowR}"); a(f"s_or_b32 s{sK}, s{sK}, s48")
    v_offset()
    for j in range(1, 4): a(f"v_add_u32 v{vOff[j]}, {B(j) - 1024*j}, v{vOff[0]}")
    lab("L_nosw")
    if cp:
        cm("load balance: eight workgroups count themselves in at each check, the others read the count; the later a workgroup came, the more it keeps in flight")
        a(f"s_cmp_lg_u32 s{sCnt}, s92"); a("s_cbranch_scc1 L_noapply")
        a("s_waitcnt lgkmcnt(0)")
        if R == 32:
            word = sum(v << (4 * i) for i, v in enumerate(lm))
            a("s_min_u32 s93, s93, 7"); a("s_lshl_b32 s93, s93, 2")
            a(f"s_lshr_b32 s93, {word:#x}, s93"); a("s_and_b32 s88, s93, 15")
            lab("L_noapply")
            a(f"s_bitcmp1_b64 s[86:87], s{sCnt}"); a("s_cbranch_scc0 L_nocp")
            a("s_and_b32 s50, s89, 15"); a("s_lshl_b32 s50, s50, 9"); a("s_add_u32 s50, s50, s91")
            a("s_add_u32 s66, s52, s50"); a("s_addc_u32 s67, s53, 0")
            a("s_mov_b32 s93, 1"); a("s_atomic_add s93, s[66:67], 0 glc")
            a("s_add_u32 s91, s91, 8192"); a("s_add_u32 s89, s89, s90"); a(f"s_add_u32 s92, s{sCnt}, 1")
        else:
            per = 32 // R
            rm = [int(ch) for ch in str(rmap).zfill(9)]
            w1 = sum(v << (3 * i) for i, v in enumerate(lm + lm[-1:])); w2 = sum(v << (3 * i) for i, v in enumerate(rm))
            a("s_min_u32 s93, s93, 8"); a("s_mul_i32 s93, s93, 3")
            a("s_lshr_b32 s93, s94, s93"); a("s_and_b32 s88, s93, 7")
            lab("L_noapply")
            a(f"s_bitcmp1_b64 s[86:87], s{sCnt}"); a("s_cbranch_scc0 L_nocp")
            a(f"s_and_b32 s50, s89, {32 - per}"); a(f"s_lshl_b32 s50, s50, {8 - (per.bit_length() - 1)}"); a("s_add_u32 s50, s50, s91")
            a("s_add_u32 s66, s52, s50"); a("s_addc_u32 s67, s53, 0")
            a(f"s_add_u32 s91, s91, {256 * R}"); a(f"s_add_u32 s92, s{sCnt}, 1")
            a(f"s_and_b32 s50, s89, {per - 1}"); a("s_cbranch_scc1 L_reader")
            a("s_mov_b32 s93, 1"); a("s_atomic_add s93, s[66:67], 0 glc"); a(f"s_mov_b32 s94, {w1:#x}")
            a("s_branch L_rot")
            lab("L_reader")
            a("s_load_dword s93, s[66:67], 0 glc"); a(f"s_mov_b32 s94, {w2:#x}")
            lab("L_rot")
            a("s_add_u32 s89, s89, s90")
        lab("L_nocp")
    a(f"s_mul_i32 s50, s{sCnt}, s{sMem}")
    a(f"s_cmp_ge_u32 s50, {SP}"); a(f"s_cbranch_scc1 L_lv{len(lv) - 1}")
    if SP2: a(f"s_cmp_ge_u32 s50, {SP2}"); a(f"s_cbranch_scc1 L_lv{len(lv) - 2}")
    for i in [x for x in range(len(lv) - 1) if x != start]:
        a(f"s_cmp_eq_u32 s88, {i}"); a(f"s_cbranch_scc1 L_lv{i}")
    a(f"s_branch L_lv{start}")
    lab("L_ldfin")
    if LH0:
        a(f"s_cmp_lg_u32 s{sMem}, 0"); a("s_cbranch_scc1 L_h1")
        half(float(LH0))
        a("s_branch L_h2")
        lab("L_h1")
    if not shalf: half(float(LH))
    lab("L_h2")
    a("s_waitcnt vmcnt(16)"); a("s_barrier")
    a("s_waitcnt vmcnt(0)")
    if st4: a("s_memrealtime s[80:81]")
    a("s_barrier")
    if st4:
        a("s_memrealtime s[82:83]"); a("s_waitcnt lgkmcnt(0)")
        for i, r in enumerate((54, 76, 78, 80, 82)): a(f"v_writelane_b32 v22, s{r}, {i}")
        a("s_lshl_b32 s50, s2, 10"); a("s_add_u32 s50, s50, 0x200000")
        a(f"v_lshl_add_u32 v4, v{vLane}, 2, s50")
        a("global_store_dword v4, v20, s[52:53]"); a("global_store_dword v4, v21, s[52:53] offset:256"); a("global_store_dword v4, v22, s[52:53] offset:512")
    if stamp: stamp_out()
    a("s_endpgm")

    L.append(".p2align 6")
    lab("L_cons")
    cm("=============== consumers")
    ids()
    a(f"s_sub_u32 s{sW}, s3, 1")
    a(f"v_lshrrev_b32 v{vH}, 5, v{vLane}")
    a(f"v_and_b32 v{vR}, 31, v{vLane}")
    a(f"s_lshl_b32 s{sMy}, s{sMem}, 3"); a(f"s_xor_b32 s{sOt}, s{sMy}, 8")
    a(f"s_lshl_b32 s50, s{sPair}, 8"); a(f"s_add_u32 s50, s50, {W_WORD}")
    a(f"s_cmp_lg_u32 s{sW}, 3")
    a("s_waitcnt lgkmcnt(0)")
    a("s_cbranch_scc1 L_noq")
    cm("wave 4 clears this workgroup's share of the arrival counters")
    a("s_lshl_b32 s45, s2, 8")
    if cp:
        a(f"s_add_u32 s45, s45, {W_RANK}")
        a(f"v_lshl_add_u32 v{vT}, v{vLane}, 16, s45"); a(f"v_mov_b32 v{vU}, 0")
        if R * len(cp) < 256: a(f"s_cmp_ge_u32 s2, {R * len(cp)}"); a("s_cbranch_scc1 L_noq")
        a(f"s_cmp_lt_u32 s2, {max(0, R * len(cp) - 256)}"); a("s_cselect_b32 exec_lo, 3, 1"); a("s_mov_b32 exec_hi, 0")
        a(f"global_store_dword v{vT}, v{vU}, s[52:53] sc1")
        a("s_mov_b64 exec, -1")
    lab("L_noq")
    a("s_add_u32 s66, s52, s50"); a("s_addc_u32 s67, s53, 0")
    a(f"s_cmp_lg_u32 s{sW}, 4"); a("s_cbranch_scc1 L_nohs")
    a(f"s_lshl_b32 s{sSnap}, 1, s{sMy}"); a(f"s_atomic_xor s{sSnap}, s[66:67], 0 glc")
    lab("L_nohs")
    cm("LDS read addresses for K-shaped tiles: r*256 + ((h ^ (r&15)) ^ 2s)*16, first pointing at Q")
    a(f"v_and_b32 v{vT}, 15, v{vR}")
    a(f"v_xor_b32 v{vT}, v{vT}, v{vH}")
    a(f"v_lshlrev_b32 v{vT}, 4, v{vT}")
    a(f"v_lshl_add_u32 v{vT}, v{vR}, 8, v{vT}")
    a(f"v_add_u32 v{vKrd[0]}, {L_Q}, v{vT}")
    for s in range(1, 8): a(f"v_xor_b32 v{vKrd[s]}, {32*s}, v{vKrd[0]}")
    cm("transposing V reads of column block w: row = 4h + r', chunk = (4w + 2gg + (c>>1)) ^ 4r', + 8*(c&1)")
    a(f"v_bfe_u32 v{vU}, v{vLane}, 2, 2")
    a(f"v_lshl_add_u32 v{vT}, v{vH}, 2, v{vU}")
    a(f"v_lshlrev_b32 v{vVa}, 8, v{vT}")
    a(f"v_xor_b32 v{vU}, s{sW}, v{vU}"); a(f"v_and_b32 v{vU}, 3, v{vU}")
    a(f"v_lshl_add_u32 v{vVa}, v{vU}, 6, v{vVa}")
    a(f"v_and_b32 v{vU}, 3, v{vLane}")
    a(f"v_lshl_add_u32 v{vVa}, v{vU}, 3, v{vVa}")
    a(f"v_and_b32 v{vU}, 16, v{vLane}")
    a(f"v_lshl_add_u32 v{vVa}, v{vU}, 1, v{vVa}")
    a(f"v_lshlrev_b32 v{vPa}, 4, v{vLane}"); a(f"v_add_u32 v{vPa}, {L_PS}, v{vPa}")
    a(f"v_mov_b32 v{vZ}, 0")
    a(f"v_lshlrev_b32 v{vMla}, 3, v{vR}"); a(f"v_add_u32 v{vMla}, {L_ML}, v{vMla}")
    a(f"s_mov_b32 s{sBase}, {L_Q}"); a(f"s_mov_b32 s{sC}, {f32(c)}"); a(f"s_add_u32 s{sCnt}, s{sMem}, 32")
    a(f"s_add_u32 s{sWo}, s{sW}, 2"); a(f"s_sub_u32 s50, s{sWo}, 7"); a(f"s_cselect_b32 s{sWo}, s{sWo}, s50")
    a(f"s_mov_b32 s{sBuf}, 0"); a(f"s_mov_b32 s{sJ}, s{sWo}"); a(f"s_mov_b32 s{sSlot}, 0"); a(f"s_mov_b32 s{sSt}, 0")
    a(f"s_mov_b32 s{sLim}, 1"); a(f"s_mov_b32 s{sStep}, 5")
    a(f"s_mul_i32 s50, s{sW}, {19*128}"); a(f"s_add_u32 s50, s50, {L_MI}")
    a(f"v_lshl_add_u32 v{vMIa}, v{vR}, 2, s50")
    a(f"v_mov_b32 v{vL}, 0"); a(f"v_mov_b32 v{vM}, {f32(-3.0e38)}"); a(f"v_mov_b32 v{vMC}, v{vM}")
    a(f"s_mul_i32 s50, s{sPair}, 18432"); a(f"s_mul_i32 s51, s{sW}, 4608"); a("s_add_u32 s50, s50, s51"); a(f"s_add_u32 s50, s50, {W_DATA}")
    a("s_add_u32 s24, s52, s50"); a("s_addc_u32 s25, s53, 0"); a("s_movk_i32 s26, 4608"); a("s_mov_b32 s27, 0x20000")
    a("s_mov_b32 s32, s16"); a("s_mov_b32 s33, s17"); a("s_mov_b32 s34, 0x100000"); a("s_mov_b32 s35, 0x20000")
    a(f"s_lshl_b32 s50, s{sPair}, 13"); a(f"s_lshl_b32 s51, s{sW}, 6"); a("s_add_u32 s69, s50, s51")
    a("s_barrier")
    for s in range(8): a(f"ds_read_b128 {vr(Q0 + 4*s, 4)}, v{vKrd[s]}")
    a("s_waitcnt lgkmcnt(0)")
    a("s_branch L_kgo")
    lab("L_kr")
    a("s_barrier")
    lab("L_kgo")
    a(f"s_cmp_gt_u32 s{sJ}, s{sLim}"); a("s_cbranch_scc1 L_kidle")
    a(f"s_lshl_b32 s50, s{sJ}, 13"); a(f"s_add_u32 s50, s50, s{sBuf}")
    a(f"s_mov_b32 s{sCur}, s{sSlot}"); a(f"s_add_u32 s{sSlot}, s{sSlot}, 8")
    lab("L_ktile")
    a(f"s_sub_u32 s51, s50, s{sBase}"); a(f"s_mov_b32 s{sBase}, s50")
    for s in range(8):
        a(f"v_add_u32 v{vKrd[s]}, s51, v{vKrd[s]}")
        a(f"ds_read_b128 {vr(KF + 4*s, 4)}, v{vKrd[s]}")
    a(f"s_lshl_b32 s50, s{sCur}, 4")
    a(f"v_add_u32 v{vTmp[1]}, s50, v{vMIa}")
    a(f"s_cmp_gt_u32 s{sJ}, 3")
    a("s_waitcnt lgkmcnt(7)")
    a("s_cbranch_scc1 L_kbias")
    a(f"v_mfma_f32_32x32x16_bf16 {vr(S0, 16)}, {vr(KF, 4)}, {vr(Q0, 4)}, 0")
    lab("L_k1")
    for s in range(1, 8):
        a(f"s_waitcnt lgkmcnt({7-s})")
        a(f"v_mfma_f32_32x32x16_bf16 {vr(S0, 16)}, {vr(KF + 4*s, 4)}, {vr(Q0 + 4*s, 4)}, {vr(S0, 16)}")
    a("s_nop 11")
    cm("online softmax; the reference is the running maximum rounded up to a whole power of two")
    a(f"v_max3_f32 v{vT}, v{S0}, v{S0+1}, v{vM}")
    a(f"v_max3_f32 v{vU}, v{S0+2}, v{S0+3}, v{S0+4}")
    for j in range(5, 15, 4):
        a(f"v_max3_f32 v{vT}, v{S0+j}, v{S0+j+1}, v{vT}")
        if j + 3 < 15: a(f"v_max3_f32 v{vU}, v{S0+j+2}, v{S0+j+3}, v{vU}")
    a(f"v_max3_f32 v{vT}, v{S0+15}, v{vU}, v{vT}")
    a(f"v_mov_b32 v{vU}, v{vT}")
    a("s_nop 1")
    a(f"v_permlane32_swap_b32 v{vT}, v{vU}")
    a(f"v_max_f32 v{vM}, v{vT}, v{vU}")
    a(f"v_mul_f32 v{vT}, s{sC}, v{vM}")
    a(f"v_ceil_f32 v{vT}, v{vT}")
    a(f"v_sub_f32 v{vAL}, v{vMC}, v{vT}")
    a(f"v_mov_b32 v{vMC}, v{vT}")
    a(f"ds_write_b32 v{vTmp[1]}, v{vT}")
    a(f"v_exp_f32 v{vAL}, v{vAL}")
    for j in range(16): a(f"v_fma_f32 v{S0+j}, v{S0+j}, s{sC}, -v{vMC}")
    for j in range(16): a(f"v_exp_f32 v{S0+j}, v{S0+j}")
    a(f"v_mul_f32 v{vL}, v{vL}, v{vAL}")
    a(f"s_set_gpr_idx_on s{sCur}, gpr_idx(DST)"); a("s_mov_b32 s50, 0x3f803f80")
    for j in range(8): a(f"v_cvt_pk_bf16_f32 v{PB+j}, v{S0+2*j}, v{S0+2*j+1}")
    a(f"s_set_gpr_idx_on s{sCur}, gpr_idx(SRC0)"); a("s_nop 0")
    for j in range(8): a(f"v_dot2_f32_bf16 v{vL}, v{PB+j}, s50, v{vL}")
    a("s_set_gpr_idx_off")
    lab("L_knext")
    a(f"s_add_u32 s{sJ}, s{sJ}, s{sStep}"); a(f"s_sub_u32 s50, s{sJ}, 7"); a(f"s_cselect_b32 s{sJ}, s{sJ}, s50")
    a(f"s_mov_b32 s{sLim}, 3"); a(f"s_mov_b32 s{sStep}, 3")
    nextbuf()
    a(f"s_sub_u32 s{sCnt}, s{sCnt}, 1"); a(f"s_cmp_lg_u32 s{sCnt}, 0"); a("s_cbranch_scc1 L_kr")

    cm("=============== between K and V: common reference M and sum L of this workgroup")
    a(f"v_mov_b32 v{vU}, v{vL}")
    a(f"s_lshl_b32 s50, s{sW}, 8")
    a(f"v_add_u32 v{vT}, s50, v{vMla}")
    a(f"v_permlane32_swap_b32 v{vL}, v{vU}")
    a(f"v_add_f32 v{vL}, v{vL}, v{vU}")
    a(f"ds_write_b64 v{vT}, {vr(vMC, 2)}")
    for j in range(0, 16, 2): a(f"v_mov_b64 {vr(O0+j, 2)}, 0")
    a(f"s_lshl_b32 s{sT0}, s{sMem}, 2"); a(f"s_add_u32 s{sT0}, s{sT0}, 2")
    a(f"s_add_u32 s{sCnt}, s{sMem}, 32"); a(f"s_mov_b32 s{sBase}, 0")
    a(f"s_sub_u32 s{sSlot}, s{sMem}, 1")
    a("s_waitcnt lgkmcnt(0)")
    a("s_barrier")
    for k in range(7): a(f"ds_read_b32 v{KF + k}, v{vMla} offset:{256*k}")
    cm("wave 6 of the first workgroup stages the tree tile's probabilities (slot 18) now; it owns no tile of the first V round")
    a(f"s_mov_b32 s{sCur}, {18*8}"); a(f"s_mov_b32 s50, {L_TP - L_PS}")
    a(f"s_add_u32 s51, s{sW}, s{sMy}"); a("s_cmp_eq_u32 s51, 5")
    a("s_waitcnt lgkmcnt(0)")
    a(f"v_max3_f32 v{vMC}, v{KF}, v{KF+1}, v{KF+2}"); a(f"v_max3_f32 v{vMC}, v{vMC}, v{KF+3}, v{KF+4}"); a(f"v_max3_f32 v{vMC}, v{vMC}, v{KF+5}, v{KF+6}")
    a("s_cbranch_scc1 L_dump")
    lab("L_stage")
    cm("stage my tile of the coming round (tiles t0 .. t0+3; the closing half round is tiles 0, 1), if I own one")
    a(f"s_cmp_eq_u32 s{sCnt}, 1"); a(f"s_cselect_b32 s{sT0}, 0, s{sT0}"); a(f"s_cselect_b32 s{sLim}, 1, 3")
    a(f"s_add_u32 s50, s{sT0}, 6"); a(f"s_sub_u32 s50, s50, s{sWo}")
    a("s_mul_i32 s50, s50, 9363"); a("s_lshr_b32 s50, s50, 16")
    a(f"s_lshl_b32 s{sCur}, s50, 3")
    a(f"s_sub_u32 s50, s{sCur}, s50"); a(f"s_add_u32 s50, s50, s{sWo}"); a(f"s_sub_u32 s50, s50, s{sT0}")
    a(f"s_cmp_gt_u32 s50, s{sLim}"); a("s_cbranch_scc1 L_vnext")
    a(f"s_lshl_b32 s50, s50, 11"); a(f"s_add_u32 s50, s50, s{sBase}")
    lab("L_dump")
    a(f"s_lshl_b32 s51, s{sCur}, 4")
    a(f"v_add_u32 v{vT}, s51, v{vMIa}")
    a(f"ds_read_b32 v{vT}, v{vT}")
    a(f"v_add_u32 v{vU}, s50, v{vPa}")
    a("s_waitcnt lgkmcnt(0)")
    a(f"v_sub_f32 v{vT}, v{vMC}, v{vT}")
    a(f"v_min_f32 v{vT}, {f32(255.0)}, v{vT}")
    a(f"v_cvt_u32_f32 v{vT}, v{vT}")
    a(f"v_mul_u32_u24 v{vT}, 0x800080, v{vT}")
    a(f"s_set_gpr_idx_on s{sCur}, gpr_idx(SRC0)"); a("s_nop 0")
    for j in range(8): a(f"v_pk_sub_u16 v{DT+j}, v{PB+j}, v{vT} clamp")
    a("s_set_gpr_idx_off")
    a(f"ds_write_b128 v{vU}, {vr(DT, 4)}"); a(f"ds_write_b128 v{vU}, {vr(DT+4, 4)} offset:1024")
    lab("L_vnext")
    a(f"s_add_u32 s{sT0}, s{sT0}, 4"); a(f"s_cmp_eq_u32 s{sT0}, 130"); a(f"s_cselect_b32 s{sT0}, 2, s{sT0}")
    a(f"v_add_u32 v{vT}, s{sBuf}, v{vVa}"); a(f"v_add_u32 v{vU}, s{sBase}, v{vPa}")
    a(f"s_xor_b32 s{sBase}, s{sBase}, 8192")
    nextbuf()
    a(f"s_sub_u32 s{sCnt}, s{sCnt}, 1")
    a(f"s_cmp_gt_u32 s{sW}, 3")
    a("s_waitcnt lgkmcnt(0)")
    a("s_cbranch_scc1 L_vside")
    a(f"s_cmp_eq_u32 s{sCnt}, s{sSlot}"); a("s_cbranch_scc1 L_close")
    a(f"s_cmp_eq_u32 s{sCnt}, 0")
    if st6:
        a("s_memrealtime s[74:75]")
    a("s_barrier")
    if st6:
        a("s_memrealtime s[76:77]")
    lab("L_vbody")
    def vreads(t):
        for u in range(2):
            for z in range(2): a(f"ds_read_b64_tr_b16 {vr(VF + 8*t + 4*u + 2*z, 2)}, v{vT} offset:{8192*t + 4096*u + 2048*z}")
    def preads(t):
        for u in range(2): a(f"ds_read_b128 {vr(PF + 8*t + 4*u, 4)}, v{vU} offset:{2048*t + 1024*u}")
    def pvm(t):
        for u in range(2): a(f"v_mfma_f32_32x32x16_bf16 {vr(O0, 16)}, {vr(VF + 8*t + 4*u, 4)}, {vr(PF + 8*t + 4*u, 4)}, {vr(O0, 16)}")
    preads(0); vreads(0); preads(1); vreads(1)
    a("s_waitcnt lgkmcnt(6)"); pvm(0)
    a("s_cbranch_scc1 L_last")
    preads(2); vreads(2)
    a("s_waitcnt lgkmcnt(6)"); pvm(1)
    preads(3); vreads(3)
    a("s_waitcnt lgkmcnt(6)"); pvm(2)
    a(f"s_cmp_eq_u32 s{sCnt}, 20")
    a("s_waitcnt lgkmcnt(0)"); pvm(3)
    a("s_cbranch_scc0 L_stage")
    cm("once: the sum L; the tree tile (keys 0..15 only)")
    for k in range(7): a(f"ds_read_b64 {vr(KF + 2*k, 2)}, v{vMla} offset:{256*k}")
    a(f"v_add_u32 v{vT}, {L_TV}, v{vVa}")
    a(f"ds_read_b128 {vr(PF, 4)}, v{vPa} offset:{L_TP - L_PS}")
    for z in range(2): a(f"ds_read_b64_tr_b16 {vr(PF + 4 + 2*z, 2)}, v{vT} offset:{2048*z}")
    a(f"s_cmp_lg_u32 s{sMem}, 0")
    a("s_waitcnt lgkmcnt(0)")
    for k in range(7): a(f"v_sub_f32 v{KF+2*k}, v{KF+2*k}, v{vMC}")
    for k in range(7): a(f"v_exp_f32 v{KF+2*k}, v{KF+2*k}")
    a(f"v_mul_f32 v{vL}, v{KF}, v{KF+1}")
    for k in range(1, 7): a(f"v_fma_f32 v{vL}, v{KF+2*k}, v{KF+2*k+1}, v{vL}")
    a("s_cbranch_scc1 L_stage")
    a(f"v_mfma_f32_32x32x16_bf16 {vr(O0, 16)}, {vr(PF + 4, 4)}, {vr(PF, 4)}, {vr(O0, 16)}")
    a("s_branch L_stage")

    lab("L_last")
    cm("=============== closing half round and hand-off")
    PP, PM = 120, 136
    def addrs(r): a(f"v_lshlrev_b32 v{r}, 4, v{vLane}"); a(f"v_lshlrev_b32 v{r+1}, 3, v{vLane}"); a(f"v_add_u32 v{r+1}, 4096, v{r+1}")
    def fetch(r):
        a(f"buffer_load_dwordx2 {vr(PM, 2)}, v{r+1}, {SD}, 0 offen {hlf}")
        for x in range(4): a(f"buffer_load_dwordx4 {vr(PP + 4*x, 4)}, v{r}, {SD}, 0 offen offset:{1024*x} {hlf}")
    addrs(DT + 2)
    a(f"s_cmp_lg_u32 s{sMem}, 0")
    a("s_waitcnt lgkmcnt(0)"); pvm(1)
    a("s_cbranch_scc1 L_merge")
    cm("first workgroup: publish, then raise the flag")
    a(f"buffer_store_dwordx2 {vr(vMC, 2)}, v{DT+3}, {SD}, 0 offen {hsf}")
    a("s_nop 9")
    for x in range(4): a(f"buffer_store_dwordx4 {vr(O0 + 4*x, 4)}, v{DT+2}, {SD}, 0 offen offset:{1024*x} {hsf}")
    st(3)
    a("s_mov_b32 s50, 8")
    a(f"s_cmp_lg_u32 s{sW}, 0")
    a("s_waitcnt vmcnt(0)")
    st(4)
    a("s_barrier")
    st(5)
    a("s_cbranch_scc1 L_done")
    a("s_atomic_xor s50, s[66:67], 0")
    a("s_branch L_done")
    lab("L_close")
    cm("second workgroup: the closing rendezvous also waits for wave 5 to have seen the flag; fetch the other result first")
    addrs(DT + 2)
    st(1)
    a("s_barrier")
    st(2)
    fetch(DT + 2)
    a("s_branch L_vbody")
    lab("L_merge")
    st(3); st(4)
    a(f"v_lshlrev_b32 v{DT+4}, 8, v{vR}"); a(f"v_lshl_add_u32 v{DT+4}, v{vH}, 4, v{DT+4}")
    FA, FB = 138, 140
    a("s_waitcnt vmcnt(4)")
    a(f"v_max_f32 v{vT}, v{vMC}, v{PM}")
    a(f"v_sub_f32 v{FA}, v{vMC}, v{vT}"); a(f"v_sub_f32 v{FB}, v{PM}, v{vT}")
    a(f"v_exp_f32 v{FA}, v{FA}"); a(f"v_exp_f32 v{FB}, v{FB}")
    a(f"v_mul_f32 v{vT}, v{FA}, v{vL}")
    a(f"v_fma_f32 v{vT}, v{FB}, v{PM+1}, v{vT}")
    a(f"v_rcp_f32 v{vT}, v{vT}")
    a("s_nop 0")
    a(f"v_mul_f32 v{FA}, v{FA}, v{vT}"); a(f"v_mul_f32 v{FB}, v{FB}, v{vT}")
    for j in range(8): a(f"v_pk_mul_f32 {vr(O0+2*j, 2)}, {vr(O0+2*j, 2)}, {vr(FA, 2)} op_sel_hi:[1,0]")
    for b in range(2):
        a(f"s_waitcnt vmcnt({2 if b == 0 else 1})")
        if b == 1: st(5)
        for j in range(4*b, 4*b + 4): a(f"v_pk_fma_f32 {vr(O0+2*j, 2)}, {vr(PP+2*j, 2)}, {vr(FB, 2)}, {vr(O0+2*j, 2)} op_sel_hi:[1,0,1]")
        for j in (0, 2, 1, 3): a(f"v_cvt_pk_bf16_f32 v{KF+4*b+j}, v{O0+8*b+2*j}, v{O0+8*b+2*j+1}")
        a(f"v_permlane32_swap_b32 v{KF+4*b}, v{KF+4*b+2}"); a("s_nop 0"); a(f"v_permlane32_swap_b32 v{KF+4*b+1}, v{KF+4*b+3}")
        a(f"buffer_store_dwordx4 {vr(KF+4*b, 4)}, v{DT+4}, {SO}, s69 offen offset:{32*b} {ofl}")
    st(6)
    lab("L_done")
    if st6:
        a("s_waitcnt vmcnt(0)"); a("s_memrealtime s[86:87]"); a("s_waitcnt lgkmcnt(0)")
        a(f"s_lshl_b32 s50, s{sMem}, 2"); a("v_mov_b32 v20, s50")
        for i in range(1, 8): a(f"v_writelane_b32 v20, s{72+2*i}, {i}")
        a("s_lshl_b32 s50, s2, 2"); a(f"s_add_u32 s50, s50, s{sW}"); a("s_lshl_b32 s50, s50, 8"); a("s_add_u32 s50, s50, 0x200000")
        a(f"v_lshl_add_u32 v21, v{vLane}, 2, s50")
        a("global_store_dword v21, v20, s[52:53]")
    if cal:
        lab("L_cal")
        a("s_memrealtime s[56:57]"); a("s_waitcnt lgkmcnt(0)"); a("s_sub_u32 s56, s56, s54"); a(f"s_cmp_lt_u32 s56, {cal}"); a("s_cbranch_scc1 L_cal")
    if stamp: stamp_out()
    lab("L_end")
    a("s_endpgm")

    lab("L_vside")
    cm("waves 5..7 only stage")
    a(f"s_cmp_eq_u32 s{sCnt}, 0"); a("s_cbranch_scc1 L_end")
    a("s_barrier")
    a(f"s_cmp_lg_u32 s{sW}, 4"); a("s_cbranch_scc1 L_stage")
    a(f"s_cmp_eq_u32 s{sCnt}, 24"); a("s_cbranch_scc1 L_hsfin")
    a(f"s_cmp_lg_u32 s{sCnt}, s{sMem}"); a("s_cbranch_scc1 L_stage")
    cm("wave 5 of the second workgroup owns no tile of the closing half round: it watches the word")
    a(f"s_mov_b32 s71, {BOUND}")
    lab("L_poll")
    a(f"global_load_dword v{vU}, v{vZ}, s[66:67] sc1")
    a("s_sub_u32 s71, s71, 1"); a("s_cbranch_scc1 L_seen")
    a("s_waitcnt vmcnt(0)")
    a(f"v_readfirstlane_b32 s50, v{vU}")
    a(f"s_xor_b32 s50, s50, s{sSnap}")
    a("s_bitcmp1_b32 s50, 3"); a("s_cbranch_scc0 L_poll")
    lab("L_seen")
    a("s_barrier")
    a("s_endpgm")

    cm("=============== out-of-line pieces of the K phase")
    lab("L_kbias")
    a(f"v_mfma_f32_32x32x16_bf16 {vr(S0, 16)}, {vr(KF, 4)}, {vr(Q0, 4)}, {vr(S0, 16)}")
    a("s_branch L_k1")
    lab("L_kidle")
    a(f"s_cmp_eq_u32 s{sW}, 4"); a("s_cbranch_scc1 L_hs")
    a(f"s_add_u32 s50, s{sW}, s{sMy}"); a("s_cmp_lg_u32 s50, 5"); a("s_cbranch_scc1 L_knext")
    a(f"s_cmp_eq_u32 s{sCnt}, 31"); a("s_cbranch_scc1 L_tree1")
    a(f"s_cmp_lg_u32 s{sCnt}, 29"); a("s_cbranch_scc1 L_knext")
    cm("tree tokens, step 2: score bias (1-mask) * -1e9 / scale, then the ordinary tile code")
    big = 1e9 * math.sqrt(128)
    TM = PB + 18 * 8
    a(f"s_mov_b32 s51, {f32(big)}")
    a(f"v_mov_b32 v{vU}, {f32(-big)}")
    for j in range(8, 16): a(f"v_mov_b32 v{S0+j}, 0xff800000")
    a("s_waitcnt vmcnt(0)")
    for j in range(4):
        a(f"v_lshlrev_b32 v{S0+2*j}, 16, v{TM+j}"); a(f"v_and_b32 v{S0+2*j+1}, 0xffff0000, v{TM+j}")
    for j in range(8): a(f"v_fma_f32 v{S0+j}, v{S0+j}, s51, v{vU}")
    a(f"s_mov_b32 s{sCur}, {18*8}"); a(f"s_mov_b32 s50, {L_TK}")
    a("s_branch L_ktile")
    lab("L_tree1")
    cm("tree tokens, step 1 (wave 6 of the first workgroup): K/V -> LDS, mask -> registers")
    k_offsets()
    a(f"s_lshl_b32 s45, s{sPair}, 12"); a("s_movk_i32 s51, 4096")
    a("s_add_u32 s20, s10, s45"); a("s_addc_u32 s21, s11, 0"); a("s_mov_b32 s22, 4096"); a("s_mov_b32 s23, 0x20000")
    a(f"s_mov_b32 m0, {L_TK}")
    a("s_add_u32 s28, s12, s45"); a("s_addc_u32 s29, s13, 0"); a("s_mov_b32 s30, 4096"); a("s_mov_b32 s31, 0x20000")
    for j in range(4): a(f"buffer_load_dwordx4 v{vOff[j]}, {SS}, 0 offen offset:{j*1024} {qfl} lds")
    a(f"s_mov_b32 m0, {L_TK + 4096}")
    a(f"s_lshr_b32 s50, s{sPair}, 4"); a("s_lshl_b32 s50, s50, 9")
    for j in range(4): a(f"buffer_load_dwordx4 v{vOff[j]}, {SS}, s51 offen offset:{j*1024} lds")
    v_offset()
    a(f"s_mov_b32 m0, {L_TV}")
    a("s_add_u32 s36, s14, s50"); a("s_addc_u32 s37, s15, 0"); a("s_mov_b32 s38, 512"); a("s_mov_b32 s39, 0x20000")
    for j in range(4): a(f"buffer_load_dwordx4 v{vOff[0]}, {SQ}, 0 offen offset:{j*1024} {qfl} lds")
    a(f"v_and_b32 v{vU}, 15, v{vR}"); a(f"v_lshlrev_b32 v{vU}, 5, v{vU}"); a(f"v_lshl_add_u32 v{vU}, v{vH}, 3, v{vU}")
    a(f"buffer_load_dwordx2 {vr(TM, 2)}, v{vU}, {SM}, 0 offen")
    a(f"buffer_load_dwordx2 {vr(TM+2, 2)}, v{vU}, {SM}, 0 offen offset:16")
    a("s_branch L_knext")
    cm("hand-off word: bit 0 started, bit 1 acknowledged, bit 3 result published; +8 for the second workgroup. Only changes")
    cm("against the value seen at my own start count, and nothing is published before both have taken that snapshot.")
    def hs_poll(again, done):
        a(f"global_load_dword v{vU}, v{vZ}, s[66:67] sc1")
        a("s_waitcnt vmcnt(0)")
        a(f"v_readfirstlane_b32 s50, v{vU}")
        a(f"s_xor_b32 s50, s50, s{sSnap}"); a(f"s_lshr_b32 s50, s50, s{sOt}")
        a("s_and_b32 s51, s50, 3"); a(f"s_cbranch_scc0 {again}")
        a(f"s_mov_b32 s{sSt}, 2")
        a("s_bitcmp1_b32 s50, 0"); a(f"s_cbranch_scc0 {done}")
        a(f"s_lshl_b32 s{sAck}, 2, s{sMy}"); a(f"s_atomic_xor s{sAck}, s[66:67], 0")
        a(f"s_branch {done}")
    lab("L_hs")
    a(f"s_cmp_eq_u32 s{sSt}, 2"); a("s_cbranch_scc1 L_knext")
    a(f"s_cmp_eq_u32 s{sLim}, 1"); a("s_cbranch_scc1 L_knext")
    hs_poll("L_knext", "L_knext")
    lab("L_hsfin")
    a(f"s_mov_b32 s71, {BOUND}")
    lab("L_hsw")
    a(f"s_cmp_eq_u32 s{sSt}, 2"); a("s_cbranch_scc1 L_stage")
    a("s_sub_u32 s71, s71, 1"); a("s_cbranch_scc1 L_stage")
    hs_poll("L_hsw", "L_stage")
    check_hazards([x for x in L if not x.startswith(".")])
    out = HEADER + DOC + f"; @launch grid=(256,1,1) block=(512,1,1) lds={LDS}\n"
    out += '.amdgcn_target "amdgcn-amd-amdhsa--gfx950"\n.text\n' + f".globl {NAME}\n.p2align 8\n.type {NAME},@function\n{NAME}:\n"
    out += "\n".join(L) + "\n"
    out += '.section .rodata,"a"\n.p2align 6\n' + f".amdhsa_kernel {NAME}\n"
    out += f"  .amdhsa_next_free_vgpr 256\n  .amdhsa_next_free_sgpr 96\n  .amdhsa_accum_offset 256\n"
    out += "  .amdhsa_group_segment_fixed_size 0\n  .amdhsa_kernarg_size 72\n  .amdhsa_user_sgpr_count 2\n"
    out += "  .amdhsa_user_sgpr_kernarg_segment_ptr 1\n  .amdhsa_system_sgpr_workgroup_id_x 1\n.end_amdhsa_kernel\n"
    return out

if __name__ == "__main__":
    out = sys.argv[1]
    kw = {}
    for x in sys.argv[2:]:
        k, v = x.split("=", 1)
        if v in ("True", "False"): v = v == "True"
        else:
            try: v = int(v)
            except ValueError: pass
        kw[k] = v
    open(out, "w").write(gen(**kw))
```

```python
import sys, struct, math
from hz import check_hazards
NAME = "standalone__tree_speculative_verify_tree_attention_over_candidate_token_tree__sampling_kernel"
HEADER = open("standalone__tree_speculative_verify_tree_attention_over_candidate_token_tree__sampling.s.ref").read().split("; Override launch")[0]
DOC = """; Workgroups wg and wg^8 share one (batch, kv-head): the first takes 126 tiles of 32 keys plus the tree tokens, the second 130.
"""

def f32(x): return "0x%08x" % struct.unpack("<I", struct.pack("<f", x))[0]

def gen(levels="19,20,21,23,32", start=1, lmap="01111223", cps="4,10,16,22,28,34,40,45,50,54,57,59", SP=62, LH=32, jbits="12,13,14,11,10", mbit=16,
        stamp=False, fl="nt", prio=3, xat=8, st4=False, st6=False, cal=0, ofl="", WSOFF=0, BOUND=1 << 22, pre=False, LH0=0, SP2=0, spoll=0, boost=0, shalf=0, qfl="", hsf="sc1", hlf="sc1", R=8, rmap="011112223", rot=3, help="", hfl="", adj=0, warm=""):
    L = []
    def a(s): L.append("    " + s)
    def lab(s): L.append(s + ":")
    def cm(s): L.append("    ; " + s)
    def vr(b, n): return f"v[{b}:{b+n-1}]"
    RB = 32768
    L_PS = 3 * RB
    L_Q, L_TK = L_PS, L_PS + 8192
    L_MI = L_PS + 16384
    L_TV = L_MI + 17408
    L_TP = L_TV + 4096
    L_ML = L_TP + 2048
    LDS = L_ML + 2048
    W_WORD = WSOFF
    W_RANK = WSOFF + 65536
    W_DATA = WSOFF + 262144
    PS = 18432 + (256 if adj else 0)
    vLane, vH, vR, vMIa = 96, 97, 98, 99
    vM, vMC, vL, vT, vU, vAL = 101, 102, 103, 1, 6, 7
    vTmp = [0, 100]
    Q0, KF, S0, vKrd, PB = 8, 40, 72, list(range(88, 96)), 104
    PF, VF, O0, DT = 8, 40, 72, 88
    vVa, vPa, vZ, vMla = 2, 3, 4, 5
    vOff = [40, 41, 42, 43]
    sPair, sMem, sK, sT, sBuf, sC, sCnt, sJ, sSlot, sCur, sBase, sW, sSnap, sSt, sMy, sOt = 40, 41, 42, 43, 44, 46, 47, 48, 49, 60, 61, 59, 62, 63, 64, 65
    sLim, sStep, sT0, sAck, sN, sWo = 68, 70, 48, 94, 95, 93
    SS, SQ, SO, SM, SD = "s[20:23]", "s[28:31]", "s[32:35]", "s[36:39]", "s[24:27]"
    c = (128 ** -0.5) * math.log2(math.e)
    jb = [int(x) for x in str(jbits).split(",")]
    def B(j): return sum(((j >> i) & 1) << b for i, b in enumerate(jb))
    maskR = sum(1 << b for b in range(10, 21) if b not in jb and b != mbit)
    lowR = (maskR & -maskR).bit_length() - 1
    lv = [float(x) for x in str(levels).split(",")]
    cp = [int(x) for x in str(cps).split(",")] if cps != "" else []
    assert len(cp) <= 16
    lm = [int(ch) for ch in str(lmap).zfill(8)]
    def st(n):
        if st6: a(f"s_memrealtime s[{72+2*n}:{73+2*n}]")

    def stamp_out():
        a("s_waitcnt vmcnt(0)")
        a("s_memrealtime s[56:57]")
        a("s_getreg_b32 s58, hwreg(HW_REG_XCC_ID)")
        a("s_waitcnt lgkmcnt(0)")
        a("v_mov_b32 v8, s54"); a("v_mov_b32 v9, s56"); a("v_mov_b32 v10, s58");  a("v_mov_b32 v11, 0")
        a("s_lshl_b32 s50, s2, 3"); a("s_add_u32 s50, s50, s3"); a("s_lshl_b32 s50, s50, 4")
        a("v_mov_b32 v12, s50")
        a("s_mov_b64 exec, 1")
        a("global_store_dwordx4 v12, v[8:11], s[52:53]")
    def ids():
        a(f"v_and_b32 v{vLane}, 63, v0")
        a(f"s_lshr_b32 s{sPair}, s2, 4"); a(f"s_lshl_b32 s{sPair}, s{sPair}, 3"); a("s_and_b32 s50, s2, 7"); a(f"s_or_b32 s{sPair}, s{sPair}, s50")
        a(f"s_bfe_u32 s{sMem}, s2, 0x10003")
    def k_offsets():
        cm("K-shaped DMA source offsets: row rr = lane>>4, slot p = lane&15 -> rr*256 + ((p ^ (4j+rr)) * 16)")
        a(f"v_lshlrev_b32 v{vTmp[0]}, 4, v{vLane}")
        a(f"v_and_b32 v{vTmp[1]}, 0x30, v{vLane}")
        a(f"v_xor_b32 v{vOff[0]}, v{vTmp[0]}, v{vTmp[1]}")
        for j in range(1, 4): a(f"v_xor_b32 v{vOff[j]}, {64*j}, v{vOff[0]}")
    def v_offset():
        cm("V DMA source offset: rr*256 + ((p ^ 4rr) * 16)")
        a(f"v_lshlrev_b32 v{vTmp[0]}, 4, v{vLane}")
        a(f"v_and_b32 v{vTmp[1]}, 0x30, v{vLane}")
        a(f"v_lshlrev_b32 v{vTmp[1]}, 2, v{vTmp[1]}")
        a(f"v_xor_b32 v{vOff[0]}, v{vTmp[0]}, v{vTmp[1]}")
    def nextbuf():
        a(f"s_add_u32 s{sBuf}, s{sBuf}, {RB}")
        a(f"s_cmp_eq_u32 s{sBuf}, {3*RB}"); a(f"s_cselect_b32 s{sBuf}, 0, s{sBuf}")

    a("s_load_dwordx16 s[4:19], s[0:1], 0")
    a("s_load_dwordx2 s[52:53], s[0:1], 64")
    if stamp or cal: a("s_memrealtime s[54:55]")
    a("v_readfirstlane_b32 s3, v0")
    a("s_cmp_ge_u32 s2, 256"); a("s_cbranch_scc1 L_end")
    a("s_lshr_b32 s3, s3, 6")
    a("s_cbranch_scc1 L_cons")
    cm("=============== loader wave")
    if prio: a(f"s_setprio {prio}")
    ids(); k_offsets()
    for j in range(1, 4):
        assert B(j) >= 1024*j
        a(f"v_mov_b32 v{vOff[j]+4}, v{vOff[j]}")
        a(f"v_add_u32 v{vOff[j]}, {B(j) - 1024*j}, v{vOff[j]}")
    a(f"s_lshl_b32 s50, s{sPair}, 13"); a("s_mov_b32 s30, 8192"); a("s_mov_b32 s31, 0x20000"); a("s_movk_i32 s51, 4096")
    a(f"s_lshl_b32 s45, s{sPair}, 21")
    a("s_mov_b32 s22, 0x200000"); a("s_mov_b32 s23, 0x20000")
    a(f"s_mul_i32 s46, s{sMem}, {B(16)}"); a(f"s_add_u32 s46, s46, {maskR}")
    a(f"s_mov_b32 s{sBuf}, 0"); a(f"s_mov_b32 s{sCnt}, 0")
    def vm(x, n):
        lo = int(x); fr = x - lo
        return lo + (1 if (n % 16) < fr * 16 else 0) - 1
    def half(x):
        for g in range(4):
            a(f"s_add_u32 m0, s{sBuf}, {g*4096}"); a(f"s_add_u32 s{sT}, s46, {B(4*g)}")
            for j in range(4):
                if x: a(f"s_waitcnt vmcnt({vm(x, 0)})")
                a(f"buffer_load_dwordx4 v{vOff[j]}, {SS}, s{sT} offen offset:{j*1024} {fl} lds")
    a("s_waitcnt lgkmcnt(0)")
    a("s_add_u32 s20, s6, s45"); a("s_addc_u32 s21, s7, 0")
    if shalf:
        lab("L_half")
        half(float(LH))
        a(f"s_cmp_lg_u32 s{sCnt}, 0"); a("s_cbranch_scc1 L_h2")
    else: half(0)
    a(f"s_mov_b32 m0, {L_Q}"); a("s_add_u32 s28, s4, s50"); a("s_addc_u32 s29, s5, 0")
    for j in range(4): a(f"buffer_load_dwordx4 v{vOff[j] + (4 if j else 0)}, {SQ}, 0 offen offset:{j*1024} {qfl} lds")
    a(f"s_mov_b32 m0, {L_Q + 4096}"); a("s_nop 0")
    for j in range(4): a(f"buffer_load_dwordx4 v{vOff[j] + (4 if j else 0)}, {SQ}, s51 offen offset:{j*1024} {qfl} lds")
    cm("rounds at which something besides streaming is due: a progress check, its result, the switch to V, the sprint, the end")
    def evm(n): return sum(1 << (r - 1) for r in set(cp) | set(r + 1 for r in cp) | {n, 2 * n} | ({SP} if SP < 2 * n else set()) | ({SP2} if SP2 else set()) | ({boost} if boost else set()))
    cpm = sum(1 << r for r in cp)
    a(f"s_lshl_b32 s48, s{sMem}, {mbit}"); a(f"s_mov_b32 s{sK}, s48"); a(f"s_mov_b32 s{sBuf}, {RB}")
    a(f"s_add_u32 s{sN}, s{sMem}, 31"); a(f"s_add_u32 s49, s{sN}, 1")
    a(f"s_mov_b32 s84, {(evm(31) | evm(32)) & 0xffffffff:#x}"); a(f"s_mov_b32 s85, {(evm(31) | evm(32)) >> 32:#x}")
    a(f"s_mov_b32 s86, {cpm & 0xffffffff:#x}"); a(f"s_mov_b32 s87, {cpm >> 32:#x}")
    a(f"s_mov_b32 s88, {start}"); a("s_lshr_b32 s89, s2, 4"); a("s_and_b32 s90, s2, 7")
    if R == 32: a(f"s_lshl_b32 s91, s{sMem}, 8"); a(f"s_add_u32 s91, s91, {W_RANK}")
    else: a(f"s_mov_b32 s91, {W_RANK}"); a("s_lshr_b32 s89, s2, 3"); a("s_lshl_b32 s90, s90, 2"); a(f"s_add_u32 s90, s90, {rot}")
    a("s_mov_b32 s92, -1")
    if st4: a("s_mov_b32 s74, 0"); a("v_mov_b32 v20, 0"); a("v_mov_b32 v21, 0"); a("v_mov_b32 v22, 0")
    def rnd(x, sfx):
        bar_at = min(n for n in range(32) if vm(x, n) <= n)
        for g in range(8):
            if 4 * g == xat:
                a(f"s_cmp_lg_u32 s{sCnt}, s49"); a(f"s_cbranch_scc1 L_nx{sfx}")
                if st4: a("s_memrealtime s[76:77]")
                a("s_barrier")
                if st4: a("s_memrealtime s[78:79]")
                lab("L_nx" + sfx)
            a(f"s_add_u32 m0, s{sBuf}, {g*4096}"); a(f"s_add_u32 s{sT}, s{sK}, {B(4*g)}")
            for j in range(4):
                n = 4 * g + j
                a(f"s_waitcnt vmcnt({vm(x, n)})")
                a(f"buffer_load_dwordx4 v{vOff[j]}, {SS}, s{sT} offen offset:{j*1024} {fl} lds")
                if n == bar_at:
                    if st4: a("s_memrealtime s[70:71]")
                    a("s_barrier")
                    if st4: a("s_memrealtime s[72:73]")
    order = [start] + [i for i in range(len(lv)) if i != start]
    if boost: order = [order[-1]] + order[:-1]
    for i in order:
        lab(f"L_lv{i}")
        rnd(lv[i], str(i))
        cm("next round: the source offset counts through the address bits a round leaves fixed; buffers rotate mod 3")
        nextbuf()
        if st4:
            a("s_waitcnt lgkmcnt(0)"); a("s_mov_b32 m0, s74"); a("s_add_u32 s74, s74, 1")
            a("v_writelane_b32 v20, s70, m0"); a("v_writelane_b32 v21, s72, m0")
        a(f"s_or_b32 s{sK}, s{sK}, {(~maskR) & 0xffffffff:#x}"); a(f"s_add_u32 s{sK}, s{sK}, 1"); a(f"s_and_b32 s{sK}, s{sK}, {maskR:#x}")
        a(f"s_or_b32 s{sK}, s{sK}, s48")
        a(f"s_add_u32 s50, s{sCnt}, 1")
        a(f"s_bitcmp1_b64 s[84:85], s{sCnt}"); a(f"s_mov_b32 s{sCnt}, s50")
        a(f"s_cbranch_scc0 L_lv{i}")
        if i != order[-1]: a("s_branch L_event")
    lab("L_event")
    a(f"s_lshl_b32 s50, s{sN}, 1"); a(f"s_cmp_eq_u32 s{sCnt}, s50"); a("s_cbranch_scc1 " + ("L_half" if shalf else "L_ldfin"))
    a(f"s_cmp_lg_u32 s{sCnt}, s{sN}"); a("s_cbranch_scc1 L_nosw")
    cm("K is done, go on with V (the second workgroup, one round behind by now, starts at round 1 to stay beside the first)")
    a("s_add_u32 s20, s8, s45"); a("s_addc_u32 s21, s9, 0")
    a(f"s_lshl_b32 s{sK}, s{sMem}, {lowR}"); a(f"s_or_b32 s{sK}, s{sK}, s48")
    v_offset()
    for j in range(1, 4): a(f"v_add_u32 v{vOff[j]}, {B(j) - 1024*j}, v{vOff[0]}")
    lab("L_nosw")
    if cp:
        cm("load balance: eight workgroups count themselves in at each check, the others read the count; the later a workgroup came, the more it keeps in flight")
        a(f"s_cmp_lg_u32 s{sCnt}, s92"); a("s_cbranch_scc1 L_noapply")
        a("s_waitcnt lgkmcnt(0)")
        if R == 32:
            word = sum(v << (4 * i) for i, v in enumerate(lm))
            a("s_min_u32 s93, s93, 7"); a("s_lshl_b32 s93, s93, 2")
            a(f"s_lshr_b32 s93, {word:#x}, s93"); a("s_and_b32 s88, s93, 15")
            lab("L_noapply")
            a(f"s_bitcmp1_b64 s[86:87], s{sCnt}"); a("s_cbranch_scc0 L_nocp")
            a("s_and_b32 s50, s89, 15"); a("s_lshl_b32 s50, s50, 9"); a("s_add_u32 s50, s50, s91")
            a("s_add_u32 s66, s52, s50"); a("s_addc_u32 s67, s53, 0")
            a("s_mov_b32 s93, 1"); a("s_atomic_add s93, s[66:67], 0 glc")
            a("s_add_u32 s91, s91, 8192"); a("s_add_u32 s89, s89, s90"); a(f"s_add_u32 s92, s{sCnt}, 1")
        else:
            per = 32 // R
            rm = [int(ch) for ch in str(rmap).zfill(9)]
            w1 = sum(v << (3 * i) for i, v in enumerate(lm + lm[-1:])); w2 = sum(v << (3 * i) for i, v in enumerate(rm))
            a("s_min_u32 s93, s93, 8"); a("s_mul_i32 s93, s93, 3")
            a("s_lshr_b32 s93, s94, s93"); a("s_and_b32 s88, s93, 7")
            lab("L_noapply")
            a(f"s_bitcmp1_b64 s[86:87], s{sCnt}"); a("s_cbranch_scc0 L_nocp")
            a(f"s_and_b32 s50, s89, {32 - per}"); a(f"s_lshl_b32 s50, s50, {8 - (per.bit_length() - 1)}"); a("s_add_u32 s50, s50, s91")
            a("s_add_u32 s66, s52, s50"); a("s_addc_u32 s67, s53, 0")
            a(f"s_add_u32 s91, s91, {256 * R}"); a(f"s_add_u32 s92, s{sCnt}, 1")
            a(f"s_and_b32 s50, s89, {per - 1}"); a("s_cbranch_scc1 L_reader")
            a("s_mov_b32 s93, 1"); a("s_atomic_add s93, s[66:67], 0 glc"); a(f"s_mov_b32 s94, {w1:#x}")
            a("s_branch L_rot")
            lab("L_reader")
            a("s_load_dword s93, s[66:67], 0 glc"); a(f"s_mov_b32 s94, {w2:#x}")
            lab("L_rot")
            a("s_add_u32 s89, s89, s90")
        lab("L_nocp")
    a(f"s_mul_i32 s50, s{sCnt}, s{sMem}")
    a(f"s_cmp_ge_u32 s50, {SP}"); a(f"s_cbranch_scc1 L_lv{len(lv) - 1}")
    if SP2: a(f"s_cmp_ge_u32 s50, {SP2}"); a(f"s_cbranch_scc1 L_lv{len(lv) - 2}")
    for i in [x for x in range(len(lv) - 1) if x != start]:
        a(f"s_cmp_eq_u32 s88, {i}"); a(f"s_cbranch_scc1 L_lv{i}")
    a(f"s_branch L_lv{start}")
    lab("L_ldfin")
    if LH0:
        a(f"s_cmp_lg_u32 s{sMem}, 0"); a("s_cbranch_scc1 L_h1")
        half(float(LH0))
        a("s_branch L_h2")
        lab("L_h1")
    if not shalf: half(float(LH))
    lab("L_h2")
    if help:
        tiles = [(1 << mbit) + B(8*t) for t in range(4)] + [maskR + B(16) + B(8*t) for t in range(2)]
        h0, h1, h2 = [[int(ch) for ch in x] for x in str(help).split("-")]
        a(f"s_cmp_lg_u32 s{sMem}, 0"); a("s_cbranch_scc1 L_nohelp")
        cm("first workgroup: pull the second one's last tiles into the L2 the two normally share (speed only)")
        a(f"v_and_b32 v50, 7, v{vLane}"); a("v_lshlrev_b32 v50, 7, v50")
        for i in range(3): a(f"v_bfe_u32 v51, v{vLane}, {3+i}, 1"); a(f"v_lshl_add_u32 v50, v51, {jb[i]}, v50")
        def pf(ts):
            for t in ts: a(f"s_mov_b32 s50, {tiles[t]}"); a(f"buffer_load_dword v{52+t}, v50, {SS}, s50 offen {hfl}")
        if h0: a("s_waitcnt vmcnt(24)")
        pf(h0)
        a(f"s_waitcnt vmcnt({16 + len(h0)})"); a("s_barrier")
        pf(h1)
        a(f"s_waitcnt vmcnt({len(h0) + len(h1)})"); a("s_barrier")
        pf(h2)
        a("s_barrier")
        if stamp: a("s_branch L_lst")
        else: a("s_endpgm")
        lab("L_nohelp")
    a("s_waitcnt vmcnt(16)"); a("s_barrier")
    a("s_waitcnt vmcnt(0)")
    if st4: a("s_memrealtime s[80:81]")
    a("s_barrier")
    if st4:
        a("s_memrealtime s[82:83]"); a("s_waitcnt lgkmcnt(0)")
        for i, r in enumerate((54, 76, 78, 80, 82)): a(f"v_writelane_b32 v22, s{r}, {i}")
        a("s_lshl_b32 s50, s2, 10"); a("s_add_u32 s50, s50, 0x200000")
        a(f"v_lshl_add_u32 v4, v{vLane}, 2, s50")
        a("global_store_dword v4, v20, s[52:53]"); a("global_store_dword v4, v21, s[52:53] offset:256"); a("global_store_dword v4, v22, s[52:53] offset:512")
    lab("L_lst")
    if stamp: stamp_out()
    a("s_endpgm")

    L.append(".p2align 6")
    lab("L_cons")
    cm("=============== consumers")
    ids()
    a(f"s_sub_u32 s{sW}, s3, 1")
    a(f"v_lshrrev_b32 v{vH}, 5, v{vLane}")
    a(f"v_and_b32 v{vR}, 31, v{vLane}")
    a(f"s_lshl_b32 s{sMy}, s{sMem}, 3"); a(f"s_xor_b32 s{sOt}, s{sMy}, 8")
    if adj: a(f"s_mul_i32 s50, s{sPair}, {PS}"); a(f"s_add_u32 s50, s50, {W_DATA + 18432}")
    else: a(f"s_lshl_b32 s50, s{sPair}, 8"); a(f"s_add_u32 s50, s50, {W_WORD}")
    a(f"s_cmp_lg_u32 s{sW}, 3")
    a("s_waitcnt lgkmcnt(0)")
    a("s_cbranch_scc1 L_noq")
    cm("wave 4 clears this workgroup's share of the arrival counters")
    a("s_lshl_b32 s45, s2, 8")
    if cp:
        a(f"s_add_u32 s45, s45, {W_RANK}")
        a(f"v_lshl_add_u32 v{vT}, v{vLane}, 16, s45"); a(f"v_mov_b32 v{vU}, 0")
        if R * len(cp) < 256: a(f"s_cmp_ge_u32 s2, {R * len(cp)}"); a("s_cbranch_scc1 L_noq")
        a(f"s_cmp_lt_u32 s2, {max(0, R * len(cp) - 256)}"); a("s_cselect_b32 exec_lo, 3, 1"); a("s_mov_b32 exec_hi, 0")
        a(f"global_store_dword v{vT}, v{vU}, s[52:53] sc1")
        a("s_mov_b64 exec, -1")
    lab("L_noq")
    a("s_add_u32 s66, s52, s50"); a("s_addc_u32 s67, s53, 0")
    a(f"s_cmp_lg_u32 s{sW}, 4"); a("s_cbranch_scc1 L_nohs")
    a(f"s_lshl_b32 s{sSnap}, 1, s{sMy}"); a(f"s_atomic_xor s{sSnap}, s[66:67], 0 glc")
    lab("L_nohs")
    cm("LDS read addresses for K-shaped tiles: r*256 + ((h ^ (r&15)) ^ 2s)*16, first pointing at Q")
    a(f"v_and_b32 v{vT}, 15, v{vR}")
    a(f"v_xor_b32 v{vT}, v{vT}, v{vH}")
    a(f"v_lshlrev_b32 v{vT}, 4, v{vT}")
    a(f"v_lshl_add_u32 v{vT}, v{vR}, 8, v{vT}")
    a(f"v_add_u32 v{vKrd[0]}, {L_Q}, v{vT}")
    for s in range(1, 8): a(f"v_xor_b32 v{vKrd[s]}, {32*s}, v{vKrd[0]}")
    cm("transposing V reads of column block w: row = 4h + r', chunk = (4w + 2gg + (c>>1)) ^ 4r', + 8*(c&1)")
    a(f"v_bfe_u32 v{vU}, v{vLane}, 2, 2")
    a(f"v_lshl_add_u32 v{vT}, v{vH}, 2, v{vU}")
    a(f"v_lshlrev_b32 v{vVa}, 8, v{vT}")
    a(f"v_xor_b32 v{vU}, s{sW}, v{vU}"); a(f"v_and_b32 v{vU}, 3, v{vU}")
    a(f"v_lshl_add_u32 v{vVa}, v{vU}, 6, v{vVa}")
    a(f"v_and_b32 v{vU}, 3, v{vLane}")
    a(f"v_lshl_add_u32 v{vVa}, v{vU}, 3, v{vVa}")
    a(f"v_and_b32 v{vU}, 16, v{vLane}")
    a(f"v_lshl_add_u32 v{vVa}, v{vU}, 1, v{vVa}")
    a(f"v_lshlrev_b32 v{vPa}, 4, v{vLane}"); a(f"v_add_u32 v{vPa}, {L_PS}, v{vPa}")
    a(f"v_mov_b32 v{vZ}, 0")
    a(f"v_lshlrev_b32 v{vMla}, 3, v{vR}"); a(f"v_add_u32 v{vMla}, {L_ML}, v{vMla}")
    a(f"s_mov_b32 s{sBase}, {L_Q}"); a(f"s_mov_b32 s{sC}, {f32(c)}"); a(f"s_add_u32 s{sCnt}, s{sMem}, 32")
    a(f"s_add_u32 s{sWo}, s{sW}, 2"); a(f"s_sub_u32 s50, s{sWo}, 7"); a(f"s_cselect_b32 s{sWo}, s{sWo}, s50")
    a(f"s_mov_b32 s{sBuf}, 0"); a(f"s_mov_b32 s{sJ}, s{sWo}"); a(f"s_mov_b32 s{sSlot}, 0"); a(f"s_mov_b32 s{sSt}, 0")
    a(f"s_mov_b32 s{sLim}, 1"); a(f"s_mov_b32 s{sStep}, 5")
    a(f"s_mul_i32 s50, s{sW}, {19*128}"); a(f"s_add_u32 s50, s50, {L_MI}")
    a(f"v_lshl_add_u32 v{vMIa}, v{vR}, 2, s50")
    a(f"v_mov_b32 v{vL}, 0"); a(f"v_mov_b32 v{vM}, {f32(-3.0e38)}"); a(f"v_mov_b32 v{vMC}, v{vM}")
    a(f"s_mul_i32 s50, s{sPair}, {PS}"); a(f"s_mul_i32 s51, s{sW}, 4608"); a("s_add_u32 s50, s50, s51"); a(f"s_add_u32 s50, s50, {W_DATA}")
    a("s_add_u32 s24, s52, s50"); a("s_addc_u32 s25, s53, 0"); a("s_movk_i32 s26, 4608"); a("s_mov_b32 s27, 0x20000")
    a("s_mov_b32 s32, s16"); a("s_mov_b32 s33, s17"); a("s_mov_b32 s34, 0x100000"); a("s_mov_b32 s35, 0x20000")
    a(f"s_lshl_b32 s50, s{sPair}, 13"); a(f"s_lshl_b32 s51, s{sW}, 6"); a("s_add_u32 s69, s50, s51")
    a("s_barrier")
    for s in range(8): a(f"ds_read_b128 {vr(Q0 + 4*s, 4)}, v{vKrd[s]}")
    a("s_waitcnt lgkmcnt(0)")
    a("s_branch L_kgo")
    lab("L_kr")
    a("s_barrier")
    lab("L_kgo")
    a(f"s_cmp_gt_u32 s{sJ}, s{sLim}"); a("s_cbranch_scc1 L_kidle")
    a(f"s_lshl_b32 s50, s{sJ}, 13"); a(f"s_add_u32 s50, s50, s{sBuf}")
    a(f"s_mov_b32 s{sCur}, s{sSlot}"); a(f"s_add_u32 s{sSlot}, s{sSlot}, 8")
    lab("L_ktile")
    a(f"s_sub_u32 s51, s50, s{sBase}"); a(f"s_mov_b32 s{sBase}, s50")
    for s in range(8):
        a(f"v_add_u32 v{vKrd[s]}, s51, v{vKrd[s]}")
        a(f"ds_read_b128 {vr(KF + 4*s, 4)}, v{vKrd[s]}")
    a(f"s_lshl_b32 s50, s{sCur}, 4")
    a(f"v_add_u32 v{vTmp[1]}, s50, v{vMIa}")
    a(f"s_cmp_gt_u32 s{sJ}, 3")
    a("s_waitcnt lgkmcnt(7)")
    a("s_cbranch_scc1 L_kbias")
    a(f"v_mfma_f32_32x32x16_bf16 {vr(S0, 16)}, {vr(KF, 4)}, {vr(Q0, 4)}, 0")
    lab("L_k1")
    for s in range(1, 8):
        a(f"s_waitcnt lgkmcnt({7-s})")
        a(f"v_mfma_f32_32x32x16_bf16 {vr(S0, 16)}, {vr(KF + 4*s, 4)}, {vr(Q0 + 4*s, 4)}, {vr(S0, 16)}")
    a("s_nop 11")
    cm("online softmax; the reference is the running maximum rounded up to a whole power of two")
    a(f"v_max3_f32 v{vT}, v{S0}, v{S0+1}, v{vM}")
    a(f"v_max3_f32 v{vU}, v{S0+2}, v{S0+3}, v{S0+4}")
    for j in range(5, 15, 4):
        a(f"v_max3_f32 v{vT}, v{S0+j}, v{S0+j+1}, v{vT}")
        if j + 3 < 15: a(f"v_max3_f32 v{vU}, v{S0+j+2}, v{S0+j+3}, v{vU}")
    a(f"v_max3_f32 v{vT}, v{S0+15}, v{vU}, v{vT}")
    a(f"v_mov_b32 v{vU}, v{vT}")
    a("s_nop 1")
    a(f"v_permlane32_swap_b32 v{vT}, v{vU}")
    a(f"v_max_f32 v{vM}, v{vT}, v{vU}")
    a(f"v_mul_f32 v{vT}, s{sC}, v{vM}")
    a(f"v_ceil_f32 v{vT}, v{vT}")
    a(f"v_sub_f32 v{vAL}, v{vMC}, v{vT}")
    a(f"v_mov_b32 v{vMC}, v{vT}")
    a(f"ds_write_b32 v{vTmp[1]}, v{vT}")
    a(f"v_exp_f32 v{vAL}, v{vAL}")
    for j in range(16): a(f"v_fma_f32 v{S0+j}, v{S0+j}, s{sC}, -v{vMC}")
    for j in range(16): a(f"v_exp_f32 v{S0+j}, v{S0+j}")
    a(f"v_mul_f32 v{vL}, v{vL}, v{vAL}")
    a(f"s_set_gpr_idx_on s{sCur}, gpr_idx(DST)"); a("s_mov_b32 s50, 0x3f803f80")
    for j in range(8): a(f"v_cvt_pk_bf16_f32 v{PB+j}, v{S0+2*j}, v{S0+2*j+1}")
    a(f"s_set_gpr_idx_on s{sCur}, gpr_idx(SRC0)"); a("s_nop 0")
    for j in range(8): a(f"v_dot2_f32_bf16 v{vL}, v{PB+j}, s50, v{vL}")
    a("s_set_gpr_idx_off")
    lab("L_knext")
    a(f"s_add_u32 s{sJ}, s{sJ}, s{sStep}"); a(f"s_sub_u32 s50, s{sJ}, 7"); a(f"s_cselect_b32 s{sJ}, s{sJ}, s50")
    a(f"s_mov_b32 s{sLim}, 3"); a(f"s_mov_b32 s{sStep}, 3")
    nextbuf()
    a(f"s_sub_u32 s{sCnt}, s{sCnt}, 1"); a(f"s_cmp_lg_u32 s{sCnt}, 0"); a("s_cbranch_scc1 L_kr")

    cm("=============== between K and V: common reference M and sum L of this workgroup")
    a(f"v_mov_b32 v{vU}, v{vL}")
    a(f"s_lshl_b32 s50, s{sW}, 8")
    a(f"v_add_u32 v{vT}, s50, v{vMla}")
    a(f"v_permlane32_swap_b32 v{vL}, v{vU}")
    a(f"v_add_f32 v{vL}, v{vL}, v{vU}")
    a(f"ds_write_b64 v{vT}, {vr(vMC, 2)}")
    for j in range(0, 16, 2): a(f"v_mov_b64 {vr(O0+j, 2)}, 0")
    a(f"s_lshl_b32 s{sT0}, s{sMem}, 2"); a(f"s_add_u32 s{sT0}, s{sT0}, 2")
    a(f"s_add_u32 s{sCnt}, s{sMem}, 32"); a(f"s_mov_b32 s{sBase}, 0")
    a(f"s_sub_u32 s{sSlot}, s{sMem}, 1")
    a("s_waitcnt lgkmcnt(0)")
    a("s_barrier")
    for k in range(7): a(f"ds_read_b32 v{KF + k}, v{vMla} offset:{256*k}")
    cm("wave 6 of the first workgroup stages the tree tile's probabilities (slot 18) now; it owns no tile of the first V round")
    a(f"s_mov_b32 s{sCur}, {18*8}"); a(f"s_mov_b32 s50, {L_TP - L_PS}")
    a(f"s_add_u32 s51, s{sW}, s{sMy}"); a("s_cmp_eq_u32 s51, 5")
    a("s_waitcnt lgkmcnt(0)")
    a(f"v_max3_f32 v{vMC}, v{KF}, v{KF+1}, v{KF+2}"); a(f"v_max3_f32 v{vMC}, v{vMC}, v{KF+3}, v{KF+4}"); a(f"v_max3_f32 v{vMC}, v{vMC}, v{KF+5}, v{KF+6}")
    a("s_cbranch_scc1 L_dump")
    lab("L_stage")
    cm("stage my tile of the coming round (tiles t0 .. t0+3; the closing half round is tiles 0, 1), if I own one")
    a(f"s_cmp_eq_u32 s{sCnt}, 1"); a(f"s_cselect_b32 s{sT0}, 0, s{sT0}"); a(f"s_cselect_b32 s{sLim}, 1, 3")
    a(f"s_add_u32 s50, s{sT0}, 6"); a(f"s_sub_u32 s50, s50, s{sWo}")
    a("s_mul_i32 s50, s50, 9363"); a("s_lshr_b32 s50, s50, 16")
    a(f"s_lshl_b32 s{sCur}, s50, 3")
    a(f"s_sub_u32 s50, s{sCur}, s50"); a(f"s_add_u32 s50, s50, s{sWo}"); a(f"s_sub_u32 s50, s50, s{sT0}")
    a(f"s_cmp_gt_u32 s50, s{sLim}"); a("s_cbranch_scc1 L_vnext")
    a(f"s_lshl_b32 s50, s50, 11"); a(f"s_add_u32 s50, s50, s{sBase}")
    lab("L_dump")
    a(f"s_lshl_b32 s51, s{sCur}, 4")
    a(f"v_add_u32 v{vT}, s51, v{vMIa}")
    a(f"ds_read_b32 v{vT}, v{vT}")
    a(f"v_add_u32 v{vU}, s50, v{vPa}")
    a("s_waitcnt lgkmcnt(0)")
    a(f"v_sub_f32 v{vT}, v{vMC}, v{vT}")
    a(f"v_min_f32 v{vT}, {f32(255.0)}, v{vT}")
    a(f"v_cvt_u32_f32 v{vT}, v{vT}")
    a(f"v_mul_u32_u24 v{vT}, 0x800080, v{vT}")
    a(f"s_set_gpr_idx_on s{sCur}, gpr_idx(SRC0)"); a("s_nop 0")
    for j in range(8): a(f"v_pk_sub_u16 v{DT+j}, v{PB+j}, v{vT} clamp")
    a("s_set_gpr_idx_off")
    a(f"ds_write_b128 v{vU}, {vr(DT, 4)}"); a(f"ds_write_b128 v{vU}, {vr(DT+4, 4)} offset:1024")
    lab("L_vnext")
    a(f"s_add_u32 s{sT0}, s{sT0}, 4"); a(f"s_cmp_eq_u32 s{sT0}, 130"); a(f"s_cselect_b32 s{sT0}, 2, s{sT0}")
    a(f"v_add_u32 v{vT}, s{sBuf}, v{vVa}"); a(f"v_add_u32 v{vU}, s{sBase}, v{vPa}")
    a(f"s_xor_b32 s{sBase}, s{sBase}, 8192")
    nextbuf()
    a(f"s_sub_u32 s{sCnt}, s{sCnt}, 1")
    a(f"s_cmp_gt_u32 s{sW}, 3")
    a("s_waitcnt lgkmcnt(0)")
    a("s_cbranch_scc1 L_vside")
    a(f"s_cmp_eq_u32 s{sCnt}, s{sSlot}"); a("s_cbranch_scc1 L_close")
    a(f"s_cmp_eq_u32 s{sCnt}, 0")
    if st6:
        a("s_memrealtime s[74:75]")
    a("s_barrier")
    if st6:
        a("s_memrealtime s[76:77]")
    lab("L_vbody")
    def vreads(t):
        for u in range(2):
            for z in range(2): a(f"ds_read_b64_tr_b16 {vr(VF + 8*t + 4*u + 2*z, 2)}, v{vT} offset:{8192*t + 4096*u + 2048*z}")
    def preads(t):
        for u in range(2): a(f"ds_read_b128 {vr(PF + 8*t + 4*u, 4)}, v{vU} offset:{2048*t + 1024*u}")
    def pvm(t):
        for u in range(2): a(f"v_mfma_f32_32x32x16_bf16 {vr(O0, 16)}, {vr(VF + 8*t + 4*u, 4)}, {vr(PF + 8*t + 4*u, 4)}, {vr(O0, 16)}")
    preads(0); vreads(0); preads(1); vreads(1)
    a("s_waitcnt lgkmcnt(6)"); pvm(0)
    a("s_cbranch_scc1 L_last")
    preads(2); vreads(2)
    a("s_waitcnt lgkmcnt(6)"); pvm(1)
    preads(3); vreads(3)
    a("s_waitcnt lgkmcnt(6)"); pvm(2)
    a(f"s_cmp_eq_u32 s{sCnt}, 20")
    a("s_waitcnt lgkmcnt(0)"); pvm(3)
    a("s_cbranch_scc0 L_stage")
    cm("once: the sum L; the tree tile (keys 0..15 only)")
    for k in range(7): a(f"ds_read_b64 {vr(KF + 2*k, 2)}, v{vMla} offset:{256*k}")
    a(f"v_add_u32 v{vT}, {L_TV}, v{vVa}")
    a(f"ds_read_b128 {vr(PF, 4)}, v{vPa} offset:{L_TP - L_PS}")
    for z in range(2): a(f"ds_read_b64_tr_b16 {vr(PF + 4 + 2*z, 2)}, v{vT} offset:{2048*z}")
    a(f"s_cmp_lg_u32 s{sMem}, 0")
    a("s_waitcnt lgkmcnt(0)")
    for k in range(7): a(f"v_sub_f32 v{KF+2*k}, v{KF+2*k}, v{vMC}")
    for k in range(7): a(f"v_exp_f32 v{KF+2*k}, v{KF+2*k}")
    a(f"v_mul_f32 v{vL}, v{KF}, v{KF+1}")
    for k in range(1, 7): a(f"v_fma_f32 v{vL}, v{KF+2*k}, v{KF+2*k+1}, v{vL}")
    a("s_cbranch_scc1 L_stage")
    a(f"v_mfma_f32_32x32x16_bf16 {vr(O0, 16)}, {vr(PF + 4, 4)}, {vr(PF, 4)}, {vr(O0, 16)}")
    a("s_branch L_stage")

    lab("L_last")
    cm("=============== closing half round and hand-off")
    PP, PM = 120, 136
    def addrs(r): a(f"v_lshlrev_b32 v{r}, 4, v{vLane}"); a(f"v_lshlrev_b32 v{r+1}, 3, v{vLane}"); a(f"v_add_u32 v{r+1}, 4096, v{r+1}")
    def fetch(r):
        a(f"buffer_load_dwordx2 {vr(PM, 2)}, v{r+1}, {SD}, 0 offen {hlf}")
        for x in range(4): a(f"buffer_load_dwordx4 {vr(PP + 4*x, 4)}, v{r}, {SD}, 0 offen offset:{1024*x} {hlf}")
    addrs(DT + 2)
    a(f"s_cmp_lg_u32 s{sMem}, 0")
    a("s_waitcnt lgkmcnt(0)"); pvm(1)
    a("s_cbranch_scc1 L_merge")
    cm("first workgroup: publish, then raise the flag")
    a(f"buffer_store_dwordx2 {vr(vMC, 2)}, v{DT+3}, {SD}, 0 offen {hsf}")
    a("s_nop 9")
    for x in range(4): a(f"buffer_store_dwordx4 {vr(O0 + 4*x, 4)}, v{DT+2}, {SD}, 0 offen offset:{1024*x} {hsf}")
    st(3)
    a("s_mov_b32 s50, 8")
    a(f"s_cmp_lg_u32 s{sW}, 0")
    a("s_waitcnt vmcnt(0)")
    st(4)
    a("s_barrier")
    st(5)
    a("s_cbranch_scc1 L_done")
    a("s_atomic_xor s50, s[66:67], 0")
    a("s_branch L_done")
    lab("L_close")
    cm("second workgroup: the closing rendezvous also waits for wave 5 to have seen the flag; fetch the other result first")
    addrs(DT + 2)
    st(1)
    a("s_barrier")
    st(2)
    fetch(DT + 2)
    a("s_branch L_vbody")
    lab("L_merge")
    st(3); st(4)
    a(f"v_lshlrev_b32 v{DT+4}, 8, v{vR}"); a(f"v_lshl_add_u32 v{DT+4}, v{vH}, 4, v{DT+4}")
    FA, FB = 138, 140
    a("s_waitcnt vmcnt(4)")
    a(f"v_max_f32 v{vT}, v{vMC}, v{PM}")
    a(f"v_sub_f32 v{FA}, v{vMC}, v{vT}"); a(f"v_sub_f32 v{FB}, v{PM}, v{vT}")
    a(f"v_exp_f32 v{FA}, v{FA}"); a(f"v_exp_f32 v{FB}, v{FB}")
    a(f"v_mul_f32 v{vT}, v{FA}, v{vL}")
    a(f"v_fma_f32 v{vT}, v{FB}, v{PM+1}, v{vT}")
    a(f"v_rcp_f32 v{vT}, v{vT}")
    a("s_nop 0")
    a(f"v_mul_f32 v{FA}, v{FA}, v{vT}"); a(f"v_mul_f32 v{FB}, v{FB}, v{vT}")
    for j in range(8): a(f"v_pk_mul_f32 {vr(O0+2*j, 2)}, {vr(O0+2*j, 2)}, {vr(FA, 2)} op_sel_hi:[1,0]")
    for b in range(2):
        a(f"s_waitcnt vmcnt({2 if b == 0 else 1})")
        if b == 1: st(5)
        for j in range(4*b, 4*b + 4): a(f"v_pk_fma_f32 {vr(O0+2*j, 2)}, {vr(PP+2*j, 2)}, {vr(FB, 2)}, {vr(O0+2*j, 2)} op_sel_hi:[1,0,1]")
        for j in (0, 2, 1, 3): a(f"v_cvt_pk_bf16_f32 v{KF+4*b+j}, v{O0+8*b+2*j}, v{O0+8*b+2*j+1}")
        a(f"v_permlane32_swap_b32 v{KF+4*b}, v{KF+4*b+2}"); a("s_nop 0"); a(f"v_permlane32_swap_b32 v{KF+4*b+1}, v{KF+4*b+3}")
        a(f"buffer_store_dwordx4 {vr(KF+4*b, 4)}, v{DT+4}, {SO}, s69 offen offset:{32*b} {ofl}")
    st(6)
    lab("L_done")
    if st6:
        a("s_waitcnt vmcnt(0)"); a("s_memrealtime s[86:87]"); a("s_waitcnt lgkmcnt(0)")
        a(f"s_lshl_b32 s50, s{sMem}, 2"); a("v_mov_b32 v20, s50")
        for i in range(1, 8): a(f"v_writelane_b32 v20, s{72+2*i}, {i}")
        a("s_lshl_b32 s50, s2, 2"); a(f"s_add_u32 s50, s50, s{sW}"); a("s_lshl_b32 s50, s50, 8"); a("s_add_u32 s50, s50, 0x200000")
        a(f"v_lshl_add_u32 v21, v{vLane}, 2, s50")
        a("global_store_dword v21, v20, s[52:53]")
    if cal:
        lab("L_cal")
        a("s_memrealtime s[56:57]"); a("s_waitcnt lgkmcnt(0)"); a("s_sub_u32 s56, s56, s54"); a(f"s_cmp_lt_u32 s56, {cal}"); a("s_cbranch_scc1 L_cal")
    if stamp: stamp_out()
    lab("L_end")
    a("s_endpgm")

    lab("L_vside")
    cm("waves 5..7 only stage")
    a(f"s_cmp_eq_u32 s{sCnt}, 0"); a("s_cbranch_scc1 L_end")
    a("s_barrier")
    a(f"s_cmp_lg_u32 s{sW}, 4"); a("s_cbranch_scc1 L_stage")
    a(f"s_cmp_eq_u32 s{sCnt}, 24"); a("s_cbranch_scc1 L_hsfin")
    a(f"s_cmp_lg_u32 s{sCnt}, s{sMem}"); a("s_cbranch_scc1 L_stage")
    cm("wave 5 of the second workgroup owns no tile of the closing half round: it watches the word")
    a(f"s_mov_b32 s71, {BOUND}")
    lab("L_poll")
    a(f"global_load_dword v{vU}, v{vZ}, s[66:67] sc1")
    a("s_sub_u32 s71, s71, 1"); a("s_cbranch_scc1 L_seen")
    a("s_waitcnt vmcnt(0)")
    a(f"v_readfirstlane_b32 s50, v{vU}")
    a(f"s_xor_b32 s50, s50, s{sSnap}")
    a("s_bitcmp1_b32 s50, 3"); a("s_cbranch_scc0 L_poll")
    lab("L_seen")
    a("s_barrier")
    a("s_endpgm")

    cm("=============== out-of-line pieces of the K phase")
    lab("L_kbias")
    a(f"v_mfma_f32_32x32x16_bf16 {vr(S0, 16)}, {vr(KF, 4)}, {vr(Q0, 4)}, {vr(S0, 16)}")
    a("s_branch L_k1")
    lab("L_kidle")
    a(f"s_cmp_eq_u32 s{sW}, 4"); a("s_cbranch_scc1 L_hs")
    a(f"s_add_u32 s50, s{sW}, s{sMy}"); a("s_cmp_lg_u32 s50, 5"); a("s_cbranch_scc1 L_knext")
    a(f"s_cmp_eq_u32 s{sCnt}, 31"); a("s_cbranch_scc1 L_tree1")
    a(f"s_cmp_lg_u32 s{sCnt}, 29"); a("s_cbranch_scc1 L_knext")
    cm("tree tokens, step 2: score bias (1-mask) * -1e9 / scale, then the ordinary tile code")
    big = 1e9 * math.sqrt(128)
    TM = PB + 18 * 8
    a(f"s_mov_b32 s51, {f32(big)}")
    a(f"v_mov_b32 v{vU}, {f32(-big)}")
    for j in range(8, 16): a(f"v_mov_b32 v{S0+j}, 0xff800000")
    a("s_waitcnt vmcnt(0)")
    for j in range(4):
        a(f"v_lshlrev_b32 v{S0+2*j}, 16, v{TM+j}"); a(f"v_and_b32 v{S0+2*j+1}, 0xffff0000, v{TM+j}")
    for j in range(8): a(f"v_fma_f32 v{S0+j}, v{S0+j}, s51, v{vU}")
    a(f"s_mov_b32 s{sCur}, {18*8}"); a(f"s_mov_b32 s50, {L_TK}")
    a("s_branch L_ktile")
    lab("L_tree1")
    cm("tree tokens, step 1 (wave 6 of the first workgroup): K/V -> LDS, mask -> registers")
    k_offsets()
    a(f"s_lshl_b32 s45, s{sPair}, 12"); a("s_movk_i32 s51, 4096")
    a("s_add_u32 s20, s10, s45"); a("s_addc_u32 s21, s11, 0"); a("s_mov_b32 s22, 4096"); a("s_mov_b32 s23, 0x20000")
    a(f"s_mov_b32 m0, {L_TK}")
    a("s_add_u32 s28, s12, s45"); a("s_addc_u32 s29, s13, 0"); a("s_mov_b32 s30, 4096"); a("s_mov_b32 s31, 0x20000")
    for j in range(4): a(f"buffer_load_dwordx4 v{vOff[j]}, {SS}, 0 offen offset:{j*1024} {qfl} lds")
    a(f"s_mov_b32 m0, {L_TK + 4096}")
    a(f"s_lshr_b32 s50, s{sPair}, 4"); a("s_lshl_b32 s50, s50, 9")
    for j in range(4): a(f"buffer_load_dwordx4 v{vOff[j]}, {SS}, s51 offen offset:{j*1024} lds")
    v_offset()
    a(f"s_mov_b32 m0, {L_TV}")
    a("s_add_u32 s36, s14, s50"); a("s_addc_u32 s37, s15, 0"); a("s_mov_b32 s38, 512"); a("s_mov_b32 s39, 0x20000")
    for j in range(4): a(f"buffer_load_dwordx4 v{vOff[0]}, {SQ}, 0 offen offset:{j*1024} {qfl} lds")
    a(f"v_and_b32 v{vU}, 15, v{vR}"); a(f"v_lshlrev_b32 v{vU}, 5, v{vU}"); a(f"v_lshl_add_u32 v{vU}, v{vH}, 3, v{vU}")
    a(f"buffer_load_dwordx2 {vr(TM, 2)}, v{vU}, {SM}, 0 offen")
    a(f"buffer_load_dwordx2 {vr(TM+2, 2)}, v{vU}, {SM}, 0 offen offset:16")
    a("s_branch L_knext")
    cm("hand-off word: bit 0 started, bit 1 acknowledged, bit 3 result published; +8 for the second workgroup. Only changes")
    cm("against the value seen at my own start count, and nothing is published before both have taken that snapshot.")
    def hs_poll(again, done):
        a(f"global_load_dword v{vU}, v{vZ}, s[66:67] sc1")
        a("s_waitcnt vmcnt(0)")
        a(f"v_readfirstlane_b32 s50, v{vU}")
        a(f"s_xor_b32 s50, s50, s{sSnap}"); a(f"s_lshr_b32 s50, s50, s{sOt}")
        a("s_and_b32 s51, s50, 3"); a(f"s_cbranch_scc0 {again}")
        a(f"s_mov_b32 s{sSt}, 2")
        a("s_bitcmp1_b32 s50, 0"); a(f"s_cbranch_scc0 {done}")
        a(f"s_lshl_b32 s{sAck}, 2, s{sMy}"); a(f"s_atomic_xor s{sAck}, s[66:67], 0")
        a(f"s_branch {done}")
    lab("L_hs")
    if "v" in warm:
        a(f"s_cmp_gt_u32 s{sCnt}, 4"); a("s_cbranch_scc1 L_hs0")
        a(f"s_lshl_b32 s50, s{sPair}, 21"); a("s_add_u32 s50, s8, s50"); a("s_addc_u32 s51, s9, 0")
        a(f"global_load_dword v{vTmp[0]}, v{vZ}, s[50:51] nt")
        lab("L_hs0")
    a(f"s_cmp_eq_u32 s{sSt}, 2"); a("s_cbranch_scc1 L_knext")
    a(f"s_cmp_eq_u32 s{sLim}, 1"); a("s_cbranch_scc1 L_knext")
    hs_poll("L_knext", "L_knext")
    lab("L_hsfin")
    if "o" in warm: a(f"buffer_load_dword v{vTmp[0]}, v{vZ}, {SO}, s69 offen")
    a(f"s_mov_b32 s71, {BOUND}")
    lab("L_hsw")
    a(f"s_cmp_eq_u32 s{sSt}, 2"); a("s_cbranch_scc1 L_stage")
    a("s_sub_u32 s71, s71, 1"); a("s_cbranch_scc1 L_stage")
    hs_poll("L_hsw", "L_stage")
    check_hazards([x for x in L if not x.startswith(".")])
    out = HEADER + DOC + f"; @launch grid=(256,1,1) block=(512,1,1) lds={LDS}\n"
    out += '.amdgcn_target "amdgcn-amd-amdhsa--gfx950"\n.text\n' + f".globl {NAME}\n.p2align 8\n.type {NAME},@function\n{NAME}:\n"
    out += "\n".join(L) + "\n"
    out += '.section .rodata,"a"\n.p2align 6\n' + f".amdhsa_kernel {NAME}\n"
    out += f"  .amdhsa_next_free_vgpr 256\n  .amdhsa_next_free_sgpr 96\n  .amdhsa_accum_offset 256\n"
    out += "  .amdhsa_group_segment_fixed_size 0\n  .amdhsa_kernarg_size 72\n  .amdhsa_user_sgpr_count 2\n"
    out += "  .amdhsa_user_sgpr_kernarg_segment_ptr 1\n  .amdhsa_system_sgpr_workgroup_id_x 1\n.end_amdhsa_kernel\n"
    return out

if __name__ == "__main__":
    out = sys.argv[1]
    kw = {}
    for x in sys.argv[2:]:
        k, v = x.split("=", 1)
        if v in ("True", "False"): v = v == "True"
        else:
            try: v = int(v)
            except ValueError: pass
        kw[k] = v
    open(out, "w").write(gen(**kw))
```

```python
import sys, struct, math
from hz import check_hazards
NAME = "standalone__tree_speculative_verify_tree_attention_over_candidate_token_tree__sampling_kernel"
HEADER = open("standalone__tree_speculative_verify_tree_attention_over_candidate_token_tree__sampling.s.ref").read().split("; Override launch")[0]
DOC = """; Workgroups wg and wg^8 share one (batch, kv-head): the first takes 126 tiles of 32 keys plus the tree tokens, the second 130.
"""

def f32(x): return "0x%08x" % struct.unpack("<I", struct.pack("<f", x))[0]

def gen(levels="19,20,21,23,32", start=1, lmap="01111223", cps="4,10,16,22,28,34,40,45,50,54,57,59", SP=62, LH=32, jbits="12,13,14,11,10", mbit=16,
        stamp=False, fl="nt", prio=3, xat=8, st4=False, st6=False, cal=0, ofl="", WSOFF=0, BOUND=1 << 22, pre=False, LH0=0, SP2=0, spoll=0, boost=0, shalf=0, qfl="", hsf="sc1", hlf="sc1", R=8, rmap="011112223", rot=3, help="", hfl="", adj=0, warm="", calp=0, reh=0):
    L = []
    def a(s): L.append("    " + s)
    def lab(s): L.append(s + ":")
    def cm(s): L.append("    ; " + s)
    def vr(b, n): return f"v[{b}:{b+n-1}]"
    RB = 32768
    L_PS = 3 * RB
    L_Q, L_TK = L_PS, L_PS + 8192
    L_MI = L_PS + 16384
    L_TV = L_MI + 17408
    L_TP = L_TV + 4096
    L_ML = L_TP + 2048
    LDS = L_ML + 2048
    W_WORD = WSOFF
    W_RANK = WSOFF + 65536
    W_DATA = WSOFF + 262144
    PS = 18432 + (256 if adj else 0)
    vLane, vH, vR, vMIa = 96, 97, 98, 99
    vM, vMC, vL, vT, vU, vAL = 101, 102, 103, 1, 6, 7
    vTmp = [0, 100]
    Q0, KF, S0, vKrd, PB = 8, 40, 72, list(range(88, 96)), 104
    PF, VF, O0, DT = 8, 40, 72, 88
    vVa, vPa, vZ, vMla = 2, 3, 4, 5
    vOff = [40, 41, 42, 43]
    sPair, sMem, sK, sT, sBuf, sC, sCnt, sJ, sSlot, sCur, sBase, sW, sSnap, sSt, sMy, sOt = 40, 41, 42, 43, 44, 46, 47, 48, 49, 60, 61, 59, 62, 63, 64, 65
    sLim, sStep, sT0, sAck, sN, sWo = 68, 70, 48, 94, 95, 93
    SS, SQ, SO, SM, SD = "s[20:23]", "s[28:31]", "s[32:35]", "s[36:39]", "s[24:27]"
    c = (128 ** -0.5) * math.log2(math.e)
    jb = [int(x) for x in str(jbits).split(",")]
    def B(j): return sum(((j >> i) & 1) << b for i, b in enumerate(jb))
    maskR = sum(1 << b for b in range(10, 21) if b not in jb and b != mbit)
    lowR = (maskR & -maskR).bit_length() - 1
    lv = [float(x) for x in str(levels).split(",")]
    cp = [int(x) for x in str(cps).split(",")] if cps != "" else []
    assert len(cp) <= 16
    lm = [int(ch) for ch in str(lmap).zfill(8)]
    def st(n):
        if st6: a(f"s_memrealtime s[{72+2*n}:{73+2*n}]")

    def stamp_out():
        a("s_waitcnt vmcnt(0)")
        a("s_memrealtime s[56:57]")
        a("s_getreg_b32 s58, hwreg(HW_REG_XCC_ID)")
        a("s_waitcnt lgkmcnt(0)")
        a("v_mov_b32 v8, s54"); a("v_mov_b32 v9, s56"); a("v_mov_b32 v10, s58");  a("v_mov_b32 v11, 0")
        a("s_lshl_b32 s50, s2, 3"); a("s_add_u32 s50, s50, s3"); a("s_lshl_b32 s50, s50, 4")
        a("v_mov_b32 v12, s50")
        a("s_mov_b64 exec, 1")
        a("global_store_dwordx4 v12, v[8:11], s[52:53]")
    def ids():
        a(f"v_and_b32 v{vLane}, 63, v0")
        a(f"s_lshr_b32 s{sPair}, s2, 4"); a(f"s_lshl_b32 s{sPair}, s{sPair}, 3"); a("s_and_b32 s50, s2, 7"); a(f"s_or_b32 s{sPair}, s{sPair}, s50")
        a(f"s_bfe_u32 s{sMem}, s2, 0x10003")
    def k_offsets():
        cm("K-shaped DMA source offsets: row rr = lane>>4, slot p = lane&15 -> rr*256 + ((p ^ (4j+rr)) * 16)")
        a(f"v_lshlrev_b32 v{vTmp[0]}, 4, v{vLane}")
        a(f"v_and_b32 v{vTmp[1]}, 0x30, v{vLane}")
        a(f"v_xor_b32 v{vOff[0]}, v{vTmp[0]}, v{vTmp[1]}")
        for j in range(1, 4): a(f"v_xor_b32 v{vOff[j]}, {64*j}, v{vOff[0]}")
    def v_offset():
        cm("V DMA source offset: rr*256 + ((p ^ 4rr) * 16)")
        a(f"v_lshlrev_b32 v{vTmp[0]}, 4, v{vLane}")
        a(f"v_and_b32 v{vTmp[1]}, 0x30, v{vLane}")
        a(f"v_lshlrev_b32 v{vTmp[1]}, 2, v{vTmp[1]}")
        a(f"v_xor_b32 v{vOff[0]}, v{vTmp[0]}, v{vTmp[1]}")
    def nextbuf():
        a(f"s_add_u32 s{sBuf}, s{sBuf}, {RB}")
        a(f"s_cmp_eq_u32 s{sBuf}, {3*RB}"); a(f"s_cselect_b32 s{sBuf}, 0, s{sBuf}")

    a("s_load_dwordx16 s[4:19], s[0:1], 0")
    a("s_load_dwordx2 s[52:53], s[0:1], 64")
    if stamp or cal: a("s_memrealtime s[54:55]")
    a("v_readfirstlane_b32 s3, v0")
    a("s_cmp_ge_u32 s2, 256"); a("s_cbranch_scc1 L_end")
    a("s_lshr_b32 s3, s3, 6")
    a("s_cbranch_scc1 L_cons")
    cm("=============== loader wave")
    if prio: a(f"s_setprio {prio}")
    ids(); k_offsets()
    for j in range(1, 4):
        assert B(j) >= 1024*j
        a(f"v_mov_b32 v{vOff[j]+4}, v{vOff[j]}")
        a(f"v_add_u32 v{vOff[j]}, {B(j) - 1024*j}, v{vOff[j]}")
    a(f"s_lshl_b32 s50, s{sPair}, 13"); a("s_mov_b32 s30, 8192"); a("s_mov_b32 s31, 0x20000"); a("s_movk_i32 s51, 4096")
    a(f"s_lshl_b32 s45, s{sPair}, 21")
    a("s_mov_b32 s22, 0x200000"); a("s_mov_b32 s23, 0x20000")
    a(f"s_mul_i32 s46, s{sMem}, {B(16)}"); a(f"s_add_u32 s46, s46, {maskR}")
    a(f"s_mov_b32 s{sBuf}, 0"); a(f"s_mov_b32 s{sCnt}, 0")
    def vm(x, n):
        lo = int(x); fr = x - lo
        return lo + (1 if (n % 16) < fr * 16 else 0) - 1
    def half(x):
        for g in range(4):
            a(f"s_add_u32 m0, s{sBuf}, {g*4096}"); a(f"s_add_u32 s{sT}, s46, {B(4*g)}")
            for j in range(4):
                if x: a(f"s_waitcnt vmcnt({vm(x, 0)})")
                a(f"buffer_load_dwordx4 v{vOff[j]}, {SS}, s{sT} offen offset:{j*1024} {fl} lds")
    a("s_waitcnt lgkmcnt(0)")
    a("s_add_u32 s20, s6, s45"); a("s_addc_u32 s21, s7, 0")
    if shalf:
        lab("L_half")
        half(float(LH))
        a(f"s_cmp_lg_u32 s{sCnt}, 0"); a("s_cbranch_scc1 L_h2")
    else: half(0)
    a(f"s_mov_b32 m0, {L_Q}"); a("s_add_u32 s28, s4, s50"); a("s_addc_u32 s29, s5, 0")
    for j in range(4): a(f"buffer_load_dwordx4 v{vOff[j] + (4 if j else 0)}, {SQ}, 0 offen offset:{j*1024} {qfl} lds")
    a(f"s_mov_b32 m0, {L_Q + 4096}"); a("s_nop 0")
    for j in range(4): a(f"buffer_load_dwordx4 v{vOff[j] + (4 if j else 0)}, {SQ}, s51 offen offset:{j*1024} {qfl} lds")
    cm("rounds at which something besides streaming is due: a progress check, its result, the switch to V, the sprint, the end")
    def evm(n): return sum(1 << (r - 1) for r in set(cp) | set(r + 1 for r in cp) | {n, 2 * n} | ({SP} if SP < 2 * n else set()) | ({SP2} if SP2 else set()) | ({boost} if boost else set()))
    cpm = sum(1 << r for r in cp)
    a(f"s_lshl_b32 s48, s{sMem}, {mbit}"); a(f"s_mov_b32 s{sK}, s48"); a(f"s_mov_b32 s{sBuf}, {RB}")
    a(f"s_add_u32 s{sN}, s{sMem}, 31"); a(f"s_add_u32 s49, s{sN}, 1")
    a(f"s_mov_b32 s84, {(evm(31) | evm(32)) & 0xffffffff:#x}"); a(f"s_mov_b32 s85, {(evm(31) | evm(32)) >> 32:#x}")
    a(f"s_mov_b32 s86, {cpm & 0xffffffff:#x}"); a(f"s_mov_b32 s87, {cpm >> 32:#x}")
    a(f"s_mov_b32 s88, {start}"); a("s_lshr_b32 s89, s2, 4"); a("s_and_b32 s90, s2, 7")
    if R == 32: a(f"s_lshl_b32 s91, s{sMem}, 8"); a(f"s_add_u32 s91, s91, {W_RANK}")
    else: a(f"s_mov_b32 s91, {W_RANK}"); a("s_lshr_b32 s89, s2, 3"); a("s_lshl_b32 s90, s90, 2"); a(f"s_add_u32 s90, s90, {rot}")
    a("s_mov_b32 s92, -1")
    if st4: a("s_mov_b32 s74, 0"); a("v_mov_b32 v20, 0"); a("v_mov_b32 v21, 0"); a("v_mov_b32 v22, 0")
    def rnd(x, sfx):
        bar_at = min(n for n in range(32) if vm(x, n) <= n)
        for g in range(8):
            if 4 * g == xat:
                a(f"s_cmp_lg_u32 s{sCnt}, s49"); a(f"s_cbranch_scc1 L_nx{sfx}")
                if st4: a("s_memrealtime s[76:77]")
                a("s_barrier")
                if st4: a("s_memrealtime s[78:79]")
                lab("L_nx" + sfx)
            a(f"s_add_u32 m0, s{sBuf}, {g*4096}"); a(f"s_add_u32 s{sT}, s{sK}, {B(4*g)}")
            for j in range(4):
                n = 4 * g + j
                a(f"s_waitcnt vmcnt({vm(x, n)})")
                a(f"buffer_load_dwordx4 v{vOff[j]}, {SS}, s{sT} offen offset:{j*1024} {fl} lds")
                if n == bar_at:
                    if st4: a("s_memrealtime s[70:71]")
                    a("s_barrier")
                    if st4: a("s_memrealtime s[72:73]")
    order = [start] + [i for i in range(len(lv)) if i != start]
    if boost: order = [order[-1]] + order[:-1]
    for i in order:
        lab(f"L_lv{i}")
        rnd(lv[i], str(i))
        cm("next round: the source offset counts through the address bits a round leaves fixed; buffers rotate mod 3")
        nextbuf()
        if st4:
            a("s_waitcnt lgkmcnt(0)"); a("s_mov_b32 m0, s74"); a("s_add_u32 s74, s74, 1")
            a("v_writelane_b32 v20, s70, m0"); a("v_writelane_b32 v21, s72, m0")
        a(f"s_or_b32 s{sK}, s{sK}, {(~maskR) & 0xffffffff:#x}"); a(f"s_add_u32 s{sK}, s{sK}, 1"); a(f"s_and_b32 s{sK}, s{sK}, {maskR:#x}")
        a(f"s_or_b32 s{sK}, s{sK}, s48")
        a(f"s_add_u32 s50, s{sCnt}, 1")
        a(f"s_bitcmp1_b64 s[84:85], s{sCnt}"); a(f"s_mov_b32 s{sCnt}, s50")
        a(f"s_cbranch_scc0 L_lv{i}")
        if i != order[-1]: a("s_branch L_event")
    lab("L_event")
    a(f"s_lshl_b32 s50, s{sN}, 1"); a(f"s_cmp_eq_u32 s{sCnt}, s50"); a("s_cbranch_scc1 " + ("L_half" if shalf else "L_ldfin"))
    a(f"s_cmp_lg_u32 s{sCnt}, s{sN}"); a("s_cbranch_scc1 L_nosw")
    cm("K is done, go on with V (the second workgroup, one round behind by now, starts at round 1 to stay beside the first)")
    a("s_add_u32 s20, s8, s45"); a("s_addc_u32 s21, s9, 0")
    a(f"s_lshl_b32 s{sK}, s{sMem}, {lowR}"); a(f"s_or_b32 s{sK}, s{sK}, s48")
    v_offset()
    for j in range(1, 4): a(f"v_add_u32 v{vOff[j]}, {B(j) - 1024*j}, v{vOff[0]}")
    lab("L_nosw")
    if cp:
        cm("load balance: eight workgroups count themselves in at each check, the others read the count; the later a workgroup came, the more it keeps in flight")
        a(f"s_cmp_lg_u32 s{sCnt}, s92"); a("s_cbranch_scc1 L_noapply")
        a("s_waitcnt lgkmcnt(0)")
        if R == 32:
            word = sum(v << (4 * i) for i, v in enumerate(lm))
            a("s_min_u32 s93, s93, 7"); a("s_lshl_b32 s93, s93, 2")
            a(f"s_lshr_b32 s93, {word:#x}, s93"); a("s_and_b32 s88, s93, 15")
            lab("L_noapply")
            a(f"s_bitcmp1_b64 s[86:87], s{sCnt}"); a("s_cbranch_scc0 L_nocp")
            a("s_and_b32 s50, s89, 15"); a("s_lshl_b32 s50, s50, 9"); a("s_add_u32 s50, s50, s91")
            a("s_add_u32 s66, s52, s50"); a("s_addc_u32 s67, s53, 0")
            a("s_mov_b32 s93, 1"); a("s_atomic_add s93, s[66:67], 0 glc")
            a("s_add_u32 s91, s91, 8192"); a("s_add_u32 s89, s89, s90"); a(f"s_add_u32 s92, s{sCnt}, 1")
        else:
            per = 32 // R
            rm = [int(ch) for ch in str(rmap).zfill(9)]
            w1 = sum(v << (3 * i) for i, v in enumerate(lm + lm[-1:])); w2 = sum(v << (3 * i) for i, v in enumerate(rm))
            a("s_min_u32 s93, s93, 8"); a("s_mul_i32 s93, s93, 3")
            a("s_lshr_b32 s93, s94, s93"); a("s_and_b32 s88, s93, 7")
            lab("L_noapply")
            a(f"s_bitcmp1_b64 s[86:87], s{sCnt}"); a("s_cbranch_scc0 L_nocp")
            a(f"s_and_b32 s50, s89, {32 - per}"); a(f"s_lshl_b32 s50, s50, {8 - (per.bit_length() - 1)}"); a("s_add_u32 s50, s50, s91")
            a("s_add_u32 s66, s52, s50"); a("s_addc_u32 s67, s53, 0")
            a(f"s_add_u32 s91, s91, {256 * R}"); a(f"s_add_u32 s92, s{sCnt}, 1")
            a(f"s_and_b32 s50, s89, {per - 1}"); a("s_cbranch_scc1 L_reader")
            a("s_mov_b32 s93, 1"); a("s_atomic_add s93, s[66:67], 0 glc"); a(f"s_mov_b32 s94, {w1:#x}")
            a("s_branch L_rot")
            lab("L_reader")
            a("s_load_dword s93, s[66:67], 0 glc"); a(f"s_mov_b32 s94, {w2:#x}")
            lab("L_rot")
            a("s_add_u32 s89, s89, s90")
        lab("L_nocp")
    a(f"s_mul_i32 s50, s{sCnt}, s{sMem}")
    a(f"s_cmp_ge_u32 s50, {SP}"); a(f"s_cbranch_scc1 L_lv{len(lv) - 1}")
    if SP2: a(f"s_cmp_ge_u32 s50, {SP2}"); a(f"s_cbranch_scc1 L_lv{len(lv) - 2}")
    for i in [x for x in range(len(lv) - 1) if x != start]:
        a(f"s_cmp_eq_u32 s88, {i}"); a(f"s_cbranch_scc1 L_lv{i}")
    a(f"s_branch L_lv{start}")
    lab("L_ldfin")
    if LH0:
        a(f"s_cmp_lg_u32 s{sMem}, 0"); a("s_cbranch_scc1 L_h1")
        half(float(LH0))
        a("s_branch L_h2")
        lab("L_h1")
    if not shalf: half(float(LH))
    lab("L_h2")
    if help:
        tiles = [(1 << mbit) + B(8*t) for t in range(4)] + [maskR + B(16) + B(8*t) for t in range(2)]
        h0, h1, h2 = [[int(ch) for ch in x] for x in str(help).split("-")]
        a(f"s_cmp_lg_u32 s{sMem}, 0"); a("s_cbranch_scc1 L_nohelp")
        cm("first workgroup: pull the second one's last tiles into the L2 the two normally share (speed only)")
        a(f"v_and_b32 v50, 7, v{vLane}"); a("v_lshlrev_b32 v50, 7, v50")
        for i in range(3): a(f"v_bfe_u32 v51, v{vLane}, {3+i}, 1"); a(f"v_lshl_add_u32 v50, v51, {jb[i]}, v50")
        def pf(ts):
            for t in ts: a(f"s_mov_b32 s50, {tiles[t]}"); a(f"buffer_load_dword v{52+t}, v50, {SS}, s50 offen {hfl}")
        if h0: a("s_waitcnt vmcnt(24)")
        pf(h0)
        a(f"s_waitcnt vmcnt({16 + len(h0)})"); a("s_barrier")
        pf(h1)
        a(f"s_waitcnt vmcnt({len(h0) + len(h1)})"); a("s_barrier")
        pf(h2)
        a("s_barrier")
        if stamp: a("s_branch L_lst")
        else: a("s_endpgm")
        lab("L_nohelp")
    a("s_waitcnt vmcnt(16)"); a("s_barrier")
    a("s_waitcnt vmcnt(0)")
    if st4: a("s_memrealtime s[80:81]")
    a("s_barrier")
    if st4:
        a("s_memrealtime s[82:83]"); a("s_waitcnt lgkmcnt(0)")
        for i, r in enumerate((54, 76, 78, 80, 82)): a(f"v_writelane_b32 v22, s{r}, {i}")
        a("s_lshl_b32 s50, s2, 10"); a("s_add_u32 s50, s50, 0x200000")
        a(f"v_lshl_add_u32 v4, v{vLane}, 2, s50")
        a("global_store_dword v4, v20, s[52:53]"); a("global_store_dword v4, v21, s[52:53] offset:256"); a("global_store_dword v4, v22, s[52:53] offset:512")
    lab("L_lst")
    if stamp: stamp_out()
    a("s_endpgm")

    L.append(".p2align 6")
    lab("L_cons")
    cm("=============== consumers")
    ids()
    a(f"s_sub_u32 s{sW}, s3, 1")
    a(f"v_lshrrev_b32 v{vH}, 5, v{vLane}")
    a(f"v_and_b32 v{vR}, 31, v{vLane}")
    a(f"s_lshl_b32 s{sMy}, s{sMem}, 3"); a(f"s_xor_b32 s{sOt}, s{sMy}, 8")
    if adj: a(f"s_mul_i32 s50, s{sPair}, {PS}"); a(f"s_add_u32 s50, s50, {W_DATA + 18432}")
    else: a(f"s_lshl_b32 s50, s{sPair}, 8"); a(f"s_add_u32 s50, s50, {W_WORD}")
    a(f"s_cmp_lg_u32 s{sW}, 3")
    a("s_waitcnt lgkmcnt(0)")
    a("s_cbranch_scc1 L_noq")
    cm("wave 4 clears this workgroup's share of the arrival counters")
    a("s_lshl_b32 s45, s2, 8")
    if cp:
        a(f"s_add_u32 s45, s45, {W_RANK}")
        a(f"v_lshl_add_u32 v{vT}, v{vLane}, 16, s45"); a(f"v_mov_b32 v{vU}, 0")
        if R * len(cp) < 256: a(f"s_cmp_ge_u32 s2, {R * len(cp)}"); a("s_cbranch_scc1 L_noq")
        a(f"s_cmp_lt_u32 s2, {max(0, R * len(cp) - 256)}"); a("s_cselect_b32 exec_lo, 3, 1"); a("s_mov_b32 exec_hi, 0")
        a(f"global_store_dword v{vT}, v{vU}, s[52:53] sc1")
        a("s_mov_b64 exec, -1")
    lab("L_noq")
    a("s_add_u32 s66, s52, s50"); a("s_addc_u32 s67, s53, 0")
    a(f"s_cmp_lg_u32 s{sW}, 4"); a("s_cbranch_scc1 L_nohs")
    a(f"s_lshl_b32 s{sSnap}, 1, s{sMy}"); a(f"s_atomic_xor s{sSnap}, s[66:67], 0 glc")
    lab("L_nohs")
    cm("LDS read addresses for K-shaped tiles: r*256 + ((h ^ (r&15)) ^ 2s)*16, first pointing at Q")
    a(f"v_and_b32 v{vT}, 15, v{vR}")
    a(f"v_xor_b32 v{vT}, v{vT}, v{vH}")
    a(f"v_lshlrev_b32 v{vT}, 4, v{vT}")
    a(f"v_lshl_add_u32 v{vT}, v{vR}, 8, v{vT}")
    a(f"v_add_u32 v{vKrd[0]}, {L_Q}, v{vT}")
    for s in range(1, 8): a(f"v_xor_b32 v{vKrd[s]}, {32*s}, v{vKrd[0]}")
    cm("transposing V reads of column block w: row = 4h + r', chunk = (4w + 2gg + (c>>1)) ^ 4r', + 8*(c&1)")
    a(f"v_bfe_u32 v{vU}, v{vLane}, 2, 2")
    a(f"v_lshl_add_u32 v{vT}, v{vH}, 2, v{vU}")
    a(f"v_lshlrev_b32 v{vVa}, 8, v{vT}")
    a(f"v_xor_b32 v{vU}, s{sW}, v{vU}"); a(f"v_and_b32 v{vU}, 3, v{vU}")
    a(f"v_lshl_add_u32 v{vVa}, v{vU}, 6, v{vVa}")
    a(f"v_and_b32 v{vU}, 3, v{vLane}")
    a(f"v_lshl_add_u32 v{vVa}, v{vU}, 3, v{vVa}")
    a(f"v_and_b32 v{vU}, 16, v{vLane}")
    a(f"v_lshl_add_u32 v{vVa}, v{vU}, 1, v{vVa}")
    a(f"v_lshlrev_b32 v{vPa}, 4, v{vLane}"); a(f"v_add_u32 v{vPa}, {L_PS}, v{vPa}")
    a(f"v_mov_b32 v{vZ}, 0")
    a(f"v_lshlrev_b32 v{vMla}, 3, v{vR}"); a(f"v_add_u32 v{vMla}, {L_ML}, v{vMla}")
    a(f"s_mov_b32 s{sBase}, {L_Q}"); a(f"s_mov_b32 s{sC}, {f32(c)}"); a(f"s_add_u32 s{sCnt}, s{sMem}, 32")
    a(f"s_add_u32 s{sWo}, s{sW}, 2"); a(f"s_sub_u32 s50, s{sWo}, 7"); a(f"s_cselect_b32 s{sWo}, s{sWo}, s50")
    a(f"s_mov_b32 s{sBuf}, 0"); a(f"s_mov_b32 s{sJ}, s{sWo}"); a(f"s_mov_b32 s{sSlot}, 0"); a(f"s_mov_b32 s{sSt}, 0")
    a(f"s_mov_b32 s{sLim}, 1"); a(f"s_mov_b32 s{sStep}, 5")
    a(f"s_mul_i32 s50, s{sW}, {19*128}"); a(f"s_add_u32 s50, s50, {L_MI}")
    a(f"v_lshl_add_u32 v{vMIa}, v{vR}, 2, s50")
    a(f"v_mov_b32 v{vL}, 0"); a(f"v_mov_b32 v{vM}, {f32(-3.0e38)}"); a(f"v_mov_b32 v{vMC}, v{vM}")
    a(f"s_mul_i32 s50, s{sPair}, {PS}"); a(f"s_mul_i32 s51, s{sW}, 4608"); a("s_add_u32 s50, s50, s51"); a(f"s_add_u32 s50, s50, {W_DATA}")
    a("s_add_u32 s24, s52, s50"); a("s_addc_u32 s25, s53, 0"); a("s_movk_i32 s26, 4608"); a("s_mov_b32 s27, 0x20000")
    a("s_mov_b32 s32, s16"); a("s_mov_b32 s33, s17"); a("s_mov_b32 s34, 0x100000"); a("s_mov_b32 s35, 0x20000")
    a(f"s_lshl_b32 s50, s{sPair}, 13"); a(f"s_lshl_b32 s51, s{sW}, 6"); a("s_add_u32 s69, s50, s51")
    a("s_barrier")
    if calp == 1: a("s_memrealtime s[72:73]")
    for s in range(8): a(f"ds_read_b128 {vr(Q0 + 4*s, 4)}, v{vKrd[s]}")
    a("s_waitcnt lgkmcnt(0)")
    a("s_branch L_kgo")
    lab("L_kr")
    a("s_barrier")
    lab("L_kgo")
    a(f"s_cmp_gt_u32 s{sJ}, s{sLim}"); a("s_cbranch_scc1 L_kidle")
    a(f"s_lshl_b32 s50, s{sJ}, 13"); a(f"s_add_u32 s50, s50, s{sBuf}")
    a(f"s_mov_b32 s{sCur}, s{sSlot}"); a(f"s_add_u32 s{sSlot}, s{sSlot}, 8")
    lab("L_ktile")
    a(f"s_sub_u32 s51, s50, s{sBase}"); a(f"s_mov_b32 s{sBase}, s50")
    for s in range(8):
        a(f"v_add_u32 v{vKrd[s]}, s51, v{vKrd[s]}")
        a(f"ds_read_b128 {vr(KF + 4*s, 4)}, v{vKrd[s]}")
    a(f"s_lshl_b32 s50, s{sCur}, 4")
    a(f"v_add_u32 v{vTmp[1]}, s50, v{vMIa}")
    a(f"s_cmp_gt_u32 s{sJ}, 3")
    a("s_waitcnt lgkmcnt(7)")
    a("s_cbranch_scc1 L_kbias")
    a(f"v_mfma_f32_32x32x16_bf16 {vr(S0, 16)}, {vr(KF, 4)}, {vr(Q0, 4)}, 0")
    lab("L_k1")
    for s in range(1, 8):
        a(f"s_waitcnt lgkmcnt({7-s})")
        a(f"v_mfma_f32_32x32x16_bf16 {vr(S0, 16)}, {vr(KF + 4*s, 4)}, {vr(Q0 + 4*s, 4)}, {vr(S0, 16)}")
    a("s_nop 11")
    cm("online softmax; the reference is the running maximum rounded up to a whole power of two")
    a(f"v_max3_f32 v{vT}, v{S0}, v{S0+1}, v{vM}")
    a(f"v_max3_f32 v{vU}, v{S0+2}, v{S0+3}, v{S0+4}")
    for j in range(5, 15, 4):
        a(f"v_max3_f32 v{vT}, v{S0+j}, v{S0+j+1}, v{vT}")
        if j + 3 < 15: a(f"v_max3_f32 v{vU}, v{S0+j+2}, v{S0+j+3}, v{vU}")
    a(f"v_max3_f32 v{vT}, v{S0+15}, v{vU}, v{vT}")
    a(f"v_mov_b32 v{vU}, v{vT}")
    a("s_nop 1")
    a(f"v_permlane32_swap_b32 v{vT}, v{vU}")
    a(f"v_max_f32 v{vM}, v{vT}, v{vU}")
    a(f"v_mul_f32 v{vT}, s{sC}, v{vM}")
    a(f"v_ceil_f32 v{vT}, v{vT}")
    a(f"v_sub_f32 v{vAL}, v{vMC}, v{vT}")
    a(f"v_mov_b32 v{vMC}, v{vT}")
    a(f"ds_write_b32 v{vTmp[1]}, v{vT}")
    a(f"v_exp_f32 v{vAL}, v{vAL}")
    for j in range(16): a(f"v_fma_f32 v{S0+j}, v{S0+j}, s{sC}, -v{vMC}")
    for j in range(16): a(f"v_exp_f32 v{S0+j}, v{S0+j}")
    a(f"v_mul_f32 v{vL}, v{vL}, v{vAL}")
    a(f"s_set_gpr_idx_on s{sCur}, gpr_idx(DST)"); a("s_mov_b32 s50, 0x3f803f80")
    for j in range(8): a(f"v_cvt_pk_bf16_f32 v{PB+j}, v{S0+2*j}, v{S0+2*j+1}")
    a(f"s_set_gpr_idx_on s{sCur}, gpr_idx(SRC0)"); a("s_nop 0")
    for j in range(8): a(f"v_dot2_f32_bf16 v{vL}, v{PB+j}, s50, v{vL}")
    a("s_set_gpr_idx_off")
    lab("L_knext")
    a(f"s_add_u32 s{sJ}, s{sJ}, s{sStep}"); a(f"s_sub_u32 s50, s{sJ}, 7"); a(f"s_cselect_b32 s{sJ}, s{sJ}, s50")
    a(f"s_mov_b32 s{sLim}, 3"); a(f"s_mov_b32 s{sStep}, 3")
    nextbuf()
    a(f"s_sub_u32 s{sCnt}, s{sCnt}, 1"); a(f"s_cmp_lg_u32 s{sCnt}, 0"); a("s_cbranch_scc1 L_kr")

    cm("=============== between K and V: common reference M and sum L of this workgroup")
    a(f"v_mov_b32 v{vU}, v{vL}")
    a(f"s_lshl_b32 s50, s{sW}, 8")
    a(f"v_add_u32 v{vT}, s50, v{vMla}")
    a(f"v_permlane32_swap_b32 v{vL}, v{vU}")
    a(f"v_add_f32 v{vL}, v{vL}, v{vU}")
    a(f"ds_write_b64 v{vT}, {vr(vMC, 2)}")
    for j in range(0, 16, 2): a(f"v_mov_b64 {vr(O0+j, 2)}, 0")
    a(f"s_lshl_b32 s{sT0}, s{sMem}, 2"); a(f"s_add_u32 s{sT0}, s{sT0}, 2")
    a(f"s_add_u32 s{sCnt}, s{sMem}, 32"); a(f"s_mov_b32 s{sBase}, 0")
    a(f"s_sub_u32 s{sSlot}, s{sMem}, 1")
    a("s_waitcnt lgkmcnt(0)")
    a("s_barrier")
    if calp == 2: a("s_memrealtime s[72:73]")
    for k in range(7): a(f"ds_read_b32 v{KF + k}, v{vMla} offset:{256*k}")
    cm("wave 6 of the first workgroup stages the tree tile's probabilities (slot 18) now; it owns no tile of the first V round")
    a(f"s_mov_b32 s{sCur}, {18*8}"); a(f"s_mov_b32 s50, {L_TP - L_PS}")
    a(f"s_add_u32 s51, s{sW}, s{sMy}"); a("s_cmp_eq_u32 s51, 5")
    a("s_waitcnt lgkmcnt(0)")
    a(f"v_max3_f32 v{vMC}, v{KF}, v{KF+1}, v{KF+2}"); a(f"v_max3_f32 v{vMC}, v{vMC}, v{KF+3}, v{KF+4}"); a(f"v_max3_f32 v{vMC}, v{vMC}, v{KF+5}, v{KF+6}")
    a("s_cbranch_scc1 L_dump")
    lab("L_stage")
    cm("stage my tile of the coming round (tiles t0 .. t0+3; the closing half round is tiles 0, 1), if I own one")
    a(f"s_cmp_eq_u32 s{sCnt}, 1"); a(f"s_cselect_b32 s{sT0}, 0, s{sT0}"); a(f"s_cselect_b32 s{sLim}, 1, 3")
    a(f"s_add_u32 s50, s{sT0}, 6"); a(f"s_sub_u32 s50, s50, s{sWo}")
    a("s_mul_i32 s50, s50, 9363"); a("s_lshr_b32 s50, s50, 16")
    a(f"s_lshl_b32 s{sCur}, s50, 3")
    a(f"s_sub_u32 s50, s{sCur}, s50"); a(f"s_add_u32 s50, s50, s{sWo}"); a(f"s_sub_u32 s50, s50, s{sT0}")
    a(f"s_cmp_gt_u32 s50, s{sLim}"); a("s_cbranch_scc1 L_vnext")
    a(f"s_lshl_b32 s50, s50, 11"); a(f"s_add_u32 s50, s50, s{sBase}")
    lab("L_dump")
    a(f"s_lshl_b32 s51, s{sCur}, 4")
    a(f"v_add_u32 v{vT}, s51, v{vMIa}")
    a(f"ds_read_b32 v{vT}, v{vT}")
    a(f"v_add_u32 v{vU}, s50, v{vPa}")
    a("s_waitcnt lgkmcnt(0)")
    a(f"v_sub_f32 v{vT}, v{vMC}, v{vT}")
    a(f"v_min_f32 v{vT}, {f32(255.0)}, v{vT}")
    a(f"v_cvt_u32_f32 v{vT}, v{vT}")
    a(f"v_mul_u32_u24 v{vT}, 0x800080, v{vT}")
    a(f"s_set_gpr_idx_on s{sCur}, gpr_idx(SRC0)"); a("s_nop 0")
    for j in range(8): a(f"v_pk_sub_u16 v{DT+j}, v{PB+j}, v{vT} clamp")
    a("s_set_gpr_idx_off")
    a(f"ds_write_b128 v{vU}, {vr(DT, 4)}"); a(f"ds_write_b128 v{vU}, {vr(DT+4, 4)} offset:1024")
    lab("L_vnext")
    a(f"s_add_u32 s{sT0}, s{sT0}, 4"); a(f"s_cmp_eq_u32 s{sT0}, 130"); a(f"s_cselect_b32 s{sT0}, 2, s{sT0}")
    a(f"v_add_u32 v{vT}, s{sBuf}, v{vVa}"); a(f"v_add_u32 v{vU}, s{sBase}, v{vPa}")
    a(f"s_xor_b32 s{sBase}, s{sBase}, 8192")
    nextbuf()
    a(f"s_sub_u32 s{sCnt}, s{sCnt}, 1")
    a(f"s_cmp_gt_u32 s{sW}, 3")
    a("s_waitcnt lgkmcnt(0)")
    a("s_cbranch_scc1 L_vside")
    a(f"s_cmp_eq_u32 s{sCnt}, s{sSlot}"); a("s_cbranch_scc1 L_close")
    a(f"s_cmp_eq_u32 s{sCnt}, 0")
    if st6:
        a("s_memrealtime s[74:75]")
    a("s_barrier")
    if st6:
        a("s_memrealtime s[76:77]")
    lab("L_vbody")
    def vreads(t):
        for u in range(2):
            for z in range(2): a(f"ds_read_b64_tr_b16 {vr(VF + 8*t + 4*u + 2*z, 2)}, v{vT} offset:{8192*t + 4096*u + 2048*z}")
    def preads(t):
        for u in range(2): a(f"ds_read_b128 {vr(PF + 8*t + 4*u, 4)}, v{vU} offset:{2048*t + 1024*u}")
    def pvm(t):
        for u in range(2): a(f"v_mfma_f32_32x32x16_bf16 {vr(O0, 16)}, {vr(VF + 8*t + 4*u, 4)}, {vr(PF + 8*t + 4*u, 4)}, {vr(O0, 16)}")
    preads(0); vreads(0); preads(1); vreads(1)
    a("s_waitcnt lgkmcnt(6)"); pvm(0)
    a("s_cbranch_scc1 L_last")
    preads(2); vreads(2)
    a("s_waitcnt lgkmcnt(6)"); pvm(1)
    preads(3); vreads(3)
    a("s_waitcnt lgkmcnt(6)"); pvm(2)
    a(f"s_cmp_eq_u32 s{sCnt}, 20")
    a("s_waitcnt lgkmcnt(0)"); pvm(3)
    a("s_cbranch_scc0 L_stage")
    cm("once: the sum L; the tree tile (keys 0..15 only)")
    for k in range(7): a(f"ds_read_b64 {vr(KF + 2*k, 2)}, v{vMla} offset:{256*k}")
    a(f"v_add_u32 v{vT}, {L_TV}, v{vVa}")
    a(f"ds_read_b128 {vr(PF, 4)}, v{vPa} offset:{L_TP - L_PS}")
    for z in range(2): a(f"ds_read_b64_tr_b16 {vr(PF + 4 + 2*z, 2)}, v{vT} offset:{2048*z}")
    a(f"s_cmp_lg_u32 s{sMem}, 0")
    a("s_waitcnt lgkmcnt(0)")
    for k in range(7): a(f"v_sub_f32 v{KF+2*k}, v{KF+2*k}, v{vMC}")
    for k in range(7): a(f"v_exp_f32 v{KF+2*k}, v{KF+2*k}")
    a(f"v_mul_f32 v{vL}, v{KF}, v{KF+1}")
    for k in range(1, 7): a(f"v_fma_f32 v{vL}, v{KF+2*k}, v{KF+2*k+1}, v{vL}")
    a("s_cbranch_scc1 L_stage")
    a(f"v_mfma_f32_32x32x16_bf16 {vr(O0, 16)}, {vr(PF + 4, 4)}, {vr(PF, 4)}, {vr(O0, 16)}")
    a("s_branch L_stage")

    lab("L_last")
    cm("=============== closing half round and hand-off")
    if calp == 3: a("s_memrealtime s[72:73]")
    PP, PM = 120, 136
    def addrs(r): a(f"v_lshlrev_b32 v{r}, 4, v{vLane}"); a(f"v_lshlrev_b32 v{r+1}, 3, v{vLane}"); a(f"v_add_u32 v{r+1}, 4096, v{r+1}")
    def fetch(r):
        a(f"buffer_load_dwordx2 {vr(PM, 2)}, v{r+1}, {SD}, 0 offen {hlf}")
        for x in range(4): a(f"buffer_load_dwordx4 {vr(PP + 4*x, 4)}, v{r}, {SD}, 0 offen offset:{1024*x} {hlf}")
    addrs(DT + 2)
    a(f"s_cmp_lg_u32 s{sMem}, 0")
    a("s_waitcnt lgkmcnt(0)"); pvm(1)
    a("s_cbranch_scc1 L_merge")
    cm("first workgroup: publish, then raise the flag")
    a(f"buffer_store_dwordx2 {vr(vMC, 2)}, v{DT+3}, {SD}, 0 offen {hsf}")
    a("s_nop 9")
    for x in range(4): a(f"buffer_store_dwordx4 {vr(O0 + 4*x, 4)}, v{DT+2}, {SD}, 0 offen offset:{1024*x} {hsf}")
    st(3)
    a("s_mov_b32 s50, 8")
    a(f"s_cmp_lg_u32 s{sW}, 0")
    a("s_waitcnt vmcnt(0)")
    st(4)
    a("s_barrier")
    st(5)
    a("s_cbranch_scc1 L_done")
    a("s_atomic_xor s50, s[66:67], 0")
    a("s_branch L_done")
    lab("L_close")
    cm("second workgroup: the closing rendezvous also waits for wave 5 to have seen the flag; fetch the other result first")
    addrs(DT + 2)
    st(1)
    a("s_barrier")
    st(2)
    if calp == 5: a("s_memrealtime s[76:77]")
    lab("L_fetch")
    fetch(DT + 2)
    a("s_branch L_vbody")
    lab("L_merge")
    st(3); st(4)
    a(f"v_lshlrev_b32 v{DT+4}, 8, v{vR}"); a(f"v_lshl_add_u32 v{DT+4}, v{vH}, 4, v{DT+4}")
    FA, FB = 138, 140
    a("s_waitcnt vmcnt(4)")
    a(f"v_max_f32 v{vT}, v{vMC}, v{PM}")
    a(f"v_sub_f32 v{FA}, v{vMC}, v{vT}"); a(f"v_sub_f32 v{FB}, v{PM}, v{vT}")
    a(f"v_exp_f32 v{FA}, v{FA}"); a(f"v_exp_f32 v{FB}, v{FB}")
    a(f"v_mul_f32 v{vT}, v{FA}, v{vL}")
    a(f"v_fma_f32 v{vT}, v{FB}, v{PM+1}, v{vT}")
    a(f"v_rcp_f32 v{vT}, v{vT}")
    a("s_nop 0")
    a(f"v_mul_f32 v{FA}, v{FA}, v{vT}"); a(f"v_mul_f32 v{FB}, v{FB}, v{vT}")
    for j in range(8): a(f"v_pk_mul_f32 {vr(O0+2*j, 2)}, {vr(O0+2*j, 2)}, {vr(FA, 2)} op_sel_hi:[1,0]")
    for b in range(2):
        a(f"s_waitcnt vmcnt({2 if b == 0 else 1})")
        if b == 1: st(5)
        for j in range(4*b, 4*b + 4): a(f"v_pk_fma_f32 {vr(O0+2*j, 2)}, {vr(PP+2*j, 2)}, {vr(FB, 2)}, {vr(O0+2*j, 2)} op_sel_hi:[1,0,1]")
        for j in (0, 2, 1, 3): a(f"v_cvt_pk_bf16_f32 v{KF+4*b+j}, v{O0+8*b+2*j}, v{O0+8*b+2*j+1}")
        a(f"v_permlane32_swap_b32 v{KF+4*b}, v{KF+4*b+2}"); a("s_nop 0"); a(f"v_permlane32_swap_b32 v{KF+4*b+1}, v{KF+4*b+3}")
        a(f"buffer_store_dwordx4 {vr(KF+4*b, 4)}, v{DT+4}, {SO}, s69 offen offset:{32*b} {ofl}")
    st(6)
    if reh: a(f"s_cmp_eq_u32 s{sW}, 6"); a("s_cbranch_scc1 L_stage")
    lab("L_done")
    if st6:
        a("s_waitcnt vmcnt(0)"); a("s_memrealtime s[86:87]"); a("s_waitcnt lgkmcnt(0)")
        a(f"s_lshl_b32 s50, s{sMem}, 2"); a("v_mov_b32 v20, s50")
        for i in range(1, 8): a(f"v_writelane_b32 v20, s{72+2*i}, {i}")
        a("s_lshl_b32 s50, s2, 2"); a(f"s_add_u32 s50, s50, s{sW}"); a("s_lshl_b32 s50, s50, 8"); a("s_add_u32 s50, s50, 0x200000")
        a(f"v_lshl_add_u32 v21, v{vLane}, 2, s50")
        a("global_store_dword v21, v20, s[52:53]")
    if cal:
        a(f"s_mov_b32 s74, {cal}")
        if calp >= 4: a("s_waitcnt vmcnt(0)"); a("s_memrealtime s[72:73]")
        if calp == 5:
            a("s_waitcnt lgkmcnt(0)"); a("s_sub_u32 s72, s72, s76"); a(f"s_mul_i32 s72, s72, s{sMem}")
            a("s_mul_i32 s72, s72, 20"); a("s_add_u32 s74, s74, s72"); a("s_min_u32 s74, s74, 30000")
        elif calp:
            a("s_waitcnt lgkmcnt(0)"); a("s_sub_u32 s72, s72, s54"); a(f"s_sub_u32 s72, s72, {(0, 0, 3000, 6500, 6500)[calp]}")
            a("s_mul_i32 s72, s72, 5"); a("s_add_u32 s74, s74, s72"); a("s_min_u32 s74, s74, 30000")
        lab("L_cal")
        a("s_memrealtime s[56:57]"); a("s_waitcnt lgkmcnt(0)"); a("s_sub_u32 s56, s56, s54"); a(f"s_cmp_lt_u32 s56, s74"); a("s_cbranch_scc1 L_cal")
    if stamp: stamp_out()
    lab("L_end")
    a("s_endpgm")

    if reh:
        lab("L_reh")
        cm("wave 7 of the second workgroup runs the closing code once ahead of time, through empty descriptors, so that it is in the instruction cache")
        a("s_mov_b32 s26, 0"); a("s_mov_b32 s34, 0")
        addrs(DT + 2)
        a("s_branch L_fetch")
    lab("L_vside")
    cm("waves 5..7 only stage")
    a(f"s_cmp_eq_u32 s{sCnt}, 0"); a("s_cbranch_scc1 L_end")
    a("s_barrier")
    if reh:
        a(f"s_lshl_b32 s50, s{sCnt}, 4"); a(f"s_add_u32 s50, s50, s{sW}"); a(f"s_add_u32 s50, s50, s{sMy}")
        a(f"s_cmp_eq_u32 s50, {reh * 16 + 14}"); a("s_cbranch_scc1 L_reh")
    a(f"s_cmp_lg_u32 s{sW}, 4"); a("s_cbranch_scc1 L_stage")
    a(f"s_cmp_eq_u32 s{sCnt}, 24"); a("s_cbranch_scc1 L_hsfin")
    a(f"s_cmp_lg_u32 s{sCnt}, s{sMem}"); a("s_cbranch_scc1 L_stage")
    cm("wave 5 of the second workgroup owns no tile of the closing half round: it watches the word")
    a(f"s_mov_b32 s71, {BOUND}")
    lab("L_poll")
    a(f"global_load_dword v{vU}, v{vZ}, s[66:67] sc1")
    a("s_sub_u32 s71, s71, 1"); a("s_cbranch_scc1 L_seen")
    a("s_waitcnt vmcnt(0)")
    a(f"v_readfirstlane_b32 s50, v{vU}")
    a(f"s_xor_b32 s50, s50, s{sSnap}")
    a("s_bitcmp1_b32 s50, 3"); a("s_cbranch_scc0 L_poll")
    lab("L_seen")
    a("s_barrier")
    a("s_endpgm")

    cm("=============== out-of-line pieces of the K phase")
    lab("L_kbias")
    a(f"v_mfma_f32_32x32x16_bf16 {vr(S0, 16)}, {vr(KF, 4)}, {vr(Q0, 4)}, {vr(S0, 16)}")
    a("s_branch L_k1")
    lab("L_kidle")
    a(f"s_cmp_eq_u32 s{sW}, 4"); a("s_cbranch_scc1 L_hs")
    a(f"s_add_u32 s50, s{sW}, s{sMy}"); a("s_cmp_lg_u32 s50, 5"); a("s_cbranch_scc1 L_knext")
    a(f"s_cmp_eq_u32 s{sCnt}, 31"); a("s_cbranch_scc1 L_tree1")
    a(f"s_cmp_lg_u32 s{sCnt}, 29"); a("s_cbranch_scc1 L_knext")
    cm("tree tokens, step 2: score bias (1-mask) * -1e9 / scale, then the ordinary tile code")
    big = 1e9 * math.sqrt(128)
    TM = PB + 18 * 8
    a(f"s_mov_b32 s51, {f32(big)}")
    a(f"v_mov_b32 v{vU}, {f32(-big)}")
    for j in range(8, 16): a(f"v_mov_b32 v{S0+j}, 0xff800000")
    a("s_waitcnt vmcnt(0)")
    for j in range(4):
        a(f"v_lshlrev_b32 v{S0+2*j}, 16, v{TM+j}"); a(f"v_and_b32 v{S0+2*j+1}, 0xffff0000, v{TM+j}")
    for j in range(8): a(f"v_fma_f32 v{S0+j}, v{S0+j}, s51, v{vU}")
    a(f"s_mov_b32 s{sCur}, {18*8}"); a(f"s_mov_b32 s50, {L_TK}")
    a("s_branch L_ktile")
    lab("L_tree1")
    cm("tree tokens, step 1 (wave 6 of the first workgroup): K/V -> LDS, mask -> registers")
    k_offsets()
    a(f"s_lshl_b32 s45, s{sPair}, 12"); a("s_movk_i32 s51, 4096")
    a("s_add_u32 s20, s10, s45"); a("s_addc_u32 s21, s11, 0"); a("s_mov_b32 s22, 4096"); a("s_mov_b32 s23, 0x20000")
    a(f"s_mov_b32 m0, {L_TK}")
    a("s_add_u32 s28, s12, s45"); a("s_addc_u32 s29, s13, 0"); a("s_mov_b32 s30, 4096"); a("s_mov_b32 s31, 0x20000")
    for j in range(4): a(f"buffer_load_dwordx4 v{vOff[j]}, {SS}, 0 offen offset:{j*1024} {qfl} lds")
    a(f"s_mov_b32 m0, {L_TK + 4096}")
    a(f"s_lshr_b32 s50, s{sPair}, 4"); a("s_lshl_b32 s50, s50, 9")
    for j in range(4): a(f"buffer_load_dwordx4 v{vOff[j]}, {SS}, s51 offen offset:{j*1024} lds")
    v_offset()
    a(f"s_mov_b32 m0, {L_TV}")
    a("s_add_u32 s36, s14, s50"); a("s_addc_u32 s37, s15, 0"); a("s_mov_b32 s38, 512"); a("s_mov_b32 s39, 0x20000")
    for j in range(4): a(f"buffer_load_dwordx4 v{vOff[0]}, {SQ}, 0 offen offset:{j*1024} {qfl} lds")
    a(f"v_and_b32 v{vU}, 15, v{vR}"); a(f"v_lshlrev_b32 v{vU}, 5, v{vU}"); a(f"v_lshl_add_u32 v{vU}, v{vH}, 3, v{vU}")
    a(f"buffer_load_dwordx2 {vr(TM, 2)}, v{vU}, {SM}, 0 offen")
    a(f"buffer_load_dwordx2 {vr(TM+2, 2)}, v{vU}, {SM}, 0 offen offset:16")
    a("s_branch L_knext")
    cm("hand-off word: bit 0 started, bit 1 acknowledged, bit 3 result published; +8 for the second workgroup. Only changes")
    cm("against the value seen at my own start count, and nothing is published before both have taken that snapshot.")
    def hs_poll(again, done):
        a(f"global_load_dword v{vU}, v{vZ}, s[66:67] sc1")
        a("s_waitcnt vmcnt(0)")
        a(f"v_readfirstlane_b32 s50, v{vU}")
        a(f"s_xor_b32 s50, s50, s{sSnap}"); a(f"s_lshr_b32 s50, s50, s{sOt}")
        a("s_and_b32 s51, s50, 3"); a(f"s_cbranch_scc0 {again}")
        a(f"s_mov_b32 s{sSt}, 2")
        a("s_bitcmp1_b32 s50, 0"); a(f"s_cbranch_scc0 {done}")
        a(f"s_lshl_b32 s{sAck}, 2, s{sMy}"); a(f"s_atomic_xor s{sAck}, s[66:67], 0")
        a(f"s_branch {done}")
    lab("L_hs")
    if "v" in warm:
        a(f"s_cmp_gt_u32 s{sCnt}, 4"); a("s_cbranch_scc1 L_hs0")
        a(f"s_lshl_b32 s50, s{sPair}, 21"); a("s_add_u32 s50, s8, s50"); a("s_addc_u32 s51, s9, 0")
        a(f"global_load_dword v{vTmp[0]}, v{vZ}, s[50:51] nt")
        lab("L_hs0")
    a(f"s_cmp_eq_u32 s{sSt}, 2"); a("s_cbranch_scc1 L_knext")
    a(f"s_cmp_eq_u32 s{sLim}, 1"); a("s_cbranch_scc1 L_knext")
    hs_poll("L_knext", "L_knext")
    lab("L_hsfin")
    if "o" in warm: a(f"buffer_load_dword v{vTmp[0]}, v{vZ}, {SO}, s69 offen")
    a(f"s_mov_b32 s71, {BOUND}")
    lab("L_hsw")
    a(f"s_cmp_eq_u32 s{sSt}, 2"); a("s_cbranch_scc1 L_stage")
    a("s_sub_u32 s71, s71, 1"); a("s_cbranch_scc1 L_stage")
    hs_poll("L_hsw", "L_stage")
    check_hazards([x for x in L if not x.startswith(".")])
    out = HEADER + DOC + f"; @launch grid=(256,1,1) block=(512,1,1) lds={LDS}\n"
    out += '.amdgcn_target "amdgcn-amd-amdhsa--gfx950"\n.text\n' + f".globl {NAME}\n.p2align 8\n.type {NAME},@function\n{NAME}:\n"
    out += "\n".join(L) + "\n"
    out += '.section .rodata,"a"\n.p2align 6\n' + f".amdhsa_kernel {NAME}\n"
    out += f"  .amdhsa_next_free_vgpr 256\n  .amdhsa_next_free_sgpr 96\n  .amdhsa_accum_offset 256\n"
    out += "  .amdhsa_group_segment_fixed_size 0\n  .amdhsa_kernarg_size 72\n  .amdhsa_user_sgpr_count 2\n"
    out += "  .amdhsa_user_sgpr_kernarg_segment_ptr 1\n  .amdhsa_system_sgpr_workgroup_id_x 1\n.end_amdhsa_kernel\n"
    return out

if __name__ == "__main__":
    out = sys.argv[1]
    kw = {}
    for x in sys.argv[2:]:
        k, v = x.split("=", 1)
        if v in ("True", "False"): v = v == "True"
        else:
            try: v = int(v)
            except ValueError: pass
        kw[k] = v
    open(out, "w").write(gen(**kw))
```

```python
import sys, struct, math
from hz import check_hazards
NAME = "standalone__tree_speculative_verify_tree_attention_over_candidate_token_tree__sampling_kernel"
HEADER = open("standalone__tree_speculative_verify_tree_attention_over_candidate_token_tree__sampling.s.ref").read().split("; Override launch")[0]
DOC = """; Workgroups wg and wg^8 share one (batch, kv-head): the first takes 126 tiles of 32 keys plus the tree tokens, the second 130.
"""

def f32(x): return "0x%08x" % struct.unpack("<I", struct.pack("<f", x))[0]

def gen(levels="19,20,21,23,32", start=1, lmap="01111223", cps="4,10,16,22,28,34,40,45,50,54,57,59", SP=62, LH=32, jbits="12,13,14,11,10", mbit=16,
        stamp=False, fl="nt", prio=3, xat=12, st4=False, st6=False, cal=0, ofl="", WSOFF=0, BOUND=1 << 22, pre=False, LH0=0, SP2=0, spoll=0, boost=0, shalf=1, qfl="", hsf="sc1", hlf="sc1", R=8, rmap="011112223", rot=3, help="", hfl="", adj=1, warm="", calp=0, reh=0, halfx=0, trim=0):
    L = []
    def a(s): L.append("    " + s)
    def lab(s): L.append(s + ":")
    def cm(s): L.append("    ; " + s)
    def vr(b, n): return f"v[{b}:{b+n-1}]"
    RB = 32768
    L_PS = 3 * RB
    L_Q, L_TK = L_PS, L_PS + 8192
    L_MI = L_PS + 16384
    L_TV = L_MI + 17408
    L_TP = L_TV + 4096
    L_ML = L_TP + 2048
    LDS = L_ML + 2048
    W_WORD = WSOFF
    W_RANK = WSOFF + 65536
    W_DATA = WSOFF + 262144
    PS = 18432 + (256 if adj else 0)
    vLane, vH, vR, vMIa = 96, 97, 98, 99
    vM, vMC, vL, vT, vU, vAL = 101, 102, 103, 1, 6, 7
    vTmp = [0, 100]
    Q0, KF, S0, vKrd, PB = 8, 40, 72, list(range(88, 96)), 104
    PF, VF, O0, DT = 8, 40, 72, 88
    vVa, vPa, vZ, vMla = 2, 3, 4, 5
    vOff = [40, 41, 42, 43]
    sPair, sMem, sK, sT, sBuf, sC, sCnt, sJ, sSlot, sCur, sBase, sW, sSnap, sSt, sMy, sOt = 40, 41, 42, 43, 44, 46, 47, 48, 49, 60, 61, 59, 62, 63, 64, 65
    sLim, sStep, sT0, sAck, sN, sWo = 68, 70, 48, 94, 95, 93
    SS, SQ, SO, SM, SD = "s[20:23]", "s[28:31]", "s[32:35]", "s[36:39]", "s[24:27]"
    c = (128 ** -0.5) * math.log2(math.e)
    jb = [int(x) for x in str(jbits).split(",")]
    def B(j): return sum(((j >> i) & 1) << b for i, b in enumerate(jb))
    maskR = sum(1 << b for b in range(10, 21) if b not in jb and b != mbit)
    lowR = (maskR & -maskR).bit_length() - 1
    lv = [float(x) for x in str(levels).split(",")]
    cp = [int(x) for x in str(cps).split(",")] if cps != "" else []
    assert len(cp) <= 16
    lm = [int(ch) for ch in str(lmap).zfill(8)]
    def st(n):
        if st6: a(f"s_memrealtime s[{72+2*n}:{73+2*n}]")

    def stamp_out():
        a("s_waitcnt vmcnt(0)")
        a("s_memrealtime s[56:57]")
        a("s_getreg_b32 s58, hwreg(HW_REG_XCC_ID)")
        a("s_waitcnt lgkmcnt(0)")
        a("v_mov_b32 v8, s54"); a("v_mov_b32 v9, s56"); a("v_mov_b32 v10, s58");  a("v_mov_b32 v11, 0")
        a("s_lshl_b32 s50, s2, 3"); a("s_add_u32 s50, s50, s3"); a("s_lshl_b32 s50, s50, 4")
        a("v_mov_b32 v12, s50")
        a("s_mov_b64 exec, 1")
        a("global_store_dwordx4 v12, v[8:11], s[52:53]")
    def ids():
        a(f"v_and_b32 v{vLane}, 63, v0")
        a(f"s_lshr_b32 s{sPair}, s2, 4"); a(f"s_lshl_b32 s{sPair}, s{sPair}, 3"); a("s_and_b32 s50, s2, 7"); a(f"s_or_b32 s{sPair}, s{sPair}, s50")
        a(f"s_bfe_u32 s{sMem}, s2, 0x10003")
    def k_offsets():
        cm("K-shaped DMA source offsets: row rr = lane>>4, slot p = lane&15 -> rr*256 + ((p ^ (4j+rr)) * 16)")
        a(f"v_lshlrev_b32 v{vTmp[0]}, 4, v{vLane}")
        a(f"v_and_b32 v{vTmp[1]}, 0x30, v{vLane}")
        a(f"v_xor_b32 v{vOff[0]}, v{vTmp[0]}, v{vTmp[1]}")
        for j in range(1, 4): a(f"v_xor_b32 v{vOff[j]}, {64*j}, v{vOff[0]}")
    def v_offset():
        cm("V DMA source offset: rr*256 + ((p ^ 4rr) * 16)")
        a(f"v_lshlrev_b32 v{vTmp[0]}, 4, v{vLane}")
        a(f"v_and_b32 v{vTmp[1]}, 0x30, v{vLane}")
        a(f"v_lshlrev_b32 v{vTmp[1]}, 2, v{vTmp[1]}")
        a(f"v_xor_b32 v{vOff[0]}, v{vTmp[0]}, v{vTmp[1]}")
    def nextbuf():
        a(f"s_add_u32 s{sBuf}, s{sBuf}, {RB}")
        a(f"s_cmp_eq_u32 s{sBuf}, {3*RB}"); a(f"s_cselect_b32 s{sBuf}, 0, s{sBuf}")

    a("s_load_dwordx16 s[4:19], s[0:1], 0")
    a("s_load_dwordx2 s[52:53], s[0:1], 64")
    if stamp or cal: a("s_memrealtime s[54:55]")
    a("v_readfirstlane_b32 s3, v0")
    a("s_cmp_ge_u32 s2, 256"); a("s_cbranch_scc1 L_end")
    a("s_lshr_b32 s3, s3, 6")
    a("s_cbranch_scc1 L_cons")
    cm("=============== loader wave")
    if trim:
        a("s_lshr_b32 s50, s2, 4"); a("s_and_b32 s51, s2, 7"); a(f"s_lshl3_add_u32 s{sPair}, s50, s51")
        cm("K-shaped DMA source offsets: row rr = lane>>4, slot p = lane&15 -> rr*256 + ((p ^ (4j+rr)) * 16) + piece offset - j*1024")
        a("v_lshlrev_b32 v1, 4, v0"); a("v_and_b32 v2, 48, v0"); a(f"v_xor_b32 v{vOff[0]}, v1, v2")
        a(f"s_lshl_b32 s45, s{sPair}, 21"); a("s_and_b32 s46, s2, 8"); a(f"s_lshl_b32 s46, s46, {jb[4] - 3}"); a(f"s_or_b32 s46, s46, {maskR}")
        a("s_lshl_b32 s22, 1, 21"); a("s_mov_b32 s23, 0x20000")
        for j in range(1, 4): a(f"v_xor_b32 v{vOff[j]+4}, {64*j}, v{vOff[0]}"); a(f"v_add_u32 v{vOff[j]}, {B(j) - 1024*j}, v{vOff[j]+4}")
        a(f"s_mov_b32 s{sBuf}, 0"); a(f"s_mov_b32 s{sCnt}, 0")
    else:
        if prio: a(f"s_setprio {prio}")
        ids(); k_offsets()
        for j in range(1, 4):
            assert B(j) >= 1024*j
            a(f"v_mov_b32 v{vOff[j]+4}, v{vOff[j]}")
            a(f"v_add_u32 v{vOff[j]}, {B(j) - 1024*j}, v{vOff[j]}")
        a(f"s_lshl_b32 s50, s{sPair}, 13"); a("s_mov_b32 s30, 8192"); a("s_mov_b32 s31, 0x20000"); a("s_movk_i32 s51, 4096")
        a(f"s_lshl_b32 s45, s{sPair}, 21")
        a("s_mov_b32 s22, 0x200000"); a("s_mov_b32 s23, 0x20000")
        a(f"s_mul_i32 s46, s{sMem}, {B(16)}"); a(f"s_add_u32 s46, s46, {maskR}")
        a(f"s_mov_b32 s{sBuf}, 0"); a(f"s_mov_b32 s{sCnt}, 0")
    def vm(x, n):
        lo = int(x); fr = x - lo
        return lo + (1 if (n % 16) < fr * 16 else 0) - 1
    def half(x):
        for g in range(4):
            a(f"s_add_u32 m0, s{sBuf}, {g*4096}"); a(f"s_add_u32 s{sT}, s46, {B(4*g)}")
            for j in range(4):
                if x: a(f"s_waitcnt vmcnt({vm(x, 0)})")
                a(f"buffer_load_dwordx4 v{vOff[j]}, {SS}, s{sT} offen offset:{j*1024} {fl} lds")
    a("s_waitcnt lgkmcnt(0)")
    a("s_add_u32 s20, s6, s45"); a("s_addc_u32 s21, s7, 0")
    if shalf:
        lab("L_half")
        half(float(LH))
        a(f"s_cmp_lg_u32 s{sCnt}, 0"); a("s_cbranch_scc1 L_h2")
    else: half(0)
    if trim:
        a(f"s_lshl_b32 s50, s{sPair}, 13"); a("s_movk_i32 s30, 8192"); a("s_mov_b32 s31, 0x20000"); a("s_movk_i32 s51, 4096")
    a(f"s_mov_b32 m0, {L_Q}"); a("s_add_u32 s28, s4, s50"); a("s_addc_u32 s29, s5, 0")
    for j in range(4): a(f"buffer_load_dwordx4 v{vOff[j] + (4 if j else 0)}, {SQ}, 0 offen offset:{j*1024} {qfl} lds")
    a(f"s_mov_b32 m0, {L_Q + 4096}"); a("s_nop 0")
    for j in range(4): a(f"buffer_load_dwordx4 v{vOff[j] + (4 if j else 0)}, {SQ}, s51 offen offset:{j*1024} {qfl} lds")
    if trim:
        if prio: a(f"s_setprio {prio}")
        a(f"s_bfe_u32 s{sMem}, s2, 0x10003"); a(f"v_mov_b32 v{vLane}, v0")
    cm("rounds at which something besides streaming is due: a progress check, its result, the switch to V, the sprint, the end")
    def evm(n): return sum(1 << (r - 1) for r in set(cp) | set(r + 1 for r in cp) | {n, 2 * n} | ({SP} if SP < 2 * n else set()) | ({SP2} if SP2 else set()) | ({boost} if boost else set()))
    cpm = sum(1 << r for r in cp)
    a(f"s_lshl_b32 s48, s{sMem}, {mbit}"); a(f"s_mov_b32 s{sK}, s48"); a(f"s_mov_b32 s{sBuf}, {RB}")
    a(f"s_add_u32 s{sN}, s{sMem}, 31"); a(f"s_add_u32 s49, s{sN}, 1")
    a(f"s_mov_b32 s84, {(evm(31) | evm(32)) & 0xffffffff:#x}"); a(f"s_mov_b32 s85, {(evm(31) | evm(32)) >> 32:#x}")
    a(f"s_mov_b32 s86, {cpm & 0xffffffff:#x}"); a(f"s_mov_b32 s87, {cpm >> 32:#x}")
    a(f"s_mov_b32 s88, {start}"); a("s_lshr_b32 s89, s2, 4"); a("s_and_b32 s90, s2, 7")
    if R == 32: a(f"s_lshl_b32 s91, s{sMem}, 8"); a(f"s_add_u32 s91, s91, {W_RANK}")
    else: a(f"s_mov_b32 s91, {W_RANK}"); a("s_lshr_b32 s89, s2, 3"); a("s_lshl_b32 s90, s90, 2"); a(f"s_add_u32 s90, s90, {rot}")
    a("s_mov_b32 s92, -1")
    if st4: a("s_mov_b32 s74, 0"); a("v_mov_b32 v20, 0"); a("v_mov_b32 v21, 0"); a("v_mov_b32 v22, 0")
    def rnd(x, sfx):
        bar_at = min(n for n in range(32) if vm(x, n) <= n)
        for g in range(8):
            if 4 * g == xat:
                a(f"s_cmp_lg_u32 s{sCnt}, s49"); a(f"s_cbranch_scc1 L_nx{sfx}")
                if st4: a("s_memrealtime s[76:77]")
                a("s_barrier")
                if st4: a("s_memrealtime s[78:79]")
                lab("L_nx" + sfx)
            a(f"s_add_u32 m0, s{sBuf}, {g*4096}"); a(f"s_add_u32 s{sT}, s{sK}, {B(4*g)}")
            for j in range(4):
                n = 4 * g + j
                a(f"s_waitcnt vmcnt({vm(x, n)})")
                a(f"buffer_load_dwordx4 v{vOff[j]}, {SS}, s{sT} offen offset:{j*1024} {fl} lds")
                if n == bar_at:
                    if st4: a("s_memrealtime s[70:71]")
                    a("s_barrier")
                    if st4: a("s_memrealtime s[72:73]")
    order = [start] + [i for i in range(len(lv)) if i != start]
    if boost: order = [order[-1]] + order[:-1]
    for i in order:
        lab(f"L_lv{i}")
        rnd(lv[i], str(i))
        cm("next round: the source offset counts through the address bits a round leaves fixed; buffers rotate mod 3")
        nextbuf()
        if st4:
            a("s_waitcnt lgkmcnt(0)"); a("s_mov_b32 m0, s74"); a("s_add_u32 s74, s74, 1")
            a("v_writelane_b32 v20, s70, m0"); a("v_writelane_b32 v21, s72, m0")
        a(f"s_or_b32 s{sK}, s{sK}, {(~maskR) & 0xffffffff:#x}"); a(f"s_add_u32 s{sK}, s{sK}, 1"); a(f"s_and_b32 s{sK}, s{sK}, {maskR:#x}")
        a(f"s_or_b32 s{sK}, s{sK}, s48")
        a(f"s_add_u32 s50, s{sCnt}, 1")
        a(f"s_bitcmp1_b64 s[84:85], s{sCnt}"); a(f"s_mov_b32 s{sCnt}, s50")
        a(f"s_cbranch_scc0 L_lv{i}")
        if i != order[-1]: a("s_branch L_event")
    lab("L_event")
    a(f"s_lshl_b32 s50, s{sN}, 1"); a(f"s_cmp_eq_u32 s{sCnt}, s50"); a("s_cbranch_scc1 " + ("L_half" if shalf else "L_ldfin"))
    a(f"s_cmp_lg_u32 s{sCnt}, s{sN}"); a("s_cbranch_scc1 L_nosw")
    cm("K is done, go on with V (the second workgroup, one round behind by now, starts at round 1 to stay beside the first)")
    a("s_add_u32 s20, s8, s45"); a("s_addc_u32 s21, s9, 0")
    a(f"s_lshl_b32 s{sK}, s{sMem}, {lowR}"); a(f"s_or_b32 s{sK}, s{sK}, s48")
    v_offset()
    for j in range(1, 4): a(f"v_add_u32 v{vOff[j]}, {B(j) - 1024*j}, v{vOff[0]}")
    lab("L_nosw")
    if cp:
        cm("load balance: eight workgroups count themselves in at each check, the others read the count; the later a workgroup came, the more it keeps in flight")
        a(f"s_cmp_lg_u32 s{sCnt}, s92"); a("s_cbranch_scc1 L_noapply")
        a("s_waitcnt lgkmcnt(0)")
        if R == 32:
            word = sum(v << (4 * i) for i, v in enumerate(lm))
            a("s_min_u32 s93, s93, 7"); a("s_lshl_b32 s93, s93, 2")
            a(f"s_lshr_b32 s93, {word:#x}, s93"); a("s_and_b32 s88, s93, 15")
            lab("L_noapply")
            a(f"s_bitcmp1_b64 s[86:87], s{sCnt}"); a("s_cbranch_scc0 L_nocp")
            a("s_and_b32 s50, s89, 15"); a("s_lshl_b32 s50, s50, 9"); a("s_add_u32 s50, s50, s91")
            a("s_add_u32 s66, s52, s50"); a("s_addc_u32 s67, s53, 0")
            a("s_mov_b32 s93, 1"); a("s_atomic_add s93, s[66:67], 0 glc")
            a("s_add_u32 s91, s91, 8192"); a("s_add_u32 s89, s89, s90"); a(f"s_add_u32 s92, s{sCnt}, 1")
        else:
            per = 32 // R
            rm = [int(ch) for ch in str(rmap).zfill(9)]
            w1 = sum(v << (3 * i) for i, v in enumerate(lm + lm[-1:])); w2 = sum(v << (3 * i) for i, v in enumerate(rm))
            a("s_min_u32 s93, s93, 8"); a("s_mul_i32 s93, s93, 3")
            a("s_lshr_b32 s93, s94, s93"); a("s_and_b32 s88, s93, 7")
            lab("L_noapply")
            a(f"s_bitcmp1_b64 s[86:87], s{sCnt}"); a("s_cbranch_scc0 L_nocp")
            a(f"s_and_b32 s50, s89, {32 - per}"); a(f"s_lshl_b32 s50, s50, {8 - (per.bit_length() - 1)}"); a("s_add_u32 s50, s50, s91")
            a("s_add_u32 s66, s52, s50"); a("s_addc_u32 s67, s53, 0")
            a(f"s_add_u32 s91, s91, {256 * R}"); a(f"s_add_u32 s92, s{sCnt}, 1")
            a(f"s_and_b32 s50, s89, {per - 1}"); a("s_cbranch_scc1 L_reader")
            a("s_mov_b32 s93, 1"); a("s_atomic_add s93, s[66:67], 0 glc"); a(f"s_mov_b32 s94, {w1:#x}")
            a("s_branch L_rot")
            lab("L_reader")
            a("s_load_dword s93, s[66:67], 0 glc"); a(f"s_mov_b32 s94, {w2:#x}")
            lab("L_rot")
            a("s_add_u32 s89, s89, s90")
        lab("L_nocp")
    a(f"s_mul_i32 s50, s{sCnt}, s{sMem}")
    a(f"s_cmp_ge_u32 s50, {SP}"); a(f"s_cbranch_scc1 L_lv{len(lv) - 1}")
    if SP2: a(f"s_cmp_ge_u32 s50, {SP2}"); a(f"s_cbranch_scc1 L_lv{len(lv) - 2}")
    for i in [x for x in range(len(lv) - 1) if x != start]:
        a(f"s_cmp_eq_u32 s88, {i}"); a(f"s_cbranch_scc1 L_lv{i}")
    a(f"s_branch L_lv{start}")
    lab("L_ldfin")
    if LH0:
        a(f"s_cmp_lg_u32 s{sMem}, 0"); a("s_cbranch_scc1 L_h1")
        half(float(LH0))
        a("s_branch L_h2")
        lab("L_h1")
    if not shalf: half(float(LH))
    lab("L_h2")
    if help:
        tiles = [(1 << mbit) + B(8*t) for t in range(4)] + [maskR + B(16) + B(8*t) for t in range(2)]
        h0, h1, h2 = [[int(ch) for ch in x] for x in str(help).split("-")]
        a(f"s_cmp_lg_u32 s{sMem}, 0"); a("s_cbranch_scc1 L_nohelp")
        cm("first workgroup: pull the second one's last tiles into the L2 the two normally share (speed only)")
        a(f"v_and_b32 v50, 7, v{vLane}"); a("v_lshlrev_b32 v50, 7, v50")
        for i in range(3): a(f"v_bfe_u32 v51, v{vLane}, {3+i}, 1"); a(f"v_lshl_add_u32 v50, v51, {jb[i]}, v50")
        def pf(ts):
            for t in ts: a(f"s_mov_b32 s50, {tiles[t]}"); a(f"buffer_load_dword v{52+t}, v50, {SS}, s50 offen {hfl}")
        if h0: a("s_waitcnt vmcnt(24)")
        pf(h0)
        a(f"s_waitcnt vmcnt({16 + len(h0)})"); a("s_barrier")
        pf(h1)
        a(f"s_waitcnt vmcnt({len(h0) + len(h1)})"); a("s_barrier")
        pf(h2)
        a("s_barrier")
        if stamp: a("s_branch L_lst")
        else: a("s_endpgm")
        lab("L_nohelp")
    a("s_waitcnt vmcnt(16)"); a("s_barrier")
    a("s_waitcnt vmcnt(0)")
    if st4: a("s_memrealtime s[80:81]")
    a("s_barrier")
    if st4:
        a("s_memrealtime s[82:83]"); a("s_waitcnt lgkmcnt(0)")
        for i, r in enumerate((54, 76, 78, 80, 82)): a(f"v_writelane_b32 v22, s{r}, {i}")
        a("s_lshl_b32 s50, s2, 10"); a("s_add_u32 s50, s50, 0x200000")
        a(f"v_lshl_add_u32 v4, v{vLane}, 2, s50")
        a("global_store_dword v4, v20, s[52:53]"); a("global_store_dword v4, v21, s[52:53] offset:256"); a("global_store_dword v4, v22, s[52:53] offset:512")
    lab("L_lst")
    if stamp: stamp_out()
    a("s_endpgm")

    L.append(".p2align 6")
    lab("L_cons")
    cm("=============== consumers")
    ids()
    a(f"s_sub_u32 s{sW}, s3, 1")
    a(f"v_lshrrev_b32 v{vH}, 5, v{vLane}")
    a(f"v_and_b32 v{vR}, 31, v{vLane}")
    a(f"s_lshl_b32 s{sMy}, s{sMem}, 3"); a(f"s_xor_b32 s{sOt}, s{sMy}, 8")
    if adj: a(f"s_mul_i32 s50, s{sPair}, {PS}"); a(f"s_add_u32 s50, s50, {W_DATA + 18432}")
    else: a(f"s_lshl_b32 s50, s{sPair}, 8"); a(f"s_add_u32 s50, s50, {W_WORD}")
    a(f"s_cmp_lg_u32 s{sW}, 3")
    a("s_waitcnt lgkmcnt(0)")
    a("s_cbranch_scc1 L_noq")
    cm("wave 4 clears this workgroup's share of the arrival counters")
    a("s_lshl_b32 s45, s2, 8")
    if cp:
        a(f"s_add_u32 s45, s45, {W_RANK}")
        a(f"v_lshl_add_u32 v{vT}, v{vLane}, 16, s45"); a(f"v_mov_b32 v{vU}, 0")
        if R * len(cp) < 256: a(f"s_cmp_ge_u32 s2, {R * len(cp)}"); a("s_cbranch_scc1 L_noq")
        a(f"s_cmp_lt_u32 s2, {max(0, R * len(cp) - 256)}"); a("s_cselect_b32 exec_lo, 3, 1"); a("s_mov_b32 exec_hi, 0")
        a(f"global_store_dword v{vT}, v{vU}, s[52:53] sc1")
        a("s_mov_b64 exec, -1")
    lab("L_noq")
    a("s_add_u32 s66, s52, s50"); a("s_addc_u32 s67, s53, 0")
    a(f"s_cmp_lg_u32 s{sW}, 4"); a("s_cbranch_scc1 L_nohs")
    a(f"s_lshl_b32 s{sSnap}, 1, s{sMy}"); a(f"s_atomic_xor s{sSnap}, s[66:67], 0 glc")
    lab("L_nohs")
    cm("LDS read addresses for K-shaped tiles: r*256 + ((h ^ (r&15)) ^ 2s)*16, first pointing at Q")
    a(f"v_and_b32 v{vT}, 15, v{vR}")
    a(f"v_xor_b32 v{vT}, v{vT}, v{vH}")
    a(f"v_lshlrev_b32 v{vT}, 4, v{vT}")
    a(f"v_lshl_add_u32 v{vT}, v{vR}, 8, v{vT}")
    a(f"v_add_u32 v{vKrd[0]}, {L_Q}, v{vT}")
    for s in range(1, 8): a(f"v_xor_b32 v{vKrd[s]}, {32*s}, v{vKrd[0]}")
    cm("transposing V reads of column block w: row = 4h + r', chunk = (4w + 2gg + (c>>1)) ^ 4r', + 8*(c&1)")
    a(f"v_bfe_u32 v{vU}, v{vLane}, 2, 2")
    a(f"v_lshl_add_u32 v{vT}, v{vH}, 2, v{vU}")
    a(f"v_lshlrev_b32 v{vVa}, 8, v{vT}")
    a(f"v_xor_b32 v{vU}, s{sW}, v{vU}"); a(f"v_and_b32 v{vU}, 3, v{vU}")
    a(f"v_lshl_add_u32 v{vVa}, v{vU}, 6, v{vVa}")
    a(f"v_and_b32 v{vU}, 3, v{vLane}")
    a(f"v_lshl_add_u32 v{vVa}, v{vU}, 3, v{vVa}")
    a(f"v_and_b32 v{vU}, 16, v{vLane}")
    a(f"v_lshl_add_u32 v{vVa}, v{vU}, 1, v{vVa}")
    a(f"v_lshlrev_b32 v{vPa}, 4, v{vLane}"); a(f"v_add_u32 v{vPa}, {L_PS}, v{vPa}")
    a(f"v_mov_b32 v{vZ}, 0")
    a(f"v_lshlrev_b32 v{vMla}, 3, v{vR}"); a(f"v_add_u32 v{vMla}, {L_ML}, v{vMla}")
    a(f"s_mov_b32 s{sBase}, {L_Q}"); a(f"s_mov_b32 s{sC}, {f32(c)}"); a(f"s_add_u32 s{sCnt}, s{sMem}, 32")
    a(f"s_add_u32 s{sWo}, s{sW}, 2"); a(f"s_sub_u32 s50, s{sWo}, 7"); a(f"s_cselect_b32 s{sWo}, s{sWo}, s50")
    a(f"s_mov_b32 s{sBuf}, 0"); a(f"s_mov_b32 s{sJ}, s{sWo}"); a(f"s_mov_b32 s{sSlot}, 0"); a(f"s_mov_b32 s{sSt}, 0")
    a(f"s_mov_b32 s{sLim}, 1"); a(f"s_mov_b32 s{sStep}, 5")
    a(f"s_mul_i32 s50, s{sW}, {19*128}"); a(f"s_add_u32 s50, s50, {L_MI}")
    a(f"v_lshl_add_u32 v{vMIa}, v{vR}, 2, s50")
    a(f"v_mov_b32 v{vL}, 0"); a(f"v_mov_b32 v{vM}, {f32(-3.0e38)}"); a(f"v_mov_b32 v{vMC}, v{vM}")
    a(f"s_mul_i32 s50, s{sPair}, {PS}"); a(f"s_mul_i32 s51, s{sW}, 4608"); a("s_add_u32 s50, s50, s51"); a(f"s_add_u32 s50, s50, {W_DATA}")
    a("s_add_u32 s24, s52, s50"); a("s_addc_u32 s25, s53, 0"); a("s_movk_i32 s26, 4608"); a("s_mov_b32 s27, 0x20000")
    a("s_mov_b32 s32, s16"); a("s_mov_b32 s33, s17"); a("s_mov_b32 s34, 0x100000"); a("s_mov_b32 s35, 0x20000")
    a(f"s_lshl_b32 s50, s{sPair}, 13"); a(f"s_lshl_b32 s51, s{sW}, 6"); a("s_add_u32 s69, s50, s51")
    a("s_barrier")
    if calp == 1: a("s_memrealtime s[72:73]")
    for s in range(8): a(f"ds_read_b128 {vr(Q0 + 4*s, 4)}, v{vKrd[s]}")
    a("s_waitcnt lgkmcnt(0)")
    a("s_branch L_kgo")
    lab("L_kr")
    a("s_barrier")
    lab("L_kgo")
    a(f"s_cmp_gt_u32 s{sJ}, s{sLim}"); a("s_cbranch_scc1 L_kidle")
    a(f"s_lshl_b32 s50, s{sJ}, 13"); a(f"s_add_u32 s50, s50, s{sBuf}")
    a(f"s_mov_b32 s{sCur}, s{sSlot}"); a(f"s_add_u32 s{sSlot}, s{sSlot}, 8")
    lab("L_ktile")
    a(f"s_sub_u32 s51, s50, s{sBase}"); a(f"s_mov_b32 s{sBase}, s50")
    for s in range(8):
        a(f"v_add_u32 v{vKrd[s]}, s51, v{vKrd[s]}")
        a(f"ds_read_b128 {vr(KF + 4*s, 4)}, v{vKrd[s]}")
    a(f"s_lshl_b32 s50, s{sCur}, 4")
    a(f"v_add_u32 v{vTmp[1]}, s50, v{vMIa}")
    a(f"s_cmp_gt_u32 s{sJ}, 3")
    a("s_waitcnt lgkmcnt(7)")
    a("s_cbranch_scc1 L_kbias")
    a(f"v_mfma_f32_32x32x16_bf16 {vr(S0, 16)}, {vr(KF, 4)}, {vr(Q0, 4)}, 0")
    lab("L_k1")
    for s in range(1, 8):
        a(f"s_waitcnt lgkmcnt({7-s})")
        a(f"v_mfma_f32_32x32x16_bf16 {vr(S0, 16)}, {vr(KF + 4*s, 4)}, {vr(Q0 + 4*s, 4)}, {vr(S0, 16)}")
    a("s_nop 11")
    cm("online softmax; the reference is the running maximum rounded up to a whole power of two")
    a(f"v_max3_f32 v{vT}, v{S0}, v{S0+1}, v{vM}")
    a(f"v_max3_f32 v{vU}, v{S0+2}, v{S0+3}, v{S0+4}")
    for j in range(5, 15, 4):
        a(f"v_max3_f32 v{vT}, v{S0+j}, v{S0+j+1}, v{vT}")
        if j + 3 < 15: a(f"v_max3_f32 v{vU}, v{S0+j+2}, v{S0+j+3}, v{vU}")
    a(f"v_max3_f32 v{vT}, v{S0+15}, v{vU}, v{vT}")
    a(f"v_mov_b32 v{vU}, v{vT}")
    a("s_nop 1")
    a(f"v_permlane32_swap_b32 v{vT}, v{vU}")
    a(f"v_max_f32 v{vM}, v{vT}, v{vU}")
    a(f"v_mul_f32 v{vT}, s{sC}, v{vM}")
    a(f"v_ceil_f32 v{vT}, v{vT}")
    a(f"v_sub_f32 v{vAL}, v{vMC}, v{vT}")
    a(f"v_mov_b32 v{vMC}, v{vT}")
    a(f"ds_write_b32 v{vTmp[1]}, v{vT}")
    a(f"v_exp_f32 v{vAL}, v{vAL}")
    for j in range(16): a(f"v_fma_f32 v{S0+j}, v{S0+j}, s{sC}, -v{vMC}")
    for j in range(16): a(f"v_exp_f32 v{S0+j}, v{S0+j}")
    a(f"v_mul_f32 v{vL}, v{vL}, v{vAL}")
    a(f"s_set_gpr_idx_on s{sCur}, gpr_idx(DST)"); a("s_mov_b32 s50, 0x3f803f80")
    for j in range(8): a(f"v_cvt_pk_bf16_f32 v{PB+j}, v{S0+2*j}, v{S0+2*j+1}")
    a(f"s_set_gpr_idx_on s{sCur}, gpr_idx(SRC0)"); a("s_nop 0")
    for j in range(8): a(f"v_dot2_f32_bf16 v{vL}, v{PB+j}, s50, v{vL}")
    a("s_set_gpr_idx_off")
    lab("L_knext")
    a(f"s_add_u32 s{sJ}, s{sJ}, s{sStep}"); a(f"s_sub_u32 s50, s{sJ}, 7"); a(f"s_cselect_b32 s{sJ}, s{sJ}, s50")
    a(f"s_mov_b32 s{sLim}, 3"); a(f"s_mov_b32 s{sStep}, 3")
    nextbuf()
    a(f"s_sub_u32 s{sCnt}, s{sCnt}, 1"); a(f"s_cmp_lg_u32 s{sCnt}, 0"); a("s_cbranch_scc1 L_kr")

    cm("=============== between K and V: common reference M and sum L of this workgroup")
    a(f"v_mov_b32 v{vU}, v{vL}")
    a(f"s_lshl_b32 s50, s{sW}, 8")
    a(f"v_add_u32 v{vT}, s50, v{vMla}")
    a(f"v_permlane32_swap_b32 v{vL}, v{vU}")
    a(f"v_add_f32 v{vL}, v{vL}, v{vU}")
    a(f"ds_write_b64 v{vT}, {vr(vMC, 2)}")
    for j in range(0, 16, 2): a(f"v_mov_b64 {vr(O0+j, 2)}, 0")
    a(f"s_lshl_b32 s{sT0}, s{sMem}, 2"); a(f"s_add_u32 s{sT0}, s{sT0}, 2")
    a(f"s_add_u32 s{sCnt}, s{sMem}, 32"); a(f"s_mov_b32 s{sBase}, 0")
    a(f"s_sub_u32 s{sSlot}, s{sMem}, 1")
    a("s_waitcnt lgkmcnt(0)")
    a("s_barrier")
    if calp == 2: a("s_memrealtime s[72:73]")
    for k in range(7): a(f"ds_read_b32 v{KF + k}, v{vMla} offset:{256*k}")
    cm("wave 6 of the first workgroup stages the tree tile's probabilities (slot 18) now; it owns no tile of the first V round")
    a(f"s_mov_b32 s{sCur}, {18*8}"); a(f"s_mov_b32 s50, {L_TP - L_PS}")
    a(f"s_add_u32 s51, s{sW}, s{sMy}"); a("s_cmp_eq_u32 s51, 5")
    a("s_waitcnt lgkmcnt(0)")
    a(f"v_max3_f32 v{vMC}, v{KF}, v{KF+1}, v{KF+2}"); a(f"v_max3_f32 v{vMC}, v{vMC}, v{KF+3}, v{KF+4}"); a(f"v_max3_f32 v{vMC}, v{vMC}, v{KF+5}, v{KF+6}")
    a("s_cbranch_scc1 L_dump")
    lab("L_stage")
    cm("stage my tile of the coming round (tiles t0 .. t0+3; the closing half round is tiles 0, 1), if I own one")
    a(f"s_cmp_eq_u32 s{sCnt}, 1"); a(f"s_cselect_b32 s{sT0}, 0, s{sT0}"); a(f"s_cselect_b32 s{sLim}, 1, 3")
    a(f"s_add_u32 s50, s{sT0}, 6"); a(f"s_sub_u32 s50, s50, s{sWo}")
    a("s_mul_i32 s50, s50, 9363"); a("s_lshr_b32 s50, s50, 16")
    a(f"s_lshl_b32 s{sCur}, s50, 3")
    a(f"s_sub_u32 s50, s{sCur}, s50"); a(f"s_add_u32 s50, s50, s{sWo}"); a(f"s_sub_u32 s50, s50, s{sT0}")
    a(f"s_cmp_gt_u32 s50, s{sLim}"); a("s_cbranch_scc1 L_vnext")
    a(f"s_lshl_b32 s50, s50, 11"); a(f"s_add_u32 s50, s50, s{sBase}")
    lab("L_dump")
    a(f"s_lshl_b32 s51, s{sCur}, 4")
    a(f"v_add_u32 v{vT}, s51, v{vMIa}")
    a(f"ds_read_b32 v{vT}, v{vT}")
    a(f"v_add_u32 v{vU}, s50, v{vPa}")
    a("s_waitcnt lgkmcnt(0)")
    a(f"v_sub_f32 v{vT}, v{vMC}, v{vT}")
    a(f"v_min_f32 v{vT}, {f32(255.0)}, v{vT}")
    a(f"v_cvt_u32_f32 v{vT}, v{vT}")
    a(f"v_mul_u32_u24 v{vT}, 0x800080, v{vT}")
    a(f"s_set_gpr_idx_on s{sCur}, gpr_idx(SRC0)"); a("s_nop 0")
    for j in range(8): a(f"v_pk_sub_u16 v{DT+j}, v{PB+j}, v{vT} clamp")
    a("s_set_gpr_idx_off")
    a(f"ds_write_b128 v{vU}, {vr(DT, 4)}"); a(f"ds_write_b128 v{vU}, {vr(DT+4, 4)} offset:1024")
    lab("L_vnext")
    a(f"s_add_u32 s{sT0}, s{sT0}, 4"); a(f"s_cmp_eq_u32 s{sT0}, 130"); a(f"s_cselect_b32 s{sT0}, 2, s{sT0}")
    a(f"v_add_u32 v{vT}, s{sBuf}, v{vVa}"); a(f"v_add_u32 v{vU}, s{sBase}, v{vPa}")
    a(f"s_xor_b32 s{sBase}, s{sBase}, 8192")
    nextbuf()
    a(f"s_sub_u32 s{sCnt}, s{sCnt}, 1")
    a(f"s_cmp_gt_u32 s{sW}, 3")
    a("s_waitcnt lgkmcnt(0)")
    a("s_cbranch_scc1 L_vside")
    a(f"s_cmp_eq_u32 s{sCnt}, s{sSlot}"); a("s_cbranch_scc1 L_close")
    a(f"s_cmp_eq_u32 s{sCnt}, 0")
    if st6:
        a("s_memrealtime s[74:75]")
    a("s_barrier")
    if st6:
        a("s_memrealtime s[76:77]")
    lab("L_vbody")
    def vreads(t):
        for u in range(2):
            for z in range(2): a(f"ds_read_b64_tr_b16 {vr(VF + 8*t + 4*u + 2*z, 2)}, v{vT} offset:{8192*t + 4096*u + 2048*z}")
    def preads(t):
        for u in range(2): a(f"ds_read_b128 {vr(PF + 8*t + 4*u, 4)}, v{vU} offset:{2048*t + 1024*u}")
    def pvm(t):
        for u in range(2): a(f"v_mfma_f32_32x32x16_bf16 {vr(O0, 16)}, {vr(VF + 8*t + 4*u, 4)}, {vr(PF + 8*t + 4*u, 4)}, {vr(O0, 16)}")
    preads(0); vreads(0); preads(1); vreads(1)
    a("s_waitcnt lgkmcnt(6)"); pvm(0)
    a("s_cbranch_scc1 L_last")
    preads(2); vreads(2)
    a("s_waitcnt lgkmcnt(6)"); pvm(1)
    preads(3); vreads(3)
    a("s_waitcnt lgkmcnt(6)"); pvm(2)
    a(f"s_cmp_eq_u32 s{sCnt}, 20")
    a("s_waitcnt lgkmcnt(0)"); pvm(3)
    a("s_cbranch_scc0 L_stage")
    cm("once: the sum L; the tree tile (keys 0..15 only)")
    for k in range(7): a(f"ds_read_b64 {vr(KF + 2*k, 2)}, v{vMla} offset:{256*k}")
    a(f"v_add_u32 v{vT}, {L_TV}, v{vVa}")
    a(f"ds_read_b128 {vr(PF, 4)}, v{vPa} offset:{L_TP - L_PS}")
    for z in range(2): a(f"ds_read_b64_tr_b16 {vr(PF + 4 + 2*z, 2)}, v{vT} offset:{2048*z}")
    a(f"s_cmp_lg_u32 s{sMem}, 0")
    a("s_waitcnt lgkmcnt(0)")
    for k in range(7): a(f"v_sub_f32 v{KF+2*k}, v{KF+2*k}, v{vMC}")
    for k in range(7): a(f"v_exp_f32 v{KF+2*k}, v{KF+2*k}")
    a(f"v_mul_f32 v{vL}, v{KF}, v{KF+1}")
    for k in range(1, 7): a(f"v_fma_f32 v{vL}, v{KF+2*k}, v{KF+2*k+1}, v{vL}")
    a("s_cbranch_scc1 L_stage")
    a(f"v_mfma_f32_32x32x16_bf16 {vr(O0, 16)}, {vr(PF + 4, 4)}, {vr(PF, 4)}, {vr(O0, 16)}")
    a("s_branch L_stage")

    lab("L_last")
    cm("=============== closing half round and hand-off")
    if calp == 3: a("s_memrealtime s[72:73]")
    PP, PM = 120, 136
    def addrs(r): a(f"v_lshlrev_b32 v{r}, 4, v{vLane}"); a(f"v_lshlrev_b32 v{r+1}, 3, v{vLane}"); a(f"v_add_u32 v{r+1}, 4096, v{r+1}")
    def fetch(r):
        a(f"buffer_load_dwordx2 {vr(PM, 2)}, v{r+1}, {SD}, 0 offen {hlf}")
        for x in range(4 - halfx): a(f"buffer_load_dwordx4 {vr(PP + 4*x, 4)}, v{r}, {SD}, 0 offen offset:{1024*x} {hlf}")
    addrs(DT + 2)
    a(f"s_cmp_lg_u32 s{sMem}, 0")
    a("s_waitcnt lgkmcnt(0)"); pvm(1)
    a("s_cbranch_scc1 L_merge")
    cm("first workgroup: publish, then raise the flag")
    a(f"buffer_store_dwordx2 {vr(vMC, 2)}, v{DT+3}, {SD}, 0 offen {hsf}")
    a("s_nop 9")
    for x in range(4 - halfx): a(f"buffer_store_dwordx4 {vr(O0 + 4*x, 4)}, v{DT+2}, {SD}, 0 offen offset:{1024*x} {hsf}")
    st(3)
    a("s_mov_b32 s50, 8")
    a(f"s_cmp_lg_u32 s{sW}, 0")
    a("s_waitcnt vmcnt(0)")
    st(4)
    a("s_barrier")
    st(5)
    a("s_cbranch_scc1 L_done")
    a("s_atomic_xor s50, s[66:67], 0")
    a("s_branch L_done")
    lab("L_close")
    cm("second workgroup: the closing rendezvous also waits for wave 5 to have seen the flag; fetch the other result first")
    addrs(DT + 2)
    st(1)
    a("s_barrier")
    st(2)
    if calp == 5: a("s_memrealtime s[76:77]")
    lab("L_fetch")
    fetch(DT + 2)
    a("s_branch L_vbody")
    lab("L_merge")
    st(3); st(4)
    a(f"v_lshlrev_b32 v{DT+4}, 8, v{vR}"); a(f"v_lshl_add_u32 v{DT+4}, v{vH}, 4, v{DT+4}")
    FA, FB = 138, 140
    a(f"s_waitcnt vmcnt({0 if halfx else 4})")
    a(f"v_max_f32 v{vT}, v{vMC}, v{PM}")
    a(f"v_sub_f32 v{FA}, v{vMC}, v{vT}"); a(f"v_sub_f32 v{FB}, v{PM}, v{vT}")
    a(f"v_exp_f32 v{FA}, v{FA}"); a(f"v_exp_f32 v{FB}, v{FB}")
    a(f"v_mul_f32 v{vT}, v{FA}, v{vL}")
    a(f"v_fma_f32 v{vT}, v{FB}, v{PM+1}, v{vT}")
    a(f"v_rcp_f32 v{vT}, v{vT}")
    a("s_nop 0")
    a(f"v_mul_f32 v{FA}, v{FA}, v{vT}"); a(f"v_mul_f32 v{FB}, v{FB}, v{vT}")
    for j in range(8): a(f"v_pk_mul_f32 {vr(O0+2*j, 2)}, {vr(O0+2*j, 2)}, {vr(FA, 2)} op_sel_hi:[1,0]")
    for b in range(2):
        a(f"s_waitcnt vmcnt({2 if b == 0 else 1})")
        if b == 1: st(5)
        for j in range(4*b, 4*b + 4): a(f"v_pk_fma_f32 {vr(O0+2*j, 2)}, {vr(PP+2*j, 2)}, {vr(FB, 2)}, {vr(O0+2*j, 2)} op_sel_hi:[1,0,1]")
        for j in (0, 2, 1, 3): a(f"v_cvt_pk_bf16_f32 v{KF+4*b+j}, v{O0+8*b+2*j}, v{O0+8*b+2*j+1}")
        a(f"v_permlane32_swap_b32 v{KF+4*b}, v{KF+4*b+2}"); a("s_nop 0"); a(f"v_permlane32_swap_b32 v{KF+4*b+1}, v{KF+4*b+3}")
        a(f"buffer_store_dwordx4 {vr(KF+4*b, 4)}, v{DT+4}, {SO}, s69 offen offset:{32*b} {ofl}")
    st(6)
    if reh: a(f"s_cmp_eq_u32 s{sW}, 6"); a("s_cbranch_scc1 L_stage")
    lab("L_done")
    if st6:
        a("s_waitcnt vmcnt(0)"); a("s_memrealtime s[86:87]"); a("s_waitcnt lgkmcnt(0)")
        a(f"s_lshl_b32 s50, s{sMem}, 2"); a("v_mov_b32 v20, s50")
        for i in range(1, 8): a(f"v_writelane_b32 v20, s{72+2*i}, {i}")
        a("s_lshl_b32 s50, s2, 2"); a(f"s_add_u32 s50, s50, s{sW}"); a("s_lshl_b32 s50, s50, 8"); a("s_add_u32 s50, s50, 0x200000")
        a(f"v_lshl_add_u32 v21, v{vLane}, 2, s50")
        a("global_store_dword v21, v20, s[52:53]")
    if cal:
        a(f"s_mov_b32 s74, {cal}")
        if calp >= 4: a("s_waitcnt vmcnt(0)"); a("s_memrealtime s[72:73]")
        if calp == 5:
            a("s_waitcnt lgkmcnt(0)"); a("s_sub_u32 s72, s72, s76"); a(f"s_mul_i32 s72, s72, s{sMem}")
            a("s_mul_i32 s72, s72, 20"); a("s_add_u32 s74, s74, s72"); a("s_min_u32 s74, s74, 30000")
        elif calp:
            a("s_waitcnt lgkmcnt(0)"); a("s_sub_u32 s72, s72, s54"); a(f"s_sub_u32 s72, s72, {(0, 0, 3000, 6500, 6500)[calp]}")
            a("s_mul_i32 s72, s72, 5"); a("s_add_u32 s74, s74, s72"); a("s_min_u32 s74, s74, 30000")
        lab("L_cal")
        a("s_memrealtime s[56:57]"); a("s_waitcnt lgkmcnt(0)"); a("s_sub_u32 s56, s56, s54"); a(f"s_cmp_lt_u32 s56, s74"); a("s_cbranch_scc1 L_cal")
    if stamp: stamp_out()
    lab("L_end")
    a("s_endpgm")

    if reh:
        lab("L_reh")
        cm("wave 7 of the second workgroup runs the closing code once ahead of time, through empty descriptors, so that it is in the instruction cache")
        a("s_mov_b32 s26, 0"); a("s_mov_b32 s34, 0")
        addrs(DT + 2)
        a("s_branch L_fetch")
    lab("L_vside")
    cm("waves 5..7 only stage")
    a(f"s_cmp_eq_u32 s{sCnt}, 0"); a("s_cbranch_scc1 L_end")
    a("s_barrier")
    if reh:
        a(f"s_lshl_b32 s50, s{sCnt}, 4"); a(f"s_add_u32 s50, s50, s{sW}"); a(f"s_add_u32 s50, s50, s{sMy}")
        a(f"s_cmp_eq_u32 s50, {reh * 16 + 14}"); a("s_cbranch_scc1 L_reh")
    a(f"s_cmp_lg_u32 s{sW}, 4"); a("s_cbranch_scc1 L_stage")
    a(f"s_cmp_eq_u32 s{sCnt}, 24"); a("s_cbranch_scc1 L_hsfin")
    a(f"s_cmp_lg_u32 s{sCnt}, s{sMem}"); a("s_cbranch_scc1 L_stage")
    cm("wave 5 of the second workgroup owns no tile of the closing half round: it watches the word")
    a(f"s_mov_b32 s71, {BOUND}")
    lab("L_poll")
    a(f"global_load_dword v{vU}, v{vZ}, s[66:67] sc1")
    a("s_sub_u32 s71, s71, 1"); a("s_cbranch_scc1 L_seen")
    a("s_waitcnt vmcnt(0)")
    a(f"v_readfirstlane_b32 s50, v{vU}")
    a(f"s_xor_b32 s50, s50, s{sSnap}")
    a("s_bitcmp1_b32 s50, 3"); a("s_cbranch_scc0 L_poll")
    lab("L_seen")
    a("s_barrier")
    a("s_endpgm")

    cm("=============== out-of-line pieces of the K phase")
    lab("L_kbias")
    a(f"v_mfma_f32_32x32x16_bf16 {vr(S0, 16)}, {vr(KF, 4)}, {vr(Q0, 4)}, {vr(S0, 16)}")
    a("s_branch L_k1")
    lab("L_kidle")
    a(f"s_cmp_eq_u32 s{sW}, 4"); a("s_cbranch_scc1 L_hs")
    a(f"s_add_u32 s50, s{sW}, s{sMy}"); a("s_cmp_lg_u32 s50, 5"); a("s_cbranch_scc1 L_knext")
    a(f"s_cmp_eq_u32 s{sCnt}, 31"); a("s_cbranch_scc1 L_tree1")
    a(f"s_cmp_lg_u32 s{sCnt}, 29"); a("s_cbranch_scc1 L_knext")
    cm("tree tokens, step 2: score bias (1-mask) * -1e9 / scale, then the ordinary tile code")
    big = 1e9 * math.sqrt(128)
    TM = PB + 18 * 8
    a(f"s_mov_b32 s51, {f32(big)}")
    a(f"v_mov_b32 v{vU}, {f32(-big)}")
    for j in range(8, 16): a(f"v_mov_b32 v{S0+j}, 0xff800000")
    a("s_waitcnt vmcnt(0)")
    for j in range(4):
        a(f"v_lshlrev_b32 v{S0+2*j}, 16, v{TM+j}"); a(f"v_and_b32 v{S0+2*j+1}, 0xffff0000, v{TM+j}")
    for j in range(8): a(f"v_fma_f32 v{S0+j}, v{S0+j}, s51, v{vU}")
    a(f"s_mov_b32 s{sCur}, {18*8}"); a(f"s_mov_b32 s50, {L_TK}")
    a("s_branch L_ktile")
    lab("L_tree1")
    cm("tree tokens, step 1 (wave 6 of the first workgroup): K/V -> LDS, mask -> registers")
    k_offsets()
    a(f"s_lshl_b32 s45, s{sPair}, 12"); a("s_movk_i32 s51, 4096")
    a("s_add_u32 s20, s10, s45"); a("s_addc_u32 s21, s11, 0"); a("s_mov_b32 s22, 4096"); a("s_mov_b32 s23, 0x20000")
    a(f"s_mov_b32 m0, {L_TK}")
    a("s_add_u32 s28, s12, s45"); a("s_addc_u32 s29, s13, 0"); a("s_mov_b32 s30, 4096"); a("s_mov_b32 s31, 0x20000")
    for j in range(4): a(f"buffer_load_dwordx4 v{vOff[j]}, {SS}, 0 offen offset:{j*1024} {qfl} lds")
    a(f"s_mov_b32 m0, {L_TK + 4096}")
    a(f"s_lshr_b32 s50, s{sPair}, 4"); a("s_lshl_b32 s50, s50, 9")
    for j in range(4): a(f"buffer_load_dwordx4 v{vOff[j]}, {SS}, s51 offen offset:{j*1024} lds")
    v_offset()
    a(f"s_mov_b32 m0, {L_TV}")
    a("s_add_u32 s36, s14, s50"); a("s_addc_u32 s37, s15, 0"); a("s_mov_b32 s38, 512"); a("s_mov_b32 s39, 0x20000")
    for j in range(4): a(f"buffer_load_dwordx4 v{vOff[0]}, {SQ}, 0 offen offset:{j*1024} {qfl} lds")
    a(f"v_and_b32 v{vU}, 15, v{vR}"); a(f"v_lshlrev_b32 v{vU}, 5, v{vU}"); a(f"v_lshl_add_u32 v{vU}, v{vH}, 3, v{vU}")
    a(f"buffer_load_dwordx2 {vr(TM, 2)}, v{vU}, {SM}, 0 offen")
    a(f"buffer_load_dwordx2 {vr(TM+2, 2)}, v{vU}, {SM}, 0 offen offset:16")
    a("s_branch L_knext")
    cm("hand-off word: bit 0 started, bit 1 acknowledged, bit 3 result published; +8 for the second workgroup. Only changes")
    cm("against the value seen at my own start count, and nothing is published before both have taken that snapshot.")
    def hs_poll(again, done):
        a(f"global_load_dword v{vU}, v{vZ}, s[66:67] sc1")
        a("s_waitcnt vmcnt(0)")
        a(f"v_readfirstlane_b32 s50, v{vU}")
        a(f"s_xor_b32 s50, s50, s{sSnap}"); a(f"s_lshr_b32 s50, s50, s{sOt}")
        a("s_and_b32 s51, s50, 3"); a(f"s_cbranch_scc0 {again}")
        a(f"s_mov_b32 s{sSt}, 2")
        a("s_bitcmp1_b32 s50, 0"); a(f"s_cbranch_scc0 {done}")
        a(f"s_lshl_b32 s{sAck}, 2, s{sMy}"); a(f"s_atomic_xor s{sAck}, s[66:67], 0")
        a(f"s_branch {done}")
    lab("L_hs")
    if "v" in warm:
        a(f"s_cmp_gt_u32 s{sCnt}, 4"); a("s_cbranch_scc1 L_hs0")
        a(f"s_lshl_b32 s50, s{sPair}, 21"); a("s_add_u32 s50, s8, s50"); a("s_addc_u32 s51, s9, 0")
        a(f"global_load_dword v{vTmp[0]}, v{vZ}, s[50:51] nt")
        lab("L_hs0")
    a(f"s_cmp_eq_u32 s{sSt}, 2"); a("s_cbranch_scc1 L_knext")
    a(f"s_cmp_eq_u32 s{sLim}, 1"); a("s_cbranch_scc1 L_knext")
    hs_poll("L_knext", "L_knext")
    lab("L_hsfin")
    if "o" in warm: a(f"buffer_load_dword v{vTmp[0]}, v{vZ}, {SO}, s69 offen")
    a(f"s_mov_b32 s71, {BOUND}")
    lab("L_hsw")
    a(f"s_cmp_eq_u32 s{sSt}, 2"); a("s_cbranch_scc1 L_stage")
    a("s_sub_u32 s71, s71, 1"); a("s_cbranch_scc1 L_stage")
    hs_poll("L_hsw", "L_stage")
    check_hazards([x for x in L if not x.startswith(".")])
    out = HEADER + DOC + f"; @launch grid=(256,1,1) block=(512,1,1) lds={LDS}\n"
    out += '.amdgcn_target "amdgcn-amd-amdhsa--gfx950"\n.text\n' + f".globl {NAME}\n.p2align 8\n.type {NAME},@function\n{NAME}:\n"
    out += "\n".join(L) + "\n"
    out += '.section .rodata,"a"\n.p2align 6\n' + f".amdhsa_kernel {NAME}\n"
    out += f"  .amdhsa_next_free_vgpr 256\n  .amdhsa_next_free_sgpr 96\n  .amdhsa_accum_offset 256\n"
    out += "  .amdhsa_group_segment_fixed_size 0\n  .amdhsa_kernarg_size 72\n  .amdhsa_user_sgpr_count 2\n"
    out += "  .amdhsa_user_sgpr_kernarg_segment_ptr 1\n  .amdhsa_system_sgpr_workgroup_id_x 1\n.end_amdhsa_kernel\n"
    return out

if __name__ == "__main__":
    out = sys.argv[1]
    kw = {}
    for x in sys.argv[2:]:
        k, v = x.split("=", 1)
        if v in ("True", "False"): v = v == "True"
        else:
            try: v = int(v)
            except ValueError: pass
        kw[k] = v
    open(out, "w").write(gen(**kw))
```

```python
import sys, struct, math
from hz import check_hazards
NAME = "standalone__tree_speculative_verify_tree_attention_over_candidate_token_tree__sampling_kernel"
HEADER = open("standalone__tree_speculative_verify_tree_attention_over_candidate_token_tree__sampling.s.ref").read().split("; Override launch")[0]
DOC = """;
"""

def f32(x): return "0x%08x" % struct.unpack("<I", struct.pack("<f", x))[0]

def gen(levels="19,20,21,23,28,32", start=1, lmap="01111223", cps="4,10,16,22,28,34,40,45,50,54,57,59", SP=62, LH=32, jbits="12,13,14,11,10", mbit=16,
        stamp=False, fl="nt", prio=3, xat=12, st4=False, st6=False, cal=0, ofl="", WSOFF=0, BOUND=1 << 22, pre=False, LH0=0, SP2=0, spoll=0, boost=0, shalf=1, qfl="", hsf="sc1", hlf="sc1", R=8, rmap="011112223", rot=3, help="", hfl="", adj=1, warm="", calp=0, reh=0, halfx=0, trim=0, late=-1, LATE=59, lmap2="00111234", rmap2="001112344", gate="", hs=0, emu=0, st0=-1, st1=-1):
    L = []
    def a(s): L.append("    " + s)
    def lab(s): L.append(s + ":")
    def cm(s): L.append("    ; " + s)
    def vr(b, n): return f"v[{b}:{b+n-1}]"
    RB = 32768
    L_PS = 3 * RB
    L_Q, L_TK = L_PS, L_PS + 8192
    L_MI = L_PS + 16384
    L_TV = L_MI + 17408
    L_TP = L_TV + 4096
    L_ML = L_TP + 2048
    LDS = L_ML + 2048
    W_WORD = WSOFF
    W_RANK = WSOFF + 65536
    W_DATA = WSOFF + 262144
    PS = 18432 + (256 if adj else 0)
    vLane, vH, vR, vMIa = 96, 97, 98, 99
    vM, vMC, vL, vT, vU, vAL = 101, 102, 103, 1, 6, 7
    vTmp = [0, 100]
    Q0, KF, S0, vKrd, PB = 8, 40, 72, list(range(88, 96)), 104
    PF, VF, O0, DT = 8, 40, 72, 88
    vVa, vPa, vZ, vMla = 2, 3, 4, 5
    vOff = [40, 41, 42, 43]
    sPair, sMem, sK, sT, sBuf, sC, sCnt, sJ, sSlot, sCur, sBase, sW, sSnap, sSt, sMy, sOt = 40, 41, 42, 43, 44, 46, 47, 48, 49, 60, 61, 59, 62, 63, 64, 65
    sLim, sStep, sT0, sAck, sN, sWo = 68, 70, 48, 94, 95, 93
    SS, SQ, SO, SM, SD = "s[20:23]", "s[28:31]", "s[32:35]", "s[36:39]", "s[24:27]"
    c = (128 ** -0.5) * math.log2(math.e)
    jb = [int(x) for x in str(jbits).split(",")]
    def B(j): return sum(((j >> i) & 1) << b for i, b in enumerate(jb))
    maskR = sum(1 << b for b in range(10, 21) if b not in jb and b != mbit)
    lowR = (maskR & -maskR).bit_length() - 1
    lv = [float(x) for x in str(levels).split(",")]
    cp = [int(x) for x in str(cps).split(",")] if cps != "" else []
    assert len(cp) <= 16
    lm = [int(ch) for ch in str(lmap).zfill(8)]
    def st(n):
        if st6: a(f"s_memrealtime s[{72+2*n}:{73+2*n}]")

    def stamp_out():
        a("s_waitcnt vmcnt(0)")
        a("s_memrealtime s[56:57]")
        a("s_getreg_b32 s58, hwreg(HW_REG_XCC_ID)")
        a("s_waitcnt lgkmcnt(0)")
        a("v_mov_b32 v8, s54"); a("v_mov_b32 v9, s56"); a("v_mov_b32 v10, s58");  a("v_mov_b32 v11, 0")
        a("s_lshl_b32 s50, s2, 3"); a("s_add_u32 s50, s50, s3"); a("s_lshl_b32 s50, s50, 4")
        a("v_mov_b32 v12, s50")
        a("s_mov_b64 exec, 1")
        a("global_store_dwordx4 v12, v[8:11], s[52:53]")
    def ids():
        a(f"v_and_b32 v{vLane}, 63, v0")
        a(f"s_lshr_b32 s{sPair}, s2, 4"); a(f"s_lshl_b32 s{sPair}, s{sPair}, 3"); a("s_and_b32 s50, s2, 7"); a(f"s_or_b32 s{sPair}, s{sPair}, s50")
        a(f"s_bfe_u32 s{sMem}, s2, 0x10003")
    def k_offsets():
        cm("K-shaped DMA source offsets: row rr = lane>>4, slot p = lane&15 -> rr*256 + ((p ^ (4j+rr)) * 16)")
        a(f"v_lshlrev_b32 v{vTmp[0]}, 4, v{vLane}")
        a(f"v_and_b32 v{vTmp[1]}, 0x30, v{vLane}")
        a(f"v_xor_b32 v{vOff[0]}, v{vTmp[0]}, v{vTmp[1]}")
        for j in range(1, 4): a(f"v_xor_b32 v{vOff[j]}, {64*j}, v{vOff[0]}")
    def v_offset():
        cm("V DMA source offset: rr*256 + ((p ^ 4rr) * 16)")
        a(f"v_lshlrev_b32 v{vTmp[0]}, 4, v{vLane}")
        a(f"v_and_b32 v{vTmp[1]}, 0x30, v{vLane}")
        a(f"v_lshlrev_b32 v{vTmp[1]}, 2, v{vTmp[1]}")
        a(f"v_xor_b32 v{vOff[0]}, v{vTmp[0]}, v{vTmp[1]}")
    def nextbuf():
        a(f"s_add_u32 s{sBuf}, s{sBuf}, {RB}")
        a(f"s_cmp_eq_u32 s{sBuf}, {3*RB}"); a(f"s_cselect_b32 s{sBuf}, 0, s{sBuf}")

    a("s_load_dwordx16 s[4:19], s[0:1], 0")
    a("s_load_dwordx2 s[52:53], s[0:1], 64")
    if stamp or cal: a("s_memrealtime s[54:55]")
    a("v_readfirstlane_b32 s3, v0")
    a("s_cmp_ge_u32 s2, 256"); a("s_cbranch_scc1 L_end")
    if late >= 0:
        a("s_and_b32 s50, s2, 24"); a(f"s_cmp_lg_u32 s50, {late * 8}"); a("s_cbranch_scc1 L_notlate")
        a("s_mov_b32 s50, 60")
        lab("L_late"); a("s_sleep 100"); a("s_sub_u32 s50, s50, 1"); a("s_cbranch_scc0 L_late")
        lab("L_notlate")
    a("s_lshr_b32 s3, s3, 6")
    a("s_cbranch_scc1 L_cons")
    cm("=============== loader wave")
    if trim:
        a("s_lshr_b32 s50, s2, 4"); a("s_and_b32 s51, s2, 7"); a(f"s_lshl3_add_u32 s{sPair}, s50, s51")
        cm("K-shaped DMA source offsets: row rr = lane>>4, slot p = lane&15 -> rr*256 + ((p ^ (4j+rr)) * 16) + piece offset - j*1024")
        a("v_lshlrev_b32 v1, 4, v0"); a("v_and_b32 v2, 48, v0"); a(f"v_xor_b32 v{vOff[0]}, v1, v2")
        a(f"s_lshl_b32 s45, s{sPair}, 21"); a("s_and_b32 s46, s2, 8"); a(f"s_lshl_b32 s46, s46, {jb[4] - 3}"); a(f"s_or_b32 s46, s46, {maskR}")
        a("s_lshl_b32 s22, 1, 21"); a("s_mov_b32 s23, 0x20000")
        for j in range(1, 4): a(f"v_xor_b32 v{vOff[j]+4}, {64*j}, v{vOff[0]}"); a(f"v_add_u32 v{vOff[j]}, {B(j) - 1024*j}, v{vOff[j]+4}")
        a(f"s_mov_b32 s{sBuf}, 0"); a(f"s_mov_b32 s{sCnt}, 0")
    else:
        if prio: a(f"s_setprio {prio}")
        ids(); k_offsets()
        for j in range(1, 4):
            assert B(j) >= 1024*j
            a(f"v_mov_b32 v{vOff[j]+4}, v{vOff[j]}")
            a(f"v_add_u32 v{vOff[j]}, {B(j) - 1024*j}, v{vOff[j]}")
        a(f"s_lshl_b32 s50, s{sPair}, 13"); a("s_mov_b32 s30, 8192"); a("s_mov_b32 s31, 0x20000"); a("s_movk_i32 s51, 4096")
        a(f"s_lshl_b32 s45, s{sPair}, 21")
        a("s_mov_b32 s22, 0x200000"); a("s_mov_b32 s23, 0x20000")
        a(f"s_mul_i32 s46, s{sMem}, {B(16)}"); a(f"s_add_u32 s46, s46, {maskR}")
        a(f"s_mov_b32 s{sBuf}, 0"); a(f"s_mov_b32 s{sCnt}, 0")
    def vm(x, n):
        lo = int(x); fr = x - lo
        return lo + (1 if (n % 16) < fr * 16 else 0) - 1
    def half(x):
        for g in range(6 if emu else 4):
            if emu and g == 4: a("s_bitcmp1_b32 s2, 3"); a("s_cbranch_scc1 L_hx")
            a(f"s_add_u32 m0, s{sBuf}, {g*4096}"); a(f"s_add_u32 s{sT}, s46, {B(4*g)}")
            for j in range(4):
                if x: a(f"s_waitcnt vmcnt({vm(x, 0)})")
                a(f"buffer_load_dwordx4 v{vOff[j]}, {SS}, s{sT} offen offset:{j*1024} {fl} lds")
    a("s_waitcnt lgkmcnt(0)")
    a("s_add_u32 s20, s6, s45"); a("s_addc_u32 s21, s7, 0")
    if shalf:
        lab("L_half")
        cm("opening (K) and closing (V) half round: the two workgroups split the first one's round 31")
        half(float(LH))
        if emu: lab("L_hx")
        a(f"s_cmp_lg_u32 s{sCnt}, 0"); a("s_cbranch_scc1 " + ("L_hret" if hs else "L_h2"))
    else: half(0)
    if trim:
        a(f"s_lshl_b32 s50, s{sPair}, 13"); a("s_movk_i32 s30, 8192"); a("s_mov_b32 s31, 0x20000"); a("s_movk_i32 s51, 4096")
    a(f"s_mov_b32 m0, {L_Q}"); a("s_add_u32 s28, s4, s50"); a("s_addc_u32 s29, s5, 0")
    for j in range(4): a(f"buffer_load_dwordx4 v{vOff[j] + (4 if j else 0)}, {SQ}, 0 offen offset:{j*1024} {qfl} lds")
    a(f"s_mov_b32 m0, {L_Q + 4096}"); a("s_nop 0")
    for j in range(4): a(f"buffer_load_dwordx4 v{vOff[j] + (4 if j else 0)}, {SQ}, s51 offen offset:{j*1024} {qfl} lds")
    if trim:
        if prio: a(f"s_setprio {prio}")
        a(f"s_bfe_u32 s{sMem}, s2, 0x10003"); a(f"v_mov_b32 v{vLane}, v0")
    cm("rounds at which something besides streaming is due: a progress check, its result, the switch to V, the sprint, the end")
    def evm(n): return sum(1 << (r - 1) for r in set(cp) | set(r + 1 for r in cp) | {n, 2 * n} | ({SP} if SP < 2 * n else set()) | ({SP2} if SP2 else set()) | ({boost} if boost else set()) | (set(range(SP - 3, 64)) if gate != "" else set()))
    cpm = sum(1 << r for r in cp)
    a(f"s_lshl_b32 s48, s{sMem}, {mbit}"); a(f"s_mov_b32 s{sK}, s48"); a(f"s_mov_b32 s{sBuf}, {RB}")
    a(f"s_add_u32 s{sN}, s{sMem}, 31"); a(f"s_add_u32 s49, s{sN}, 1")
    a(f"s_mov_b32 s84, {(evm(31) | evm(32)) & 0xffffffff:#x}"); a(f"s_mov_b32 s85, {(evm(31) | evm(32)) >> 32:#x}")
    a(f"s_mov_b32 s86, {cpm & 0xffffffff:#x}"); a(f"s_mov_b32 s87, {cpm >> 32:#x}")
    a(f"s_mov_b32 s88, {start}"); a("s_and_b32 s90, s2, 7")
    if R == 32: a("s_lshr_b32 s89, s2, 4")
    if R == 32: a(f"s_lshl_b32 s91, s{sMem}, 8"); a(f"s_add_u32 s91, s91, {W_RANK}")
    else: a(f"s_mov_b32 s91, {W_RANK}"); a("s_lshr_b32 s89, s2, 3"); a("s_lshl_b32 s90, s90, 2"); a(f"s_add_u32 s90, s90, {rot}")
    a("s_mov_b32 s92, -1")
    if st4: a("s_mov_b32 s74, 0"); a("v_mov_b32 v20, 0"); a("v_mov_b32 v21, 0"); a("v_mov_b32 v22, 0")
    def rnd(x, sfx):
        bar_at = min(n for n in range(32) if vm(x, n) <= n)
        for g in range(8):
            if 4 * g == xat:
                a(f"s_cmp_lg_u32 s{sCnt}, s49"); a(f"s_cbranch_scc1 L_nx{sfx}")
                if st4: a("s_memrealtime s[76:77]")
                a("s_barrier")
                if st4: a("s_memrealtime s[78:79]")
                lab("L_nx" + sfx)
            a(f"s_add_u32 m0, s{sBuf}, {g*4096}"); a(f"s_add_u32 s{sT}, s{sK}, {B(4*g)}")
            for j in range(4):
                n = 4 * g + j
                a(f"s_waitcnt vmcnt({vm(x, n)})")
                a(f"buffer_load_dwordx4 v{vOff[j]}, {SS}, s{sT} offen offset:{j*1024} {fl} lds")
                if n == bar_at:
                    if st4: a("s_memrealtime s[70:71]")
                    a("s_barrier")
                    if st4: a("s_memrealtime s[72:73]")
    if st0 >= 0:
        a(f"s_cmp_eq_u32 s{sMem}, 0"); a(f"s_cselect_b32 s88, {st0}, {st1}"); a(f"s_cbranch_scc1 L_lv{st0}"); a(f"s_branch L_lv{st1}")
    order = [start] + [i for i in range(len(lv)) if i != start]
    if hs: order = order[:-1]
    if boost: order = [order[-1]] + order[:-1]
    for i in order:
        lab(f"L_lv{i}")
        cm(f"one round with {lv[i]:g} pieces in flight")
        rnd(lv[i], str(i))
        cm("next round: the source offset counts through the address bits a round leaves fixed; buffers rotate mod 3")
        nextbuf()
        if st4:
            a("s_waitcnt lgkmcnt(0)"); a("s_mov_b32 m0, s74"); a("s_add_u32 s74, s74, 1")
            a("v_writelane_b32 v20, s70, m0"); a("v_writelane_b32 v21, s72, m0")
        a(f"s_or_b32 s{sK}, s{sK}, {(~maskR) & 0xffffffff:#x}"); a(f"s_add_u32 s{sK}, s{sK}, 1"); a(f"s_and_b32 s{sK}, s{sK}, {maskR:#x}")
        a(f"s_or_b32 s{sK}, s{sK}, s48")
        a(f"s_add_u32 s50, s{sCnt}, 1")
        a(f"s_bitcmp1_b64 s[84:85], s{sCnt}"); a(f"s_mov_b32 s{sCnt}, s50")
        a(f"s_cbranch_scc0 L_lv{i}")
        if i != order[-1]: a("s_branch L_event")
    lab("L_event")
    if emu: a(f"s_cmp_eq_u32 s{sCnt}, 64"); a("s_cbranch_scc1 L_h3")
    a(f"s_lshl_b32 s50, s{sN}, 1"); a(f"s_cmp_eq_u32 s{sCnt}, s50")
    if hs: a("s_cselect_b32 s92, 0, s92")
    a("s_cbranch_scc1 " + ("L_half" if shalf else "L_ldfin"))
    a(f"s_cmp_lg_u32 s{sCnt}, s{sN}"); a("s_cbranch_scc1 L_nosw")
    cm("K is done, go on with V (the second workgroup, one round behind by now, starts at round 1 to stay beside the first)")
    a("s_add_u32 s20, s8, s45"); a("s_addc_u32 s21, s9, 0")
    a(f"s_lshl_b32 s{sK}, s{sMem}, {lowR}"); a(f"s_or_b32 s{sK}, s{sK}, s48")
    v_offset()
    for j in range(1, 4): a(f"v_add_u32 v{vOff[j]}, {B(j) - 1024*j}, v{vOff[0]}")
    lab("L_nosw")
    if cp:
        cm("load balance: eight workgroups count themselves in at each check, the others read the count; the later a workgroup came, the more it keeps in flight")
        a(f"s_cmp_lg_u32 s{sCnt}, s92"); a("s_cbranch_scc1 L_noapply")
        a("s_waitcnt lgkmcnt(0)")
        if R == 32:
            word = sum(v << (4 * i) for i, v in enumerate(lm))
            a("s_min_u32 s93, s93, 7"); a("s_lshl_b32 s93, s93, 2")
            a(f"s_lshr_b32 s93, {word:#x}, s93"); a("s_and_b32 s88, s93, 15")
            lab("L_noapply")
            a(f"s_bitcmp1_b64 s[86:87], s{sCnt}"); a("s_cbranch_scc0 L_nocp")
            a("s_and_b32 s50, s89, 15"); a("s_lshl_b32 s50, s50, 9"); a("s_add_u32 s50, s50, s91")
            a("s_add_u32 s66, s52, s50"); a("s_addc_u32 s67, s53, 0")
            a("s_mov_b32 s93, 1"); a("s_atomic_add s93, s[66:67], 0 glc")
            a("s_add_u32 s91, s91, 8192"); a("s_add_u32 s89, s89, s90"); a(f"s_add_u32 s92, s{sCnt}, 1")
        else:
            per = 32 // R
            rm = [int(ch) for ch in str(rmap).zfill(9)]
            w1 = sum(v << (3 * i) for i, v in enumerate(lm + lm[-1:])); w2 = sum(v << (3 * i) for i, v in enumerate(rm))
            a("s_min_u32 s93, s93, 8"); a("s_mul_i32 s93, s93, 3")
            a("s_lshr_b32 s93, s94, s93"); a("s_and_b32 s88, s93, 7")
            lab("L_noapply")
            a(f"s_bitcmp1_b64 s[86:87], s{sCnt}"); a("s_cbranch_scc0 L_nocp")
            a(f"s_and_b32 s50, s89, {32 - per}"); a(f"s_lshl_b32 s50, s50, {8 - (per.bit_length() - 1)}"); a("s_add_u32 s50, s50, s91")
            a("s_add_u32 s66, s52, s50"); a("s_addc_u32 s67, s53, 0")
            a(f"s_add_u32 s91, s91, {256 * R}"); a(f"s_add_u32 s92, s{sCnt}, 1")
            a(f"s_and_b32 s50, s89, {per - 1}"); a("s_cbranch_scc1 L_reader")
            def pick(w, m2, n):
                a(f"s_mov_b32 s94, {w:#x}")
                if LATE:
                    d = [int(ch) for ch in str(m2).zfill(n)]; d = (d + d[-1:])[:9]
                    a(f"s_cmp_ge_u32 s{sCnt}, {LATE}"); a(f"s_cselect_b32 s94, {sum(v << (3 * i) for i, v in enumerate(d)):#x}, s94")
            a("s_mov_b32 s93, 1"); a("s_atomic_add s93, s[66:67], 0 glc"); pick(w1, lmap2, 8)
            a("s_branch L_rot")
            lab("L_reader")
            a("s_load_dword s93, s[66:67], 0 glc"); pick(w2, rmap2, 9)
            lab("L_rot")
            a("s_add_u32 s89, s89, s90")
        lab("L_nocp")
    if gate != "":
        gw = sum(int(ch) << (4 * i) for i, ch in enumerate(str(gate).zfill(len(lv) - 1)))
        a("s_lshl_b32 s50, s88, 2"); a(f"s_lshr_b32 s50, {gw:#x}, s50"); a("s_and_b32 s50, s50, 15"); a(f"s_add_u32 s50, s50, s{sCnt}")
        a(f"s_mul_i32 s50, s50, s{sMem}")
    else: a(f"s_mul_i32 s50, s{sCnt}, s{sMem}")
    a(f"s_cmp_ge_u32 s50, {SP}"); a("s_cbranch_scc1 " + ("L_spr" if hs else f"L_lv{len(lv) - 1}"))
    if SP2: a(f"s_cmp_ge_u32 s50, {SP2}"); a(f"s_cbranch_scc1 L_lv{len(lv) - 2}")
    for i in [x for x in range(len(lv)) if x != start and str(x) in (str(lmap).zfill(8) + str(rmap).zfill(9) + str(lmap2) + str(rmap2))]:
        a(f"s_cmp_eq_u32 s88, {i}"); a(f"s_cbranch_scc1 L_lv{i}")
    a(f"s_branch L_lv{start}")
    if hs:
        lab("L_hret")
        a("s_sub_u32 s92, s92, 1"); a("s_cbranch_scc1 L_h2")
        a("s_bitcmp1_b32 s92, 0"); a("s_cbranch_scc0 L_sprn")
        a(f"s_add_u32 s46, s46, {B(16)}"); a(f"s_add_u32 s{sBuf}, s{sBuf}, {RB // 2}")
        a("s_branch L_half")
        lab("L_sprn")
        if st4: a("s_memrealtime s[70:71]")
        a("s_barrier")
        if st4:
            a("s_memrealtime s[72:73]")
            a("s_waitcnt lgkmcnt(0)"); a("s_mov_b32 m0, s74"); a("s_add_u32 s74, s74, 1")
            a("v_writelane_b32 v20, s70, m0"); a("v_writelane_b32 v21, s72, m0")
        a(f"s_add_u32 s{sBuf}, s{sBuf}, {RB // 2}")
        a(f"s_cmp_eq_u32 s{sBuf}, {3*RB}"); a(f"s_cselect_b32 s{sBuf}, 0, s{sBuf}")
        a(f"s_or_b32 s{sK}, s{sK}, {(~maskR) & 0xffffffff:#x}"); a(f"s_add_u32 s{sK}, s{sK}, 1"); a(f"s_and_b32 s{sK}, s{sK}, {maskR:#x}")
        a(f"s_or_b32 s{sK}, s{sK}, s48")
        a("s_cmp_eq_u32 s92, 0"); a(f"s_cselect_b32 s46, s91, s{sK}")
        a("s_branch L_half")
        lab("L_spr")
        a("s_mov_b32 s91, s46"); a(f"s_mov_b32 s46, s{sK}")
        a(f"s_sub_u32 s92, 64, s{sCnt}"); a("s_lshl_b32 s92, s92, 1")
        a("s_branch L_half")
    if not shalf: lab("L_ldfin")
    if LH0:
        a(f"s_cmp_lg_u32 s{sMem}, 0"); a("s_cbranch_scc1 L_h1")
        half(float(LH0))
        a("s_branch L_h2")
        lab("L_h1")
    if not shalf: half(float(LH))
    lab("L_h2")
    if help:
        tiles = [(1 << mbit) + B(8*t) for t in range(4)] + [maskR + B(16) + B(8*t) for t in range(2)]
        h0, h1, h2 = [[int(ch) for ch in x] for x in str(help).split("-")]
        a(f"s_cmp_lg_u32 s{sMem}, 0"); a("s_cbranch_scc1 L_nohelp")
        cm("first workgroup: pull the second one's last tiles into the L2 the two normally share (speed only)")
        a(f"v_and_b32 v50, 7, v{vLane}"); a("v_lshlrev_b32 v50, 7, v50")
        for i in range(3): a(f"v_bfe_u32 v51, v{vLane}, {3+i}, 1"); a(f"v_lshl_add_u32 v50, v51, {jb[i]}, v50")
        def pf(ts):
            for t in ts: a(f"s_mov_b32 s50, {tiles[t]}"); a(f"buffer_load_dword v{52+t}, v50, {SS}, s50 offen {hfl}")
        if h0: a("s_waitcnt vmcnt(24)")
        pf(h0)
        a(f"s_waitcnt vmcnt({16 + len(h0)})"); a("s_barrier")
        pf(h1)
        a(f"s_waitcnt vmcnt({len(h0) + len(h1)})"); a("s_barrier")
        pf(h2)
        a("s_barrier")
        if stamp: a("s_branch L_lst")
        else: a("s_endpgm")
        lab("L_nohelp")
    a(f"s_waitcnt vmcnt({24 if emu else 16})"); a("s_barrier")
    if emu: lab("L_h3")
    a("s_waitcnt vmcnt(0)")
    if st4: a("s_memrealtime s[80:81]")
    a("s_barrier")
    if st4:
        a("s_memrealtime s[82:83]"); a("s_waitcnt lgkmcnt(0)")
        for i, r in enumerate((54, 76, 78, 80, 82)): a(f"v_writelane_b32 v22, s{r}, {i}")
        a("s_lshl_b32 s50, s2, 10"); a("s_add_u32 s50, s50, 0x200000")
        a(f"v_lshl_add_u32 v4, v{vLane}, 2, s50")
        a("global_store_dword v4, v20, s[52:53]"); a("global_store_dword v4, v21, s[52:53] offset:256"); a("global_store_dword v4, v22, s[52:53] offset:512")
    if help: lab("L_lst")
    if stamp: stamp_out()
    a("s_endpgm")

    L.append(".p2align 6")
    lab("L_cons")
    cm("=============== consumers")
    ids()
    a(f"s_sub_u32 s{sW}, s3, 1")
    a(f"v_lshrrev_b32 v{vH}, 5, v{vLane}")
    a(f"v_and_b32 v{vR}, 31, v{vLane}")
    a(f"s_lshl_b32 s{sMy}, s{sMem}, 3"); a(f"s_xor_b32 s{sOt}, s{sMy}, 8")
    if adj: a(f"s_mul_i32 s50, s{sPair}, {PS}"); a(f"s_add_u32 s50, s50, {W_DATA + 18432}")
    else: a(f"s_lshl_b32 s50, s{sPair}, 8"); a(f"s_add_u32 s50, s50, {W_WORD}")
    a(f"s_cmp_lg_u32 s{sW}, 3")
    a("s_waitcnt lgkmcnt(0)")
    a("s_cbranch_scc1 L_noq")
    cm("wave 4 clears this workgroup's share of the arrival counters")
    a("s_lshl_b32 s45, s2, 8")
    if cp:
        a(f"s_add_u32 s45, s45, {W_RANK}")
        a(f"v_lshl_add_u32 v{vT}, v{vLane}, 16, s45"); a(f"v_mov_b32 v{vU}, 0")
        if R * len(cp) < 256: a(f"s_cmp_ge_u32 s2, {R * len(cp)}"); a("s_cbranch_scc1 L_noq")
        a(f"s_cmp_lt_u32 s2, {max(0, R * len(cp) - 256)}"); a("s_cselect_b32 exec_lo, 3, 1"); a("s_mov_b32 exec_hi, 0")
        a(f"global_store_dword v{vT}, v{vU}, s[52:53] sc1")
        a("s_mov_b64 exec, -1")
    lab("L_noq")
    a("s_add_u32 s66, s52, s50"); a("s_addc_u32 s67, s53, 0")
    a(f"s_cmp_lg_u32 s{sW}, 4"); a("s_cbranch_scc1 L_nohs")
    a(f"s_lshl_b32 s{sSnap}, 1, s{sMy}"); a(f"s_atomic_xor s{sSnap}, s[66:67], 0 glc")
    lab("L_nohs")
    cm("LDS read addresses for K-shaped tiles: r*256 + ((h ^ (r&15)) ^ 2s)*16, first pointing at Q")
    a(f"v_and_b32 v{vT}, 15, v{vR}")
    a(f"v_xor_b32 v{vT}, v{vT}, v{vH}")
    a(f"v_lshlrev_b32 v{vT}, 4, v{vT}")
    a(f"v_lshl_add_u32 v{vT}, v{vR}, 8, v{vT}")
    a(f"v_add_u32 v{vKrd[0]}, {L_Q}, v{vT}")
    for s in range(1, 8): a(f"v_xor_b32 v{vKrd[s]}, {32*s}, v{vKrd[0]}")
    cm("transposing V reads of column block w: row = 4h + r', chunk = (4w + 2gg + (c>>1)) ^ 4r', + 8*(c&1)")
    a(f"v_bfe_u32 v{vU}, v{vLane}, 2, 2")
    a(f"v_lshl_add_u32 v{vT}, v{vH}, 2, v{vU}")
    a(f"v_lshlrev_b32 v{vVa}, 8, v{vT}")
    a(f"v_xor_b32 v{vU}, s{sW}, v{vU}"); a(f"v_and_b32 v{vU}, 3, v{vU}")
    a(f"v_lshl_add_u32 v{vVa}, v{vU}, 6, v{vVa}")
    a(f"v_and_b32 v{vU}, 3, v{vLane}")
    a(f"v_lshl_add_u32 v{vVa}, v{vU}, 3, v{vVa}")
    a(f"v_and_b32 v{vU}, 16, v{vLane}")
    a(f"v_lshl_add_u32 v{vVa}, v{vU}, 1, v{vVa}")
    a(f"v_lshlrev_b32 v{vPa}, 4, v{vLane}"); a(f"v_add_u32 v{vPa}, {L_PS}, v{vPa}")
    a(f"v_mov_b32 v{vZ}, 0")
    a(f"v_lshlrev_b32 v{vMla}, 3, v{vR}"); a(f"v_add_u32 v{vMla}, {L_ML}, v{vMla}")
    a(f"s_mov_b32 s{sBase}, {L_Q}"); a(f"s_mov_b32 s{sC}, {f32(c)}"); a(f"s_add_u32 s{sCnt}, s{sMem}, 32")
    a(f"s_add_u32 s{sWo}, s{sW}, 2"); a(f"s_sub_u32 s50, s{sWo}, 7"); a(f"s_cselect_b32 s{sWo}, s{sWo}, s50")
    a(f"s_mov_b32 s{sBuf}, 0"); a(f"s_mov_b32 s{sJ}, s{sWo}"); a(f"s_mov_b32 s{sSlot}, 0"); a(f"s_mov_b32 s{sSt}, 0")
    a(f"s_mov_b32 s{sLim}, 1"); a(f"s_mov_b32 s{sStep}, 5")
    a(f"s_mul_i32 s50, s{sW}, {19*128}"); a(f"s_add_u32 s50, s50, {L_MI}")
    a(f"v_lshl_add_u32 v{vMIa}, v{vR}, 2, s50")
    a(f"v_mov_b32 v{vL}, 0"); a(f"v_mov_b32 v{vM}, {f32(-3.0e38)}"); a(f"v_mov_b32 v{vMC}, v{vM}")
    a(f"s_mul_i32 s50, s{sPair}, {PS}"); a(f"s_mul_i32 s51, s{sW}, 4608"); a("s_add_u32 s50, s50, s51"); a(f"s_add_u32 s50, s50, {W_DATA}")
    a("s_add_u32 s24, s52, s50"); a("s_addc_u32 s25, s53, 0"); a("s_movk_i32 s26, 4608"); a("s_mov_b32 s27, 0x20000")
    a("s_mov_b32 s32, s16"); a("s_mov_b32 s33, s17"); a("s_mov_b32 s34, 0x100000"); a("s_mov_b32 s35, 0x20000")
    a(f"s_lshl_b32 s50, s{sPair}, 13"); a(f"s_lshl_b32 s51, s{sW}, 6"); a("s_add_u32 s69, s50, s51")
    a("s_barrier")
    if calp == 1: a("s_memrealtime s[72:73]")
    for s in range(8): a(f"ds_read_b128 {vr(Q0 + 4*s, 4)}, v{vKrd[s]}")
    a("s_waitcnt lgkmcnt(0)")
    a("s_branch L_kgo")
    lab("L_kr")
    a("s_barrier")
    lab("L_kgo")
    a(f"s_cmp_gt_u32 s{sJ}, s{sLim}"); a("s_cbranch_scc1 L_kidle")
    a(f"s_lshl_b32 s50, s{sJ}, 13"); a(f"s_add_u32 s50, s50, s{sBuf}")
    a(f"s_mov_b32 s{sCur}, s{sSlot}"); a(f"s_add_u32 s{sSlot}, s{sSlot}, 8")
    lab("L_ktile")
    a(f"s_sub_u32 s51, s50, s{sBase}"); a(f"s_mov_b32 s{sBase}, s50")
    for s in range(8):
        a(f"v_add_u32 v{vKrd[s]}, s51, v{vKrd[s]}")
        a(f"ds_read_b128 {vr(KF + 4*s, 4)}, v{vKrd[s]}")
    a(f"s_lshl_b32 s50, s{sCur}, 4")
    a(f"v_add_u32 v{vTmp[1]}, s50, v{vMIa}")
    a(f"s_cmp_gt_u32 s{sJ}, 3")
    a("s_waitcnt lgkmcnt(7)")
    a("s_cbranch_scc1 L_kbias")
    a(f"v_mfma_f32_32x32x16_bf16 {vr(S0, 16)}, {vr(KF, 4)}, {vr(Q0, 4)}, 0")
    lab("L_k1")
    for s in range(1, 8):
        a(f"s_waitcnt lgkmcnt({7-s})")
        a(f"v_mfma_f32_32x32x16_bf16 {vr(S0, 16)}, {vr(KF + 4*s, 4)}, {vr(Q0 + 4*s, 4)}, {vr(S0, 16)}")
    a("s_nop 11")
    cm("online softmax; the reference is the running maximum rounded up to a whole power of two")
    a(f"v_max3_f32 v{vT}, v{S0}, v{S0+1}, v{vM}")
    a(f"v_max3_f32 v{vU}, v{S0+2}, v{S0+3}, v{S0+4}")
    for j in range(5, 15, 4):
        a(f"v_max3_f32 v{vT}, v{S0+j}, v{S0+j+1}, v{vT}")
        if j + 3 < 15: a(f"v_max3_f32 v{vU}, v{S0+j+2}, v{S0+j+3}, v{vU}")
    a(f"v_max3_f32 v{vT}, v{S0+15}, v{vU}, v{vT}")
    a(f"v_mov_b32 v{vU}, v{vT}")
    a("s_nop 1")
    a(f"v_permlane32_swap_b32 v{vT}, v{vU}")
    a(f"v_max_f32 v{vM}, v{vT}, v{vU}")
    a(f"v_mul_f32 v{vT}, s{sC}, v{vM}")
    a(f"v_ceil_f32 v{vT}, v{vT}")
    a(f"v_sub_f32 v{vAL}, v{vMC}, v{vT}")
    a(f"v_mov_b32 v{vMC}, v{vT}")
    a(f"ds_write_b32 v{vTmp[1]}, v{vT}")
    a(f"v_exp_f32 v{vAL}, v{vAL}")
    for j in range(16): a(f"v_fma_f32 v{S0+j}, v{S0+j}, s{sC}, -v{vMC}")
    for j in range(16): a(f"v_exp_f32 v{S0+j}, v{S0+j}")
    a(f"v_mul_f32 v{vL}, v{vL}, v{vAL}")
    a(f"s_set_gpr_idx_on s{sCur}, gpr_idx(DST)"); a("s_mov_b32 s50, 0x3f803f80")
    for j in range(8): a(f"v_cvt_pk_bf16_f32 v{PB+j}, v{S0+2*j}, v{S0+2*j+1}")
    a(f"s_set_gpr_idx_on s{sCur}, gpr_idx(SRC0)"); a("s_nop 0")
    for j in range(8): a(f"v_dot2_f32_bf16 v{vL}, v{PB+j}, s50, v{vL}")
    a("s_set_gpr_idx_off")
    lab("L_knext")
    a(f"s_add_u32 s{sJ}, s{sJ}, s{sStep}"); a(f"s_sub_u32 s50, s{sJ}, 7"); a(f"s_cselect_b32 s{sJ}, s{sJ}, s50")
    a(f"s_mov_b32 s{sLim}, 3"); a(f"s_mov_b32 s{sStep}, 3")
    nextbuf()
    a(f"s_sub_u32 s{sCnt}, s{sCnt}, 1"); a(f"s_cmp_lg_u32 s{sCnt}, 0"); a("s_cbranch_scc1 L_kr")

    cm("=============== between K and V: common reference M and sum L of this workgroup")
    a(f"v_mov_b32 v{vU}, v{vL}")
    a(f"s_lshl_b32 s50, s{sW}, 8")
    a(f"v_add_u32 v{vT}, s50, v{vMla}")
    a(f"v_permlane32_swap_b32 v{vL}, v{vU}")
    a(f"v_add_f32 v{vL}, v{vL}, v{vU}")
    a(f"ds_write_b64 v{vT}, {vr(vMC, 2)}")
    for j in range(0, 16, 2): a(f"v_mov_b64 {vr(O0+j, 2)}, 0")
    a(f"s_lshl_b32 s{sT0}, s{sMem}, 2"); a(f"s_add_u32 s{sT0}, s{sT0}, 2")
    if emu: a(f"s_mov_b32 s{sCnt}, 32")
    else: a(f"s_add_u32 s{sCnt}, s{sMem}, 32")
    a(f"s_mov_b32 s{sBase}, 0")
    a(f"s_sub_u32 s{sSlot}, s{sMem}, 1")
    a("s_waitcnt lgkmcnt(0)")
    a("s_barrier")
    if calp == 2: a("s_memrealtime s[72:73]")
    for k in range(7): a(f"ds_read_b32 v{KF + k}, v{vMla} offset:{256*k}")
    cm("wave 6 of the first workgroup stages the tree tile's probabilities (slot 18) now; it owns no tile of the first V round")
    a(f"s_mov_b32 s{sCur}, {18*8}"); a(f"s_mov_b32 s50, {L_TP - L_PS}")
    a(f"s_add_u32 s51, s{sW}, s{sMy}"); a("s_cmp_eq_u32 s51, 5")
    a("s_waitcnt lgkmcnt(0)")
    a(f"v_max3_f32 v{vMC}, v{KF}, v{KF+1}, v{KF+2}"); a(f"v_max3_f32 v{vMC}, v{vMC}, v{KF+3}, v{KF+4}"); a(f"v_max3_f32 v{vMC}, v{vMC}, v{KF+5}, v{KF+6}")
    a("s_cbranch_scc1 L_dump")
    lab("L_stage")
    cm("stage my tile of the coming round (tiles t0 .. t0+3; the closing half round is tiles 0, 1), if I own one")
    a(f"s_cmp_eq_u32 s{sCnt}, 1"); a(f"s_cselect_b32 s{sT0}, 0, s{sT0}"); a(f"s_cselect_b32 s{sLim}, 1, 3")
    a(f"s_add_u32 s50, s{sT0}, 6"); a(f"s_sub_u32 s50, s50, s{sWo}")
    a("s_mul_i32 s50, s50, 9363"); a("s_lshr_b32 s50, s50, 16")
    a(f"s_lshl_b32 s{sCur}, s50, 3")
    a(f"s_sub_u32 s50, s{sCur}, s50"); a(f"s_add_u32 s50, s50, s{sWo}"); a(f"s_sub_u32 s50, s50, s{sT0}")
    a(f"s_cmp_gt_u32 s50, s{sLim}"); a("s_cbranch_scc1 L_vnext")
    a(f"s_lshl_b32 s50, s50, 11"); a(f"s_add_u32 s50, s50, s{sBase}")
    lab("L_dump")
    a(f"s_lshl_b32 s51, s{sCur}, 4")
    a(f"v_add_u32 v{vT}, s51, v{vMIa}")
    a(f"ds_read_b32 v{vT}, v{vT}")
    a(f"v_add_u32 v{vU}, s50, v{vPa}")
    a("s_waitcnt lgkmcnt(0)")
    a(f"v_sub_f32 v{vT}, v{vMC}, v{vT}")
    a(f"v_min_f32 v{vT}, {f32(255.0)}, v{vT}")
    a(f"v_cvt_u32_f32 v{vT}, v{vT}")
    a(f"v_mul_u32_u24 v{vT}, 0x800080, v{vT}")
    a(f"s_set_gpr_idx_on s{sCur}, gpr_idx(SRC0)"); a("s_nop 0")
    for j in range(8): a(f"v_pk_sub_u16 v{DT+j}, v{PB+j}, v{vT} clamp")
    a("s_set_gpr_idx_off")
    a(f"ds_write_b128 v{vU}, {vr(DT, 4)}"); a(f"ds_write_b128 v{vU}, {vr(DT+4, 4)} offset:1024")
    lab("L_vnext")
    a(f"s_add_u32 s{sT0}, s{sT0}, 4"); a(f"s_cmp_eq_u32 s{sT0}, 130"); a(f"s_cselect_b32 s{sT0}, 2, s{sT0}")
    a(f"v_add_u32 v{vT}, s{sBuf}, v{vVa}"); a(f"v_add_u32 v{vU}, s{sBase}, v{vPa}")
    a(f"s_xor_b32 s{sBase}, s{sBase}, 8192")
    nextbuf()
    a(f"s_sub_u32 s{sCnt}, s{sCnt}, 1")
    a(f"s_cmp_gt_u32 s{sW}, 3")
    a("s_waitcnt lgkmcnt(0)")
    a("s_cbranch_scc1 L_vside")
    a(f"s_cmp_eq_u32 s{sCnt}, s{sSlot}"); a("s_cbranch_scc1 L_close")
    a(f"s_cmp_eq_u32 s{sCnt}, 0")
    if st6:
        a("s_memrealtime s[74:75]")
    a("s_barrier")
    if st6:
        a("s_memrealtime s[76:77]")
    lab("L_vbody")
    def vreads(t):
        for u in range(2):
            for z in range(2): a(f"ds_read_b64_tr_b16 {vr(VF + 8*t + 4*u + 2*z, 2)}, v{vT} offset:{8192*t + 4096*u + 2048*z}")
    def preads(t):
        for u in range(2): a(f"ds_read_b128 {vr(PF + 8*t + 4*u, 4)}, v{vU} offset:{2048*t + 1024*u}")
    def pvm(t):
        for u in range(2): a(f"v_mfma_f32_32x32x16_bf16 {vr(O0, 16)}, {vr(VF + 8*t + 4*u, 4)}, {vr(PF + 8*t + 4*u, 4)}, {vr(O0, 16)}")
    preads(0); vreads(0); preads(1); vreads(1)
    a("s_waitcnt lgkmcnt(6)"); pvm(0)
    a("s_cbranch_scc1 L_last")
    preads(2); vreads(2)
    a("s_waitcnt lgkmcnt(6)"); pvm(1)
    preads(3); vreads(3)
    a("s_waitcnt lgkmcnt(6)"); pvm(2)
    a(f"s_cmp_eq_u32 s{sCnt}, 20")
    a("s_waitcnt lgkmcnt(0)"); pvm(3)
    a("s_cbranch_scc0 L_stage")
    cm("once: the sum L; the tree tile (keys 0..15 only)")
    for k in range(7): a(f"ds_read_b64 {vr(KF + 2*k, 2)}, v{vMla} offset:{256*k}")
    a(f"v_add_u32 v{vT}, {L_TV}, v{vVa}")
    a(f"ds_read_b128 {vr(PF, 4)}, v{vPa} offset:{L_TP - L_PS}")
    for z in range(2): a(f"ds_read_b64_tr_b16 {vr(PF + 4 + 2*z, 2)}, v{vT} offset:{2048*z}")
    a(f"s_cmp_lg_u32 s{sMem}, 0")
    a("s_waitcnt lgkmcnt(0)")
    for k in range(7): a(f"v_sub_f32 v{KF+2*k}, v{KF+2*k}, v{vMC}")
    for k in range(7): a(f"v_exp_f32 v{KF+2*k}, v{KF+2*k}")
    a(f"v_mul_f32 v{vL}, v{KF}, v{KF+1}")
    for k in range(1, 7): a(f"v_fma_f32 v{vL}, v{KF+2*k}, v{KF+2*k+1}, v{vL}")
    a("s_cbranch_scc1 L_stage")
    a(f"v_mfma_f32_32x32x16_bf16 {vr(O0, 16)}, {vr(PF + 4, 4)}, {vr(PF, 4)}, {vr(O0, 16)}")
    a("s_branch L_stage")

    lab("L_last")
    cm("=============== closing half round and hand-off")
    if calp == 3: a("s_memrealtime s[72:73]")
    PP, PM = 120, 136
    def addrs(r): a(f"v_lshlrev_b32 v{r}, 4, v{vLane}"); a(f"v_lshlrev_b32 v{r+1}, 3, v{vLane}"); a(f"v_add_u32 v{r+1}, 4096, v{r+1}")
    def fetch(r):
        a(f"buffer_load_dwordx2 {vr(PM, 2)}, v{r+1}, {SD}, 0 offen {hlf}")
        for x in range(4 - halfx): a(f"buffer_load_dwordx4 {vr(PP + 4*x, 4)}, v{r}, {SD}, 0 offen offset:{1024*x} {hlf}")
    addrs(DT + 2)
    a(f"s_cmp_lg_u32 s{sMem}, 0")
    a("s_waitcnt lgkmcnt(0)"); pvm(1)
    a("s_cbranch_scc1 L_merge")
    cm("first workgroup: publish, then raise the flag")
    a(f"buffer_store_dwordx2 {vr(vMC, 2)}, v{DT+3}, {SD}, 0 offen {hsf}")
    a("s_nop 9")
    for x in range(4 - halfx): a(f"buffer_store_dwordx4 {vr(O0 + 4*x, 4)}, v{DT+2}, {SD}, 0 offen offset:{1024*x} {hsf}")
    st(3)
    a("s_mov_b32 s50, 8")
    a(f"s_cmp_lg_u32 s{sW}, 0")
    a("s_waitcnt vmcnt(0)")
    st(4)
    a("s_barrier")
    st(5)
    a("s_cbranch_scc1 L_done")
    a("s_atomic_xor s50, s[66:67], 0")
    a("s_branch L_done")
    lab("L_close")
    cm("second workgroup: the closing rendezvous also waits for wave 5 to have seen the flag; fetch the other result first")
    addrs(DT + 2)
    st(1)
    a("s_barrier")
    st(2)
    if calp == 5: a("s_memrealtime s[76:77]")
    if reh: lab("L_fetch")
    fetch(DT + 2)
    a("s_branch L_vbody")
    lab("L_merge")
    st(3); st(4)
    a(f"v_lshlrev_b32 v{DT+4}, 8, v{vR}"); a(f"v_lshl_add_u32 v{DT+4}, v{vH}, 4, v{DT+4}")
    FA, FB = 138, 140
    a(f"s_waitcnt vmcnt({0 if halfx else 4})")
    a(f"v_max_f32 v{vT}, v{vMC}, v{PM}")
    a(f"v_sub_f32 v{FA}, v{vMC}, v{vT}"); a(f"v_sub_f32 v{FB}, v{PM}, v{vT}")
    a(f"v_exp_f32 v{FA}, v{FA}"); a(f"v_exp_f32 v{FB}, v{FB}")
    a(f"v_mul_f32 v{vT}, v{FA}, v{vL}")
    a(f"v_fma_f32 v{vT}, v{FB}, v{PM+1}, v{vT}")
    a(f"v_rcp_f32 v{vT}, v{vT}")
    a("s_nop 0")
    a(f"v_mul_f32 v{FA}, v{FA}, v{vT}"); a(f"v_mul_f32 v{FB}, v{FB}, v{vT}")
    for j in range(8): a(f"v_pk_mul_f32 {vr(O0+2*j, 2)}, {vr(O0+2*j, 2)}, {vr(FA, 2)} op_sel_hi:[1,0]")
    for b in range(2):
        a(f"s_waitcnt vmcnt({2 if b == 0 else 1})")
        if b == 1: st(5)
        for j in range(4*b, 4*b + 4): a(f"v_pk_fma_f32 {vr(O0+2*j, 2)}, {vr(PP+2*j, 2)}, {vr(FB, 2)}, {vr(O0+2*j, 2)} op_sel_hi:[1,0,1]")
        for j in (0, 2, 1, 3): a(f"v_cvt_pk_bf16_f32 v{KF+4*b+j}, v{O0+8*b+2*j}, v{O0+8*b+2*j+1}")
        a(f"v_permlane32_swap_b32 v{KF+4*b}, v{KF+4*b+2}"); a("s_nop 0"); a(f"v_permlane32_swap_b32 v{KF+4*b+1}, v{KF+4*b+3}")
        a(f"buffer_store_dwordx4 {vr(KF+4*b, 4)}, v{DT+4}, {SO}, s69 offen offset:{32*b} {ofl}")
    st(6)
    if reh: a(f"s_cmp_eq_u32 s{sW}, 6"); a("s_cbranch_scc1 L_stage")
    lab("L_done")
    if st6:
        a("s_waitcnt vmcnt(0)"); a("s_memrealtime s[86:87]"); a("s_waitcnt lgkmcnt(0)")
        a(f"s_lshl_b32 s50, s{sMem}, 2"); a("v_mov_b32 v20, s50")
        for i in range(1, 8): a(f"v_writelane_b32 v20, s{72+2*i}, {i}")
        a("s_lshl_b32 s50, s2, 2"); a(f"s_add_u32 s50, s50, s{sW}"); a("s_lshl_b32 s50, s50, 8"); a("s_add_u32 s50, s50, 0x200000")
        a(f"v_lshl_add_u32 v21, v{vLane}, 2, s50")
        a("global_store_dword v21, v20, s[52:53]")
    if cal:
        a(f"s_mov_b32 s74, {cal}")
        if calp >= 4: a("s_waitcnt vmcnt(0)"); a("s_memrealtime s[72:73]")
        if calp == 5:
            a("s_waitcnt lgkmcnt(0)"); a("s_sub_u32 s72, s72, s76"); a(f"s_mul_i32 s72, s72, s{sMem}")
            a("s_mul_i32 s72, s72, 20"); a("s_add_u32 s74, s74, s72"); a("s_min_u32 s74, s74, 30000")
        elif calp:
            a("s_waitcnt lgkmcnt(0)"); a("s_sub_u32 s72, s72, s54"); a(f"s_sub_u32 s72, s72, {(0, 0, 3000, 6500, 6500)[calp]}")
            a("s_mul_i32 s72, s72, 5"); a("s_add_u32 s74, s74, s72"); a("s_min_u32 s74, s74, 30000")
        lab("L_cal")
        a("s_memrealtime s[56:57]"); a("s_waitcnt lgkmcnt(0)"); a("s_sub_u32 s56, s56, s54"); a(f"s_cmp_lt_u32 s56, s74"); a("s_cbranch_scc1 L_cal")
    if stamp: stamp_out()
    lab("L_end")
    a("s_endpgm")

    if reh:
        lab("L_reh")
        cm("wave 7 of the second workgroup runs the closing code once ahead of time, through empty descriptors, so that it is in the instruction cache")
        a("s_mov_b32 s26, 0"); a("s_mov_b32 s34, 0")
        addrs(DT + 2)
        a("s_branch L_fetch")
    lab("L_vside")
    cm("waves 5..7 only stage")
    a(f"s_cmp_eq_u32 s{sCnt}, 0"); a("s_cbranch_scc1 L_end")
    a("s_barrier")
    if reh:
        a(f"s_lshl_b32 s50, s{sCnt}, 4"); a(f"s_add_u32 s50, s50, s{sW}"); a(f"s_add_u32 s50, s50, s{sMy}")
        a(f"s_cmp_eq_u32 s50, {reh * 16 + 14}"); a("s_cbranch_scc1 L_reh")
    a(f"s_cmp_lg_u32 s{sW}, 4"); a("s_cbranch_scc1 L_stage")
    a(f"s_cmp_eq_u32 s{sCnt}, 24"); a("s_cbranch_scc1 L_hsfin")
    a(f"s_cmp_lg_u32 s{sCnt}, s{sMem}"); a("s_cbranch_scc1 L_stage")
    cm("wave 5 of the second workgroup owns no tile of the closing half round: it watches the word")
    a(f"s_mov_b32 s71, {BOUND}")
    lab("L_poll")
    a(f"global_load_dword v{vU}, v{vZ}, s[66:67] sc1")
    a("s_sub_u32 s71, s71, 1"); a("s_cbranch_scc1 L_seen")
    a("s_waitcnt vmcnt(0)")
    a(f"v_readfirstlane_b32 s50, v{vU}")
    a(f"s_xor_b32 s50, s50, s{sSnap}")
    a("s_bitcmp1_b32 s50, 3"); a("s_cbranch_scc0 L_poll")
    lab("L_seen")
    a("s_barrier")
    a("s_endpgm")

    cm("=============== out-of-line pieces of the K phase")
    lab("L_kbias")
    a(f"v_mfma_f32_32x32x16_bf16 {vr(S0, 16)}, {vr(KF, 4)}, {vr(Q0, 4)}, {vr(S0, 16)}")
    a("s_branch L_k1")
    lab("L_kidle")
    a(f"s_cmp_eq_u32 s{sW}, 4"); a("s_cbranch_scc1 L_hs")
    a(f"s_add_u32 s50, s{sW}, s{sMy}"); a("s_cmp_lg_u32 s50, 5"); a("s_cbranch_scc1 L_knext")
    a(f"s_cmp_eq_u32 s{sCnt}, 31"); a("s_cbranch_scc1 L_tree1")
    a(f"s_cmp_lg_u32 s{sCnt}, 29"); a("s_cbranch_scc1 L_knext")
    cm("tree tokens, step 2: score bias (1-mask) * -1e9 / scale, then the ordinary tile code")
    big = 1e9 * math.sqrt(128)
    TM = PB + 18 * 8
    a(f"s_mov_b32 s51, {f32(big)}")
    a(f"v_mov_b32 v{vU}, {f32(-big)}")
    for j in range(8, 16): a(f"v_mov_b32 v{S0+j}, 0xff800000")
    a("s_waitcnt vmcnt(0)")
    for j in range(4):
        a(f"v_lshlrev_b32 v{S0+2*j}, 16, v{TM+j}"); a(f"v_and_b32 v{S0+2*j+1}, 0xffff0000, v{TM+j}")
    for j in range(8): a(f"v_fma_f32 v{S0+j}, v{S0+j}, s51, v{vU}")
    a(f"s_mov_b32 s{sCur}, {18*8}"); a(f"s_mov_b32 s50, {L_TK}")
    a("s_branch L_ktile")
    lab("L_tree1")
    cm("tree tokens, step 1 (wave 6 of the first workgroup): K/V -> LDS, mask -> registers")
    k_offsets()
    a(f"s_lshl_b32 s45, s{sPair}, 12"); a("s_movk_i32 s51, 4096")
    a("s_add_u32 s20, s10, s45"); a("s_addc_u32 s21, s11, 0"); a("s_mov_b32 s22, 4096"); a("s_mov_b32 s23, 0x20000")
    a(f"s_mov_b32 m0, {L_TK}")
    a("s_add_u32 s28, s12, s45"); a("s_addc_u32 s29, s13, 0"); a("s_mov_b32 s30, 4096"); a("s_mov_b32 s31, 0x20000")
    for j in range(4): a(f"buffer_load_dwordx4 v{vOff[j]}, {SS}, 0 offen offset:{j*1024} {qfl} lds")
    a(f"s_mov_b32 m0, {L_TK + 4096}")
    a(f"s_lshr_b32 s50, s{sPair}, 4"); a("s_lshl_b32 s50, s50, 9")
    for j in range(4): a(f"buffer_load_dwordx4 v{vOff[j]}, {SS}, s51 offen offset:{j*1024} lds")
    v_offset()
    a(f"s_mov_b32 m0, {L_TV}")
    a("s_add_u32 s36, s14, s50"); a("s_addc_u32 s37, s15, 0"); a("s_mov_b32 s38, 512"); a("s_mov_b32 s39, 0x20000")
    for j in range(4): a(f"buffer_load_dwordx4 v{vOff[0]}, {SQ}, 0 offen offset:{j*1024} {qfl} lds")
    a(f"v_and_b32 v{vU}, 15, v{vR}"); a(f"v_lshlrev_b32 v{vU}, 5, v{vU}"); a(f"v_lshl_add_u32 v{vU}, v{vH}, 3, v{vU}")
    a(f"buffer_load_dwordx2 {vr(TM, 2)}, v{vU}, {SM}, 0 offen")
    a(f"buffer_load_dwordx2 {vr(TM+2, 2)}, v{vU}, {SM}, 0 offen offset:16")
    a("s_branch L_knext")
    cm("hand-off word: bit 0 started, bit 1 acknowledged, bit 3 result published; +8 for the second workgroup. Only changes")
    cm("against the value seen at my own start count, and nothing is published before both have taken that snapshot.")
    def hs_poll(again, done):
        a(f"global_load_dword v{vU}, v{vZ}, s[66:67] sc1")
        a("s_waitcnt vmcnt(0)")
        a(f"v_readfirstlane_b32 s50, v{vU}")
        a(f"s_xor_b32 s50, s50, s{sSnap}"); a(f"s_lshr_b32 s50, s50, s{sOt}")
        a("s_and_b32 s51, s50, 3"); a(f"s_cbranch_scc0 {again}")
        a(f"s_mov_b32 s{sSt}, 2")
        a("s_bitcmp1_b32 s50, 0"); a(f"s_cbranch_scc0 {done}")
        a(f"s_lshl_b32 s{sAck}, 2, s{sMy}"); a(f"s_atomic_xor s{sAck}, s[66:67], 0")
        a(f"s_branch {done}")
    lab("L_hs")
    if "v" in warm:
        a(f"s_cmp_gt_u32 s{sCnt}, 4"); a("s_cbranch_scc1 L_hs0")
        a(f"s_lshl_b32 s50, s{sPair}, 21"); a("s_add_u32 s50, s8, s50"); a("s_addc_u32 s51, s9, 0")
        a(f"global_load_dword v{vTmp[0]}, v{vZ}, s[50:51] nt")
        lab("L_hs0")
    a(f"s_cmp_eq_u32 s{sSt}, 2"); a("s_cbranch_scc1 L_knext")
    a(f"s_cmp_eq_u32 s{sLim}, 1"); a("s_cbranch_scc1 L_knext")
    hs_poll("L_knext", "L_knext")
    lab("L_hsfin")
    if "o" in warm: a(f"buffer_load_dword v{vTmp[0]}, v{vZ}, {SO}, s69 offen")
    a(f"s_mov_b32 s71, {BOUND}")
    lab("L_hsw")
    a(f"s_cmp_eq_u32 s{sSt}, 2"); a("s_cbranch_scc1 L_stage")
    a("s_sub_u32 s71, s71, 1"); a("s_cbranch_scc1 L_stage")
    hs_poll("L_hsw", "L_stage")
    check_hazards([x for x in L if not x.startswith(".")])
    out = HEADER + DOC + f"; @launch grid=(256,1,1) block=(512,1,1) lds={LDS}\n"
    out += '.amdgcn_target "amdgcn-amd-amdhsa--gfx950"\n.text\n' + f".globl {NAME}\n.p2align 8\n.type {NAME},@function\n{NAME}:\n"
    out += "\n".join(" ".join(x.split(" ")).rstrip().replace("  lds", " lds") for x in L) + "\n"
    out += '.section .rodata,"a"\n.p2align 6\n' + f".amdhsa_kernel {NAME}\n"
    out += f"  .amdhsa_next_free_vgpr 256\n  .amdhsa_next_free_sgpr 96\n  .amdhsa_accum_offset 256\n"
    out += "  .amdhsa_group_segment_fixed_size 0\n  .amdhsa_kernarg_size 72\n  .amdhsa_user_sgpr_count 2\n"
    out += "  .amdhsa_user_sgpr_kernarg_segment_ptr 1\n  .amdhsa_system_sgpr_workgroup_id_x 1\n.end_amdhsa_kernel\n"
    return out

if __name__ == "__main__":
    out = sys.argv[1]
    kw = {}
    for x in sys.argv[2:]:
        k, v = x.split("=", 1)
        if v in ("True", "False"): v = v == "True"
        else:
            try: v = int(v)
            except ValueError: pass
        kw[k] = v
    open(out, "w").write(gen(**kw))
```

```python
import sys, struct, math
from hz import check_hazards
NAME = "standalone__tree_speculative_verify_tree_attention_over_candidate_token_tree__sampling_kernel"
HEADER = open("standalone__tree_speculative_verify_tree_attention_over_candidate_token_tree__sampling.s.ref").read().split("; Override launch")[0]
DOC = """;
"""

def f32(x): return "0x%08x" % struct.unpack("<I", struct.pack("<f", x))[0]

def gen(levels="19,20,21,23,28,32", start=1, lmap="01111223", cps="4,10,16,22,28,34,40,45,50,54,57,59", SP=62, LH=32, jbits="12,13,14,11,10", mbit=16,
        stamp=False, fl="nt", prio=3, xat=12, st4=False, st6=False, cal=0, ofl="", WSOFF=0, BOUND=1 << 22, pre=False, LH0=0, SP2=0, spoll=0, boost=0, shalf=1, qfl="", hsf="sc1", hlf="sc1", R=8, rmap="011112223", rot=3, help="", hfl="", adj=1, warm="", calp=0, reh=0, halfx=0, trim=0, late=-1, LATE=59, lmap2="00111234", rmap2="001112344", gate="", hs=0, emu=0, st0=-1, st1=-1, early=1, pk="sv", fine=1, NS=16, CS=256, same=0):
    L = []
    def a(s): L.append("    " + s)
    def lab(s): L.append(s + ":")
    def cm(s): L.append("    ; " + s)
    def vr(b, n): return f"v[{b}:{b+n-1}]"
    RB = 32768
    L_PS = 3 * RB
    L_Q, L_TK = L_PS, L_PS + 8192
    L_MI = L_PS + 16384
    L_TV = L_MI + 17408
    L_TP = L_TV + 4096
    L_ML = L_TP + 2048
    LDS = L_ML + 2048
    W_WORD = WSOFF
    W_RANK = WSOFF + 65536
    W_DATA = WSOFF + (262144 if CS <= 256 else 1 << 20)
    PS = 18432 + (256 if adj else 0)
    vLane, vH, vR, vMIa = 96, 97, 98, 99
    vM, vMC, vL, vT, vU, vAL = 101, 102, 103, 1, 6, 7
    vTmp = [0, 100]
    Q0, KF, S0, vKrd, PB = 8, 40, 72, list(range(88, 96)), 104
    PF, VF, O0, DT = 8, 40, 72, 88
    vVa, vPa, vZ, vMla = 2, 3, 4, 5
    vOff = [40, 41, 42, 43]
    sPair, sMem, sK, sT, sBuf, sC, sCnt, sJ, sSlot, sCur, sBase, sW, sSnap, sSt, sMy, sOt = 40, 41, 42, 43, 44, 46, 47, 48, 49, 60, 61, 59, 62, 63, 64, 65
    sLim, sStep, sT0, sAck, sN, sWo = 68, 70, 48, 94, 95, 93
    SS, SQ, SO, SM, SD = "s[20:23]", "s[28:31]", "s[32:35]", "s[36:39]", "s[24:27]"
    c = (128 ** -0.5) * math.log2(math.e)
    jb = [int(x) for x in str(jbits).split(",")]
    def B(j): return sum(((j >> i) & 1) << b for i, b in enumerate(jb))
    maskR = sum(1 << b for b in range(10, 21) if b not in jb and b != mbit)
    lowR = (maskR & -maskR).bit_length() - 1
    lv = [float(x) for x in str(levels).split(",")]
    cp = [int(x) for x in str(cps).split(",")] if cps != "" else []
    assert len(cp) <= 16
    lm = [int(ch) for ch in str(lmap).zfill(8)]
    def st(n):
        if st6: a(f"s_memrealtime s[{72+2*n}:{73+2*n}]")

    def stamp_out():
        a("s_waitcnt vmcnt(0)")
        a("s_memrealtime s[56:57]")
        a("s_getreg_b32 s58, hwreg(HW_REG_XCC_ID)")
        a("s_waitcnt lgkmcnt(0)")
        a("v_mov_b32 v8, s54"); a("v_mov_b32 v9, s56"); a("v_mov_b32 v10, s58");  a("v_mov_b32 v11, 0")
        a("s_lshl_b32 s50, s2, 3"); a("s_add_u32 s50, s50, s3"); a("s_lshl_b32 s50, s50, 4")
        a("v_mov_b32 v12, s50")
        a("s_mov_b64 exec, 1")
        a("global_store_dwordx4 v12, v[8:11], s[52:53]")
    def ids():
        a(f"v_and_b32 v{vLane}, 63, v0")
        a(f"s_lshr_b32 s{sPair}, s2, 4"); a(f"s_lshl_b32 s{sPair}, s{sPair}, 3"); a("s_and_b32 s50, s2, 7"); a(f"s_or_b32 s{sPair}, s{sPair}, s50")
        a(f"s_bfe_u32 s{sMem}, s2, 0x10003")
    def k_offsets():
        cm("K-shaped DMA source offsets: row rr = lane>>4, slot p = lane&15 -> rr*256 + ((p ^ (4j+rr)) * 16)")
        a(f"v_lshlrev_b32 v{vTmp[0]}, 4, v{vLane}")
        a(f"v_and_b32 v{vTmp[1]}, 0x30, v{vLane}")
        a(f"v_xor_b32 v{vOff[0]}, v{vTmp[0]}, v{vTmp[1]}")
        for j in range(1, 4): a(f"v_xor_b32 v{vOff[j]}, {64*j}, v{vOff[0]}")
    def v_offset():
        cm("V DMA source offset: rr*256 + ((p ^ 4rr) * 16)")
        a(f"v_lshlrev_b32 v{vTmp[0]}, 4, v{vLane}")
        a(f"v_and_b32 v{vTmp[1]}, 0x30, v{vLane}")
        a(f"v_lshlrev_b32 v{vTmp[1]}, 2, v{vTmp[1]}")
        a(f"v_xor_b32 v{vOff[0]}, v{vTmp[0]}, v{vTmp[1]}")
    def nextbuf():
        a(f"s_add_u32 s{sBuf}, s{sBuf}, {RB}")
        a(f"s_cmp_eq_u32 s{sBuf}, {3*RB}"); a(f"s_cselect_b32 s{sBuf}, 0, s{sBuf}")

    a("s_load_dwordx16 s[4:19], s[0:1], 0")
    a("s_load_dwordx2 s[52:53], s[0:1], 64")
    if stamp or cal: a("s_memrealtime s[54:55]")
    a("v_readfirstlane_b32 s3, v0")
    a("s_cmp_ge_u32 s2, 256"); a("s_cbranch_scc1 L_end")
    if late >= 0:
        a("s_and_b32 s50, s2, 24"); a(f"s_cmp_lg_u32 s50, {late * 8}"); a("s_cbranch_scc1 L_notlate")
        a("s_mov_b32 s50, 60")
        lab("L_late"); a("s_sleep 100"); a("s_sub_u32 s50, s50, 1"); a("s_cbranch_scc0 L_late")
        lab("L_notlate")
    a("s_lshr_b32 s3, s3, 6")
    a("s_cbranch_scc1 L_cons")
    cm("=============== loader wave")
    if trim:
        a("s_lshr_b32 s50, s2, 4"); a("s_and_b32 s51, s2, 7"); a(f"s_lshl3_add_u32 s{sPair}, s50, s51")
        cm("K-shaped DMA source offsets: row rr = lane>>4, slot p = lane&15 -> rr*256 + ((p ^ (4j+rr)) * 16) + piece offset - j*1024")
        a("v_lshlrev_b32 v1, 4, v0"); a("v_and_b32 v2, 48, v0"); a(f"v_xor_b32 v{vOff[0]}, v1, v2")
        a(f"s_lshl_b32 s45, s{sPair}, 21"); a("s_and_b32 s46, s2, 8"); a(f"s_lshl_b32 s46, s46, {jb[4] - 3}"); a(f"s_or_b32 s46, s46, {maskR}")
        a("s_lshl_b32 s22, 1, 21"); a("s_mov_b32 s23, 0x20000")
        for j in range(1, 4): a(f"v_xor_b32 v{vOff[j]+4}, {64*j}, v{vOff[0]}"); a(f"v_add_u32 v{vOff[j]}, {B(j) - 1024*j}, v{vOff[j]+4}")
        a(f"s_mov_b32 s{sBuf}, 0"); a(f"s_mov_b32 s{sCnt}, 0")
    else:
        if prio: a(f"s_setprio {prio}")
        ids(); k_offsets()
        for j in range(1, 4):
            assert B(j) >= 1024*j
            a(f"v_mov_b32 v{vOff[j]+4}, v{vOff[j]}")
            a(f"v_add_u32 v{vOff[j]}, {B(j) - 1024*j}, v{vOff[j]}")
        a(f"s_lshl_b32 s50, s{sPair}, 13"); a("s_mov_b32 s30, 8192"); a("s_mov_b32 s31, 0x20000"); a("s_movk_i32 s51, 4096")
        a(f"s_lshl_b32 s45, s{sPair}, 21")
        a("s_mov_b32 s22, 0x200000"); a("s_mov_b32 s23, 0x20000")
        a(f"s_mul_i32 s46, s{sMem}, {B(16)}"); a(f"s_add_u32 s46, s46, {maskR}")
        a(f"s_mov_b32 s{sBuf}, 0"); a(f"s_mov_b32 s{sCnt}, 0")
    def vm(x, n):
        lo = int(x); fr = x - lo
        return lo + (1 if (n % 16) < fr * 16 else 0) - 1
    def half(x):
        for g in range(6 if emu else 4):
            if emu and g == 4: a("s_bitcmp1_b32 s2, 3"); a("s_cbranch_scc1 L_hx")
            a(f"s_add_u32 m0, s{sBuf}, {g*4096}"); a(f"s_add_u32 s{sT}, s46, {B(4*g)}")
            for j in range(4):
                if x: a(f"s_waitcnt vmcnt({vm(x, 0)})")
                a(f"buffer_load_dwordx4 v{vOff[j]}, {SS}, s{sT} offen offset:{j*1024} {fl} lds")
    a("s_waitcnt lgkmcnt(0)")
    a("s_add_u32 s20, s6, s45"); a("s_addc_u32 s21, s7, 0")
    if shalf:
        lab("L_half")
        cm("opening (K) and closing (V) half round: the two workgroups split the first one's round 31")
        half(float(LH))
        if emu: lab("L_hx")
        a(f"s_cmp_lg_u32 s{sCnt}, 0"); a("s_cbranch_scc1 " + ("L_hret" if hs else "L_h2"))
    else: half(0)
    if trim:
        a(f"s_lshl_b32 s50, s{sPair}, 13"); a("s_movk_i32 s30, 8192"); a("s_mov_b32 s31, 0x20000"); a("s_movk_i32 s51, 4096")
    a(f"s_mov_b32 m0, {L_Q}"); a("s_add_u32 s28, s4, s50"); a("s_addc_u32 s29, s5, 0")
    for j in range(4): a(f"buffer_load_dwordx4 v{vOff[j] + (4 if j else 0)}, {SQ}, 0 offen offset:{j*1024} {qfl} lds")
    a(f"s_mov_b32 m0, {L_Q + 4096}"); a("s_nop 0")
    for j in range(4): a(f"buffer_load_dwordx4 v{vOff[j] + (4 if j else 0)}, {SQ}, s51 offen offset:{j*1024} {qfl} lds")
    if trim:
        if prio: a(f"s_setprio {prio}")
        a(f"s_bfe_u32 s{sMem}, s2, 0x10003"); a(f"v_mov_b32 v{vLane}, v0")
    cm("rounds at which something besides streaming is due: a progress check, its result, the switch to V, the sprint, the end")
    def evm(n): return sum(1 << (r - 1) for r in set(cp) | set(r + 1 for r in cp) | {n, 2 * n} | ({SP} if SP < 2 * n else set()) | ({SP2} if SP2 else set()) | ({boost} if boost else set()) | (set(range(SP - 3, 64)) if gate != "" else set()))
    cpm = sum(1 << r for r in cp)
    a(f"s_lshl_b32 s48, s{sMem}, {mbit}"); a(f"s_mov_b32 s{sK}, s48"); a(f"s_mov_b32 s{sBuf}, {RB}")
    a(f"s_add_u32 s{sN}, s{sMem}, 31"); a(f"s_add_u32 s49, s{sN}, 1")
    a(f"s_mov_b32 s84, {(evm(31) | evm(32)) & 0xffffffff:#x}"); a(f"s_mov_b32 s85, {(evm(31) | evm(32)) >> 32:#x}")
    a(f"s_mov_b32 s86, {cpm & 0xffffffff:#x}"); a(f"s_mov_b32 s87, {cpm >> 32:#x}")
    a(f"s_mov_b32 s88, {start}"); a("s_and_b32 s90, s2, 7")
    if R == 32: a("s_lshr_b32 s89, s2, 4")
    if R == 32: a(f"s_lshl_b32 s91, s{sMem}, 8"); a(f"s_add_u32 s91, s91, {W_RANK}")
    else: a(f"s_mov_b32 s91, {W_RANK}"); a("s_lshr_b32 s89, s2, 3"); a("s_lshl_b32 s90, s90, 2"); a(f"s_add_u32 s90, s90, {rot}")
    a("s_mov_b32 s92, -1")
    if st4: a("s_mov_b32 s74, 0"); a("v_mov_b32 v20, 0"); a("v_mov_b32 v21, 0"); a("v_mov_b32 v22, 0")
    def rnd(x, sfx):
        bar_at = min(n for n in range(32) if vm(x, n) <= n)
        for g in range(8):
            if 4 * g == xat:
                a(f"s_cmp_lg_u32 s{sCnt}, s49"); a(f"s_cbranch_scc1 L_nx{sfx}")
                if st4: a("s_memrealtime s[76:77]")
                a("s_barrier")
                if st4: a("s_memrealtime s[78:79]")
                lab("L_nx" + sfx)
            a(f"s_add_u32 m0, s{sBuf}, {g*4096}"); a(f"s_add_u32 s{sT}, s{sK}, {B(4*g)}")
            for j in range(4):
                n = 4 * g + j
                a(f"s_waitcnt vmcnt({vm(x, n)})")
                a(f"buffer_load_dwordx4 v{vOff[j]}, {SS}, s{sT} offen offset:{j*1024} {fl} lds")
                if n == bar_at:
                    if st4: a("s_memrealtime s[70:71]")
                    a("s_barrier")
                    if st4: a("s_memrealtime s[72:73]")
    if st0 >= 0:
        a(f"s_cmp_eq_u32 s{sMem}, 0"); a(f"s_cselect_b32 s88, {st0}, {st1}"); a(f"s_cbranch_scc1 L_lv{st0}"); a(f"s_branch L_lv{st1}")
    order = [start] + [i for i in range(len(lv)) if i != start]
    if hs: order = order[:-1]
    if boost: order = [order[-1]] + order[:-1]
    for i in order:
        lab(f"L_lv{i}")
        cm(f"one round with {lv[i]:g} pieces in flight")
        rnd(lv[i], str(i))
        cm("next round: the source offset counts through the address bits a round leaves fixed; buffers rotate mod 3")
        nextbuf()
        if st4:
            a("s_waitcnt lgkmcnt(0)"); a("s_mov_b32 m0, s74"); a("s_add_u32 s74, s74, 1")
            a("v_writelane_b32 v20, s70, m0"); a("v_writelane_b32 v21, s72, m0")
        a(f"s_or_b32 s{sK}, s{sK}, {(~maskR) & 0xffffffff:#x}"); a(f"s_add_u32 s{sK}, s{sK}, 1"); a(f"s_and_b32 s{sK}, s{sK}, {maskR:#x}")
        a(f"s_or_b32 s{sK}, s{sK}, s48")
        a(f"s_add_u32 s50, s{sCnt}, 1")
        a(f"s_bitcmp1_b64 s[84:85], s{sCnt}"); a(f"s_mov_b32 s{sCnt}, s50")
        a(f"s_cbranch_scc0 L_lv{i}")
        if i != order[-1]: a("s_branch L_event")
    lab("L_event")
    if emu: a(f"s_cmp_eq_u32 s{sCnt}, 64"); a("s_cbranch_scc1 L_h3")
    a(f"s_lshl_b32 s50, s{sN}, 1"); a(f"s_cmp_eq_u32 s{sCnt}, s50")
    if hs: a("s_cselect_b32 s92, 0, s92")
    a("s_cbranch_scc1 " + ("L_half" if shalf else "L_ldfin"))
    a(f"s_cmp_lg_u32 s{sCnt}, s{sN}"); a("s_cbranch_scc1 L_nosw")
    cm("K is done, go on with V (the second workgroup, one round behind by now, starts at round 1 to stay beside the first)")
    a("s_add_u32 s20, s8, s45"); a("s_addc_u32 s21, s9, 0")
    a(f"s_lshl_b32 s{sK}, s{sMem}, {lowR}"); a(f"s_or_b32 s{sK}, s{sK}, s48")
    v_offset()
    for j in range(1, 4): a(f"v_add_u32 v{vOff[j]}, {B(j) - 1024*j}, v{vOff[0]}")
    lab("L_nosw")
    if cp:
        cm("load balance: eight workgroups count themselves in at each check, the others read the count; the later a workgroup came, the more it keeps in flight")
        a(f"s_cmp_lg_u32 s{sCnt}, s92"); a("s_cbranch_scc1 L_noapply")
        a("s_waitcnt lgkmcnt(0)")
        if R == 32:
            word = sum(v << (4 * i) for i, v in enumerate(lm))
            a("s_min_u32 s93, s93, 7"); a("s_lshl_b32 s93, s93, 2")
            a(f"s_lshr_b32 s93, {word:#x}, s93"); a("s_and_b32 s88, s93, 15")
            lab("L_noapply")
            a(f"s_bitcmp1_b64 s[86:87], s{sCnt}"); a("s_cbranch_scc0 L_nocp")
            a("s_and_b32 s50, s89, 15"); a("s_lshl_b32 s50, s50, 9"); a("s_add_u32 s50, s50, s91")
            a("s_add_u32 s66, s52, s50"); a("s_addc_u32 s67, s53, 0")
            a("s_mov_b32 s93, 1"); a("s_atomic_add s93, s[66:67], 0 glc")
            a("s_add_u32 s91, s91, 8192"); a("s_add_u32 s89, s89, s90"); a(f"s_add_u32 s92, s{sCnt}, 1")
        else:
            per = 32 // R
            rm = [int(ch) for ch in str(rmap).zfill(9)]
            w1 = sum(v << (3 * i) for i, v in enumerate(lm + lm[-1:])); w2 = sum(v << (3 * i) for i, v in enumerate(rm))
            a("s_min_u32 s93, s93, 8"); a("s_mul_i32 s93, s93, 3")
            a("s_lshr_b32 s93, s94, s93"); a("s_and_b32 s88, s93, 7")
            lab("L_noapply")
            a(f"s_bitcmp1_b64 s[86:87], s{sCnt}"); a("s_cbranch_scc0 L_nocp")
            a(f"s_and_b32 s50, s89, {32 - per}"); a(f"s_mul_i32 s50, s50, {CS // per}"); a("s_add_u32 s50, s50, s91")
            a("s_add_u32 s66, s52, s50"); a("s_addc_u32 s67, s53, 0")
            a(f"s_add_u32 s91, s91, {4 if same else CS * R}"); a(f"s_add_u32 s92, s{sCnt}, 1")
            a(f"s_and_b32 s50, s89, {per - 1}"); a("s_cbranch_scc1 L_reader")
            def pick(w, m2, n):
                a(f"s_mov_b32 s94, {w:#x}")
                if LATE:
                    d = [int(ch) for ch in str(m2).zfill(n)]; d = (d + d[-1:])[:9]
                    a(f"s_cmp_ge_u32 s{sCnt}, {LATE}"); a(f"s_cselect_b32 s94, {sum(v << (3 * i) for i, v in enumerate(d)):#x}, s94")
            a("s_mov_b32 s93, 1"); a("s_atomic_add s93, s[66:67], 0 glc"); pick(w1, lmap2, 8)
            a("s_branch L_rot")
            lab("L_reader")
            a("s_load_dword s93, s[66:67], 0 glc"); pick(w2, rmap2, 9)
            lab("L_rot")
            a("s_add_u32 s89, s89, s90")
        lab("L_nocp")
    if gate != "":
        gw = sum(int(ch) << (4 * i) for i, ch in enumerate(str(gate).zfill(len(lv) - 1)))
        a("s_lshl_b32 s50, s88, 2"); a(f"s_lshr_b32 s50, {gw:#x}, s50"); a("s_and_b32 s50, s50, 15"); a(f"s_add_u32 s50, s50, s{sCnt}")
        a(f"s_mul_i32 s50, s50, s{sMem}")
    else: a(f"s_mul_i32 s50, s{sCnt}, s{sMem}")
    a(f"s_cmp_ge_u32 s50, {SP}"); a("s_cbranch_scc1 " + ("L_spr" if hs else f"L_lv{len(lv) - 1}"))
    if SP2: a(f"s_cmp_ge_u32 s50, {SP2}"); a(f"s_cbranch_scc1 L_lv{len(lv) - 2}")
    for i in [x for x in range(len(lv)) if x != start and str(x) in (str(lmap).zfill(8) + str(rmap).zfill(9) + str(lmap2) + str(rmap2))]:
        a(f"s_cmp_eq_u32 s88, {i}"); a(f"s_cbranch_scc1 L_lv{i}")
    a(f"s_branch L_lv{start}")
    if hs:
        lab("L_hret")
        a("s_sub_u32 s92, s92, 1"); a("s_cbranch_scc1 L_h2")
        a("s_bitcmp1_b32 s92, 0"); a("s_cbranch_scc0 L_sprn")
        a(f"s_add_u32 s46, s46, {B(16)}"); a(f"s_add_u32 s{sBuf}, s{sBuf}, {RB // 2}")
        a("s_branch L_half")
        lab("L_sprn")
        if st4: a("s_memrealtime s[70:71]")
        a("s_barrier")
        if st4:
            a("s_memrealtime s[72:73]")
            a("s_waitcnt lgkmcnt(0)"); a("s_mov_b32 m0, s74"); a("s_add_u32 s74, s74, 1")
            a("v_writelane_b32 v20, s70, m0"); a("v_writelane_b32 v21, s72, m0")
        a(f"s_add_u32 s{sBuf}, s{sBuf}, {RB // 2}")
        a(f"s_cmp_eq_u32 s{sBuf}, {3*RB}"); a(f"s_cselect_b32 s{sBuf}, 0, s{sBuf}")
        a(f"s_or_b32 s{sK}, s{sK}, {(~maskR) & 0xffffffff:#x}"); a(f"s_add_u32 s{sK}, s{sK}, 1"); a(f"s_and_b32 s{sK}, s{sK}, {maskR:#x}")
        a(f"s_or_b32 s{sK}, s{sK}, s48")
        a("s_cmp_eq_u32 s92, 0"); a(f"s_cselect_b32 s46, s91, s{sK}")
        a("s_branch L_half")
        lab("L_spr")
        a("s_mov_b32 s91, s46"); a(f"s_mov_b32 s46, s{sK}")
        a(f"s_sub_u32 s92, 64, s{sCnt}"); a("s_lshl_b32 s92, s92, 1")
        a("s_branch L_half")
    if not shalf: lab("L_ldfin")
    if LH0:
        a(f"s_cmp_lg_u32 s{sMem}, 0"); a("s_cbranch_scc1 L_h1")
        half(float(LH0))
        a("s_branch L_h2")
        lab("L_h1")
    if not shalf: half(float(LH))
    lab("L_h2")
    if help:
        tiles = [(1 << mbit) + B(8*t) for t in range(4)] + [maskR + B(16) + B(8*t) for t in range(2)]
        h0, h1, h2 = [[int(ch) for ch in x] for x in str(help).split("-")]
        a(f"s_cmp_lg_u32 s{sMem}, 0"); a("s_cbranch_scc1 L_nohelp")
        cm("first workgroup: pull the second one's last tiles into the L2 the two normally share (speed only)")
        a(f"v_and_b32 v50, 7, v{vLane}"); a("v_lshlrev_b32 v50, 7, v50")
        for i in range(3): a(f"v_bfe_u32 v51, v{vLane}, {3+i}, 1"); a(f"v_lshl_add_u32 v50, v51, {jb[i]}, v50")
        def pf(ts):
            for t in ts: a(f"s_mov_b32 s50, {tiles[t]}"); a(f"buffer_load_dword v{52+t}, v50, {SS}, s50 offen {hfl}")
        if h0: a("s_waitcnt vmcnt(24)")
        pf(h0)
        a(f"s_waitcnt vmcnt({16 + len(h0)})"); a("s_barrier")
        pf(h1)
        a(f"s_waitcnt vmcnt({len(h0) + len(h1)})"); a("s_barrier")
        pf(h2)
        a("s_barrier")
        if stamp: a("s_branch L_lst")
        else: a("s_endpgm")
        lab("L_nohelp")
    a(f"s_waitcnt vmcnt({24 if emu else 16})"); a("s_barrier")
    if emu: lab("L_h3")
    a("s_waitcnt vmcnt(0)")
    if st4: a("s_memrealtime s[80:81]")
    a("s_barrier")
    if st4:
        a("s_memrealtime s[82:83]"); a("s_waitcnt lgkmcnt(0)")
        for i, r in enumerate((54, 76, 78, 80, 82)): a(f"v_writelane_b32 v22, s{r}, {i}")
        a("s_lshl_b32 s50, s2, 10"); a("s_add_u32 s50, s50, 0x200000")
        a(f"v_lshl_add_u32 v4, v{vLane}, 2, s50")
        a("global_store_dword v4, v20, s[52:53]"); a("global_store_dword v4, v21, s[52:53] offset:256"); a("global_store_dword v4, v22, s[52:53] offset:512")
    if help: lab("L_lst")
    if stamp: stamp_out()
    a("s_endpgm")

    L.append(".p2align 6")
    lab("L_cons")
    cm("=============== consumers")
    ids()
    a(f"s_sub_u32 s{sW}, s3, 1")
    a(f"v_lshrrev_b32 v{vH}, 5, v{vLane}")
    a(f"v_and_b32 v{vR}, 31, v{vLane}")
    a(f"s_lshl_b32 s{sMy}, s{sMem}, 3"); a(f"s_xor_b32 s{sOt}, s{sMy}, 8")
    if adj: a(f"s_mul_i32 s50, s{sPair}, {PS}"); a(f"s_add_u32 s50, s50, {W_DATA + 18432}")
    else: a(f"s_lshl_b32 s50, s{sPair}, 8"); a(f"s_add_u32 s50, s50, {W_WORD}")
    a(f"s_cmp_lg_u32 s{sW}, 3")
    a("s_waitcnt lgkmcnt(0)")
    a("s_cbranch_scc1 L_noq")
    cm("wave 4 clears this workgroup's share of the arrival counters")
    a(f"s_mul_i32 s45, s2, {CS}")
    if cp:
        a(f"s_add_u32 s45, s45, {W_RANK}")
        a(f"v_lshl_add_u32 v{vT}, v{vLane}, {2 if same else 16}, s45"); a(f"v_mov_b32 v{vU}, 0")
        if same:
            a(f"s_cmp_ge_u32 s2, {R}"); a("s_cbranch_scc1 L_noq"); a("s_mov_b32 exec_hi, 0")
        elif R * len(cp) <= 256:
            a(f"s_cmp_ge_u32 s2, {R * len(cp)}"); a("s_cbranch_scc1 L_noq"); a("s_mov_b64 exec, 1")
        else:
            a(f"s_cmp_lt_u32 s2, {max(0, R * len(cp) - 256)}"); a("s_cselect_b32 exec_lo, 3, 1"); a("s_mov_b32 exec_hi, 0")
        a(f"global_store_dword v{vT}, v{vU}, s[52:53] sc1")
        a("s_mov_b64 exec, -1")
    lab("L_noq")
    a("s_add_u32 s66, s52, s50"); a("s_addc_u32 s67, s53, 0")
    a(f"s_cmp_lg_u32 s{sW}, 4"); a("s_cbranch_scc1 L_nohs")
    a(f"s_lshl_b32 s{sSnap}, 1, s{sMy}"); a(f"s_atomic_xor s{sSnap}, s[66:67], 0 glc")
    lab("L_nohs")
    cm("LDS read addresses for K-shaped tiles: r*256 + ((h ^ (r&15)) ^ 2s)*16, first pointing at Q")
    a(f"v_and_b32 v{vT}, 15, v{vR}")
    a(f"v_xor_b32 v{vT}, v{vT}, v{vH}")
    a(f"v_lshlrev_b32 v{vT}, 4, v{vT}")
    a(f"v_lshl_add_u32 v{vT}, v{vR}, 8, v{vT}")
    a(f"v_add_u32 v{vKrd[0]}, {L_Q}, v{vT}")
    for s in range(1, 8): a(f"v_xor_b32 v{vKrd[s]}, {32*s}, v{vKrd[0]}")
    cm("transposing V reads of column block w: row = 4h + r', chunk = (4w + 2gg + (c>>1)) ^ 4r', + 8*(c&1)")
    a(f"v_bfe_u32 v{vU}, v{vLane}, 2, 2")
    a(f"v_lshl_add_u32 v{vT}, v{vH}, 2, v{vU}")
    a(f"v_lshlrev_b32 v{vVa}, 8, v{vT}")
    a(f"v_xor_b32 v{vU}, s{sW}, v{vU}"); a(f"v_and_b32 v{vU}, 3, v{vU}")
    a(f"v_lshl_add_u32 v{vVa}, v{vU}, 6, v{vVa}")
    a(f"v_and_b32 v{vU}, 3, v{vLane}")
    a(f"v_lshl_add_u32 v{vVa}, v{vU}, 3, v{vVa}")
    a(f"v_and_b32 v{vU}, 16, v{vLane}")
    a(f"v_lshl_add_u32 v{vVa}, v{vU}, 1, v{vVa}")
    a(f"v_lshlrev_b32 v{vPa}, 4, v{vLane}"); a(f"v_add_u32 v{vPa}, {L_PS}, v{vPa}")
    a(f"v_mov_b32 v{vZ}, 0")
    a(f"v_lshlrev_b32 v{vMla}, 3, v{vR}"); a(f"v_add_u32 v{vMla}, {L_ML}, v{vMla}")
    a(f"s_mov_b32 s{sBase}, {L_Q}"); a(f"s_mov_b32 s{sC}, {f32(c)}"); a(f"s_add_u32 s{sCnt}, s{sMem}, 32")
    a(f"s_add_u32 s{sWo}, s{sW}, 2"); a(f"s_sub_u32 s50, s{sWo}, 7"); a(f"s_cselect_b32 s{sWo}, s{sWo}, s50")
    a(f"s_mov_b32 s{sBuf}, 0"); a(f"s_mov_b32 s{sJ}, s{sWo}"); a(f"s_mov_b32 s{sSlot}, 0"); a(f"s_mov_b32 s{sSt}, 0")
    a(f"s_mov_b32 s{sLim}, 1"); a(f"s_mov_b32 s{sStep}, 5")
    a(f"s_mul_i32 s50, s{sW}, {19*128}"); a(f"s_add_u32 s50, s50, {L_MI}")
    a(f"v_lshl_add_u32 v{vMIa}, v{vR}, 2, s50")
    a(f"v_mov_b32 v{vL}, 0"); a(f"v_mov_b32 v{vM}, {f32(-3.0e38)}"); a(f"v_mov_b32 v{vMC}, v{vM}")
    a(f"s_mul_i32 s50, s{sPair}, {PS}"); a(f"s_mul_i32 s51, s{sW}, 4608"); a("s_add_u32 s50, s50, s51"); a(f"s_add_u32 s50, s50, {W_DATA}")
    a("s_add_u32 s24, s52, s50"); a("s_addc_u32 s25, s53, 0"); a("s_movk_i32 s26, 4608"); a("s_mov_b32 s27, 0x20000")
    a("s_mov_b32 s32, s16"); a("s_mov_b32 s33, s17"); a("s_mov_b32 s34, 0x100000"); a("s_mov_b32 s35, 0x20000")
    a(f"s_lshl_b32 s50, s{sPair}, 13"); a(f"s_lshl_b32 s51, s{sW}, 6"); a("s_add_u32 s69, s50, s51")
    a("s_barrier")
    if calp == 1: a("s_memrealtime s[72:73]")
    for s in range(8): a(f"ds_read_b128 {vr(Q0 + 4*s, 4)}, v{vKrd[s]}")
    a("s_waitcnt lgkmcnt(0)")
    a("s_branch L_kgo")
    lab("L_kr")
    a("s_barrier")
    lab("L_kgo")
    a(f"s_cmp_gt_u32 s{sJ}, s{sLim}"); a("s_cbranch_scc1 L_kidle")
    a(f"s_lshl_b32 s50, s{sJ}, 13"); a(f"s_add_u32 s50, s50, s{sBuf}")
    a(f"s_mov_b32 s{sCur}, s{sSlot}"); a(f"s_add_u32 s{sSlot}, s{sSlot}, 8")
    lab("L_ktile")
    a(f"s_sub_u32 s51, s50, s{sBase}"); a(f"s_mov_b32 s{sBase}, s50")
    for s in range(8):
        a(f"v_add_u32 v{vKrd[s]}, s51, v{vKrd[s]}")
        a(f"ds_read_b128 {vr(KF + 4*s, 4)}, v{vKrd[s]}")
    a(f"s_lshl_b32 s50, s{sCur}, 4")
    a(f"v_add_u32 v{vTmp[1]}, s50, v{vMIa}")
    a(f"s_cmp_gt_u32 s{sJ}, 3")
    a("s_waitcnt lgkmcnt(7)")
    a("s_cbranch_scc1 L_kbias")
    a(f"v_mfma_f32_32x32x16_bf16 {vr(S0, 16)}, {vr(KF, 4)}, {vr(Q0, 4)}, 0")
    lab("L_k1")
    for s in range(1, 8):
        a(f"s_waitcnt lgkmcnt({7-s})")
        a(f"v_mfma_f32_32x32x16_bf16 {vr(S0, 16)}, {vr(KF + 4*s, 4)}, {vr(Q0 + 4*s, 4)}, {vr(S0, 16)}")
    a("s_nop 11")
    cm("online softmax; the reference is the running maximum rounded up to a whole power of two")
    a(f"v_max3_f32 v{vT}, v{S0}, v{S0+1}, v{vM}")
    a(f"v_max3_f32 v{vU}, v{S0+2}, v{S0+3}, v{S0+4}")
    for j in range(5, 15, 4):
        a(f"v_max3_f32 v{vT}, v{S0+j}, v{S0+j+1}, v{vT}")
        if j + 3 < 15: a(f"v_max3_f32 v{vU}, v{S0+j+2}, v{S0+j+3}, v{vU}")
    a(f"v_max3_f32 v{vT}, v{S0+15}, v{vU}, v{vT}")
    a(f"v_mov_b32 v{vU}, v{vT}")
    a("s_nop 1")
    a(f"v_permlane32_swap_b32 v{vT}, v{vU}")
    a(f"v_max_f32 v{vM}, v{vT}, v{vU}")
    a(f"v_mul_f32 v{vT}, s{sC}, v{vM}")
    a(f"v_ceil_f32 v{vT}, v{vT}")
    a(f"v_sub_f32 v{vAL}, v{vMC}, v{vT}")
    a(f"v_mov_b32 v{vMC}, v{vT}")
    a(f"ds_write_b32 v{vTmp[1]}, v{vT}")
    a(f"v_exp_f32 v{vAL}, v{vAL}")
    for j in range(16): a(f"v_fma_f32 v{S0+j}, v{S0+j}, s{sC}, -v{vMC}")
    for j in range(16): a(f"v_exp_f32 v{S0+j}, v{S0+j}")
    a(f"v_mul_f32 v{vL}, v{vL}, v{vAL}")
    a(f"s_set_gpr_idx_on s{sCur}, gpr_idx(DST)"); a("s_mov_b32 s50, 0x3f803f80")
    for j in range(8): a(f"v_cvt_pk_bf16_f32 v{PB+j}, v{S0+2*j}, v{S0+2*j+1}")
    a(f"s_set_gpr_idx_on s{sCur}, gpr_idx(SRC0)"); a("s_nop 0")
    for j in range(8): a(f"v_dot2_f32_bf16 v{vL}, v{PB+j}, s50, v{vL}")
    a("s_set_gpr_idx_off")
    lab("L_knext")
    a(f"s_add_u32 s{sJ}, s{sJ}, s{sStep}"); a(f"s_sub_u32 s50, s{sJ}, 7"); a(f"s_cselect_b32 s{sJ}, s{sJ}, s50")
    a(f"s_mov_b32 s{sLim}, 3"); a(f"s_mov_b32 s{sStep}, 3")
    nextbuf()
    a(f"s_sub_u32 s{sCnt}, s{sCnt}, 1"); a(f"s_cmp_lg_u32 s{sCnt}, 0"); a("s_cbranch_scc1 L_kr")

    cm("=============== between K and V: common reference M and sum L of this workgroup")
    a(f"v_mov_b32 v{vU}, v{vL}")
    a(f"s_lshl_b32 s50, s{sW}, 8")
    a(f"v_add_u32 v{vT}, s50, v{vMla}")
    a(f"v_permlane32_swap_b32 v{vL}, v{vU}")
    a(f"v_add_f32 v{vL}, v{vL}, v{vU}")
    a(f"ds_write_b64 v{vT}, {vr(vMC, 2)}")
    for j in range(0, 16, 2): a(f"v_mov_b64 {vr(O0+j, 2)}, 0")
    a(f"s_lshl_b32 s{sT0}, s{sMem}, 2"); a(f"s_add_u32 s{sT0}, s{sT0}, 2")
    if emu: a(f"s_mov_b32 s{sCnt}, 32")
    else: a(f"s_add_u32 s{sCnt}, s{sMem}, 32")
    a(f"s_mov_b32 s{sBase}, 0")
    if early: a(f"s_lshl_b32 s{sSlot}, s{sMem}, 1"); a(f"s_sub_u32 s{sSlot}, s{sSlot}, 1")
    else: a(f"s_sub_u32 s{sSlot}, s{sMem}, 1")
    a("s_waitcnt lgkmcnt(0)")
    a("s_barrier")
    if calp == 2: a("s_memrealtime s[72:73]")
    for k in range(7): a(f"ds_read_b32 v{KF + k}, v{vMla} offset:{256*k}")
    cm("wave 6 of the first workgroup stages the tree tile's probabilities (slot 18) now; it owns no tile of the first V round")
    a(f"s_mov_b32 s{sCur}, {18*8}"); a(f"s_mov_b32 s50, {L_TP - L_PS}")
    a(f"s_add_u32 s51, s{sW}, s{sMy}"); a("s_cmp_eq_u32 s51, 5")
    a("s_waitcnt lgkmcnt(0)")
    a(f"v_max3_f32 v{vMC}, v{KF}, v{KF+1}, v{KF+2}"); a(f"v_max3_f32 v{vMC}, v{vMC}, v{KF+3}, v{KF+4}"); a(f"v_max3_f32 v{vMC}, v{vMC}, v{KF+5}, v{KF+6}")
    a("s_cbranch_scc1 L_dump")
    lab("L_stage")
    cm("stage my tile of the coming round (tiles t0 .. t0+3; the closing half round is tiles 0, 1), if I own one")
    a(f"s_cmp_eq_u32 s{sCnt}, 1"); a(f"s_cselect_b32 s{sT0}, 0, s{sT0}"); a(f"s_cselect_b32 s{sLim}, 1, 3")
    a(f"s_add_u32 s50, s{sT0}, 6"); a(f"s_sub_u32 s50, s50, s{sWo}")
    a("s_mul_i32 s50, s50, 9363"); a("s_lshr_b32 s50, s50, 16")
    a(f"s_lshl_b32 s{sCur}, s50, 3")
    a(f"s_sub_u32 s50, s{sCur}, s50"); a(f"s_add_u32 s50, s50, s{sWo}"); a(f"s_sub_u32 s50, s50, s{sT0}")
    a(f"s_cmp_gt_u32 s50, s{sLim}"); a("s_cbranch_scc1 L_vnext")
    a(f"s_lshl_b32 s50, s50, 11"); a(f"s_add_u32 s50, s50, s{sBase}")
    lab("L_dump")
    a(f"s_lshl_b32 s51, s{sCur}, 4")
    a(f"v_add_u32 v{vT}, s51, v{vMIa}")
    a(f"ds_read_b32 v{vT}, v{vT}")
    a(f"v_add_u32 v{vU}, s50, v{vPa}")
    a("s_waitcnt lgkmcnt(0)")
    a(f"v_sub_f32 v{vT}, v{vMC}, v{vT}")
    a(f"v_min_f32 v{vT}, {f32(255.0)}, v{vT}")
    a(f"v_cvt_u32_f32 v{vT}, v{vT}")
    a(f"v_mul_u32_u24 v{vT}, 0x800080, v{vT}")
    a(f"s_set_gpr_idx_on s{sCur}, gpr_idx(SRC0)"); a("s_nop 0")
    for j in range(8): a(f"v_pk_sub_u16 v{DT+j}, v{PB+j}, v{vT} clamp")
    a("s_set_gpr_idx_off")
    a(f"ds_write_b128 v{vU}, {vr(DT, 4)}"); a(f"ds_write_b128 v{vU}, {vr(DT+4, 4)} offset:1024")
    lab("L_vnext")
    a(f"s_add_u32 s{sT0}, s{sT0}, 4"); a(f"s_cmp_eq_u32 s{sT0}, 130"); a(f"s_cselect_b32 s{sT0}, 2, s{sT0}")
    a(f"v_add_u32 v{vT}, s{sBuf}, v{vVa}"); a(f"v_add_u32 v{vU}, s{sBase}, v{vPa}")
    a(f"s_xor_b32 s{sBase}, s{sBase}, 8192")
    nextbuf()
    a(f"s_sub_u32 s{sCnt}, s{sCnt}, 1")
    a(f"s_cmp_gt_u32 s{sW}, 3")
    a("s_waitcnt lgkmcnt(0)")
    a("s_cbranch_scc1 L_vside")
    a(f"s_cmp_eq_u32 s{sCnt}, s{sSlot}"); a("s_cbranch_scc1 L_close")
    a(f"s_cmp_eq_u32 s{sCnt}, 0")
    if st6:
        a("s_memrealtime s[74:75]")
    a("s_barrier")
    if st6:
        a("s_memrealtime s[76:77]")
    lab("L_vbody")
    def vreads(t):
        for u in range(2):
            for z in range(2): a(f"ds_read_b64_tr_b16 {vr(VF + 8*t + 4*u + 2*z, 2)}, v{vT} offset:{8192*t + 4096*u + 2048*z}")
    def preads(t):
        for u in range(2): a(f"ds_read_b128 {vr(PF + 8*t + 4*u, 4)}, v{vU} offset:{2048*t + 1024*u}")
    def pvm(t):
        for u in range(2): a(f"v_mfma_f32_32x32x16_bf16 {vr(O0, 16)}, {vr(VF + 8*t + 4*u, 4)}, {vr(PF + 8*t + 4*u, 4)}, {vr(O0, 16)}")
    def grp(m):
        t, u = divmod(m, 2)
        a(f"ds_read_b128 {vr(PF + 8*t + 4*u, 4)}, v{vU} offset:{2048*t + 1024*u}")
        for z in range(2): a(f"ds_read_b64_tr_b16 {vr(VF + 8*t + 4*u + 2*z, 2)}, v{vT} offset:{8192*t + 4096*u + 2048*z}")
    def mf(m): a(f"v_mfma_f32_32x32x16_bf16 {vr(O0, 16)}, {vr(VF + 4*m, 4)}, {vr(PF + 4*m, 4)}, {vr(O0, 16)}")
    if fine:
        for m in range(4): grp(m)
        a("s_cbranch_scc1 L_last")
        for m in range(4):
            a("s_waitcnt lgkmcnt(9)"); mf(m); grp(m + 4)
        a(f"s_cmp_eq_u32 s{sCnt}, 1")
        for m in range(4, 8):
            a(f"s_waitcnt lgkmcnt({3 * (7 - m)})"); mf(m)
        a("s_cbranch_scc1 L_vnext")
        a(f"s_cmp_eq_u32 s{sCnt}, 20")
    else:
        preads(0); vreads(0); preads(1); vreads(1)
        a("s_waitcnt lgkmcnt(6)"); pvm(0)
        a("s_cbranch_scc1 L_last")
        preads(2); vreads(2)
        a("s_waitcnt lgkmcnt(6)"); pvm(1)
        preads(3); vreads(3)
        a("s_waitcnt lgkmcnt(6)"); pvm(2)
        a(f"s_cmp_eq_u32 s{sCnt}, 20")
        a("s_waitcnt lgkmcnt(0)"); pvm(3)
    a("s_cbranch_scc0 L_stage")
    cm("once: the sum L; the tree tile (keys 0..15 only)")
    for k in range(7): a(f"ds_read_b64 {vr(KF + 2*k, 2)}, v{vMla} offset:{256*k}")
    a(f"v_add_u32 v{vT}, {L_TV}, v{vVa}")
    a(f"ds_read_b128 {vr(PF, 4)}, v{vPa} offset:{L_TP - L_PS}")
    for z in range(2): a(f"ds_read_b64_tr_b16 {vr(PF + 4 + 2*z, 2)}, v{vT} offset:{2048*z}")
    a(f"s_cmp_lg_u32 s{sMem}, 0")
    a("s_waitcnt lgkmcnt(0)")
    for k in range(7): a(f"v_sub_f32 v{KF+2*k}, v{KF+2*k}, v{vMC}")
    for k in range(7): a(f"v_exp_f32 v{KF+2*k}, v{KF+2*k}")
    a(f"v_mul_f32 v{vL}, v{KF}, v{KF+1}")
    for k in range(1, 7): a(f"v_fma_f32 v{vL}, v{KF+2*k}, v{KF+2*k+1}, v{vL}")
    a("s_cbranch_scc1 L_stage")
    a(f"v_mfma_f32_32x32x16_bf16 {vr(O0, 16)}, {vr(PF + 4, 4)}, {vr(PF, 4)}, {vr(O0, 16)}")
    a("s_branch L_stage")

    lab("L_last")
    cm("=============== closing half round and hand-off")
    if calp == 3: a("s_memrealtime s[72:73]")
    PP, PM = 120, 136
    def addrs(r): a(f"v_lshlrev_b32 v{r}, 4, v{vLane}"); a(f"v_lshlrev_b32 v{r+1}, 3, v{vLane}"); a(f"v_add_u32 v{r+1}, 4096, v{r+1}")
    def fetch(r):
        a(f"buffer_load_dwordx2 {vr(PM, 2)}, v{r+1}, {SD}, 0 offen {hlf}")
        for x in range(4 - halfx): a(f"buffer_load_dwordx4 {vr(PP + 4*x, 4)}, v{r}, {SD}, 0 offen offset:{1024*x} {hlf}")
    addrs(DT + 2)
    a(f"s_cmp_lg_u32 s{sMem}, 0")
    if fine:
        a("s_cbranch_scc1 L_merge")
        cm("first workgroup: publish, then raise the flag")
        a(f"buffer_store_dwordx2 {vr(vMC, 2)}, v{DT+3}, {SD}, 0 offen {hsf}")
        for m in range(4): a(f"s_waitcnt lgkmcnt({3 * (3 - m)})"); mf(m)
        a("s_nop 11")
    else:
        a("s_waitcnt lgkmcnt(0)"); pvm(1)
        a("s_cbranch_scc1 L_merge")
        cm("first workgroup: publish, then raise the flag")
        a(f"buffer_store_dwordx2 {vr(vMC, 2)}, v{DT+3}, {SD}, 0 offen {hsf}")
        a("s_nop 9")
    for x in range(4 - halfx): a(f"buffer_store_dwordx4 {vr(O0 + 4*x, 4)}, v{DT+2}, {SD}, 0 offen offset:{1024*x} {hsf}")
    st(3)
    a("s_mov_b32 s50, 8")
    a(f"s_cmp_lg_u32 s{sW}, 0")
    a("s_waitcnt vmcnt(0)")
    st(4)
    a("s_barrier")
    st(5)
    a("s_cbranch_scc1 L_done")
    a("s_atomic_xor s50, s[66:67], 0")
    a("s_branch L_done")
    lab("L_close")
    cm("second workgroup: the rendezvous of its last full round also waits for wave 5 to have seen the flag; fetch the other result now")
    addrs(DT + 2)
    st(1)
    a("s_barrier")
    st(2)
    if calp == 5: a("s_memrealtime s[76:77]")
    if reh: lab("L_fetch")
    fetch(DT + 2)
    if early: a(f"s_cmp_eq_u32 s{sCnt}, 0")
    a("s_branch L_vbody")
    lab("L_merge")
    st(3); st(4)
    a(f"v_lshlrev_b32 v{DT+4}, 8, v{vR}"); a(f"v_lshl_add_u32 v{DT+4}, v{vH}, 4, v{DT+4}")
    FA, FB = 138, 140
    if fine:
        a("s_waitcnt lgkmcnt(9)"); mf(0)
        a("s_waitcnt lgkmcnt(6)"); mf(1)
        a("s_waitcnt lgkmcnt(3)"); mf(2)
        a("s_waitcnt lgkmcnt(0)"); mf(3)
        a("s_waitcnt vmcnt(0)")
        a(f"v_max_f32 v{vT}, v{vMC}, v{PM}")
        a(f"v_sub_f32 v{FA}, v{vMC}, v{vT}"); a(f"v_sub_f32 v{FB}, v{PM}, v{vT}")
        a(f"v_exp_f32 v{FA}, v{FA}"); a(f"v_exp_f32 v{FB}, v{FB}")
        a(f"v_mul_f32 v{vT}, v{FA}, v{vL}")
        a(f"v_fma_f32 v{vT}, v{FB}, v{PM+1}, v{vT}")
        a(f"v_rcp_f32 v{vT}, v{vT}")
        a("s_nop 0")
        a(f"v_mul_f32 v{FB}, v{FB}, v{vT}"); a(f"v_mul_f32 v{FA}, v{FA}, v{vT}")
        for b in range(2):
            for j in range(4*b, 4*b + 4): a(f"v_pk_mul_f32 {vr(PP+2*j, 2)}, {vr(PP+2*j, 2)}, {vr(FB, 2)} op_sel_hi:[1,0]")
            for j in range(4*b, 4*b + 4): a(f"v_pk_fma_f32 {vr(O0+2*j, 2)}, {vr(O0+2*j, 2)}, {vr(FA, 2)}, {vr(PP+2*j, 2)} op_sel_hi:[1,0,1]")
            for j in (0, 2, 1, 3): a(f"v_cvt_pk_bf16_f32 v{KF+4*b+j}, v{O0+8*b+2*j}, v{O0+8*b+2*j+1}")
            a(f"v_permlane32_swap_b32 v{KF+4*b}, v{KF+4*b+2}"); a("s_nop 0"); a(f"v_permlane32_swap_b32 v{KF+4*b+1}, v{KF+4*b+3}")
            a(f"buffer_store_dwordx4 {vr(KF+4*b, 4)}, v{DT+4}, {SO}, s69 offen offset:{32*b} {ofl}")
    else:
        a(f"s_waitcnt vmcnt({0 if halfx else 4})")
        a(f"v_max_f32 v{vT}, v{vMC}, v{PM}")
        a(f"v_sub_f32 v{FA}, v{vMC}, v{vT}"); a(f"v_sub_f32 v{FB}, v{PM}, v{vT}")
        a(f"v_exp_f32 v{FA}, v{FA}"); a(f"v_exp_f32 v{FB}, v{FB}")
        a(f"v_mul_f32 v{vT}, v{FA}, v{vL}")
        a(f"v_fma_f32 v{vT}, v{FB}, v{PM+1}, v{vT}")
        a(f"v_rcp_f32 v{vT}, v{vT}")
        a("s_nop 0")
        a(f"v_mul_f32 v{FA}, v{FA}, v{vT}"); a(f"v_mul_f32 v{FB}, v{FB}, v{vT}")
        for j in range(8): a(f"v_pk_mul_f32 {vr(O0+2*j, 2)}, {vr(O0+2*j, 2)}, {vr(FA, 2)} op_sel_hi:[1,0]")
        for b in range(2):
            a(f"s_waitcnt vmcnt({2 if b == 0 else 1})")
            if b == 1: st(5)
            for j in range(4*b, 4*b + 4): a(f"v_pk_fma_f32 {vr(O0+2*j, 2)}, {vr(PP+2*j, 2)}, {vr(FB, 2)}, {vr(O0+2*j, 2)} op_sel_hi:[1,0,1]")
            for j in (0, 2, 1, 3): a(f"v_cvt_pk_bf16_f32 v{KF+4*b+j}, v{O0+8*b+2*j}, v{O0+8*b+2*j+1}")
            a(f"v_permlane32_swap_b32 v{KF+4*b}, v{KF+4*b+2}"); a("s_nop 0"); a(f"v_permlane32_swap_b32 v{KF+4*b+1}, v{KF+4*b+3}")
            a(f"buffer_store_dwordx4 {vr(KF+4*b, 4)}, v{DT+4}, {SO}, s69 offen offset:{32*b} {ofl}")
    st(6)
    if reh: a(f"s_cmp_eq_u32 s{sW}, 6"); a("s_cbranch_scc1 L_stage")
    lab("L_done")
    if st6:
        a("s_waitcnt vmcnt(0)"); a("s_memrealtime s[86:87]"); a("s_waitcnt lgkmcnt(0)")
        a(f"s_lshl_b32 s50, s{sMem}, 2"); a("v_mov_b32 v20, s50")
        for i in range(1, 8): a(f"v_writelane_b32 v20, s{72+2*i}, {i}")
        a("s_lshl_b32 s50, s2, 2"); a(f"s_add_u32 s50, s50, s{sW}"); a("s_lshl_b32 s50, s50, 8"); a("s_add_u32 s50, s50, 0x200000")
        a(f"v_lshl_add_u32 v21, v{vLane}, 2, s50")
        a("global_store_dword v21, v20, s[52:53]")
    if cal:
        a(f"s_mov_b32 s74, {cal}")
        if calp >= 4: a("s_waitcnt vmcnt(0)"); a("s_memrealtime s[72:73]")
        if calp == 5:
            a("s_waitcnt lgkmcnt(0)"); a("s_sub_u32 s72, s72, s76"); a(f"s_mul_i32 s72, s72, s{sMem}")
            a("s_mul_i32 s72, s72, 20"); a("s_add_u32 s74, s74, s72"); a("s_min_u32 s74, s74, 30000")
        elif calp:
            a("s_waitcnt lgkmcnt(0)"); a("s_sub_u32 s72, s72, s54"); a(f"s_sub_u32 s72, s72, {(0, 0, 3000, 6500, 6500)[calp]}")
            a("s_mul_i32 s72, s72, 5"); a("s_add_u32 s74, s74, s72"); a("s_min_u32 s74, s74, 30000")
        lab("L_cal")
        a("s_memrealtime s[56:57]"); a("s_waitcnt lgkmcnt(0)"); a("s_sub_u32 s56, s56, s54"); a(f"s_cmp_lt_u32 s56, s74"); a("s_cbranch_scc1 L_cal")
    if stamp: stamp_out()
    lab("L_end")
    a("s_endpgm")

    if reh:
        lab("L_reh")
        cm("wave 7 of the second workgroup runs the closing code once ahead of time, through empty descriptors, so that it is in the instruction cache")
        a("s_mov_b32 s26, 0"); a("s_mov_b32 s34, 0")
        addrs(DT + 2)
        a("s_branch L_fetch")
    lab("L_vside")
    cm("waves 5..7 only stage")
    a(f"s_cmp_eq_u32 s{sCnt}, 0"); a("s_cbranch_scc1 L_end")
    a("s_barrier")
    if reh:
        a(f"s_lshl_b32 s50, s{sCnt}, 4"); a(f"s_add_u32 s50, s50, s{sW}"); a(f"s_add_u32 s50, s50, s{sMy}")
        a(f"s_cmp_eq_u32 s50, {reh * 16 + 14}"); a("s_cbranch_scc1 L_reh")
    a(f"s_cmp_lg_u32 s{sW}, 4"); a("s_cbranch_scc1 L_stage")
    a(f"s_cmp_eq_u32 s{sCnt}, 24"); a("s_cbranch_scc1 L_hsfin")
    a(f"s_add_u32 s50, s{sSlot}, 1"); a(f"s_cmp_lg_u32 s{sCnt}, s50"); a("s_cbranch_scc1 L_stage")
    cm("wave 5 of the second workgroup owns no tile of the last round and a half: it watches the word")
    if pk == "sv":
        a(f"s_mov_b32 s71, {NS}")
        lab("L_spoll")
        a("s_load_dword s50, s[66:67], 0 glc")
        a("s_waitcnt lgkmcnt(0)")
        a(f"s_xor_b32 s50, s50, s{sSnap}")
        a("s_bitcmp1_b32 s50, 3"); a("s_cbranch_scc1 L_seen")
        a("s_sub_u32 s71, s71, 1"); a("s_cbranch_scc0 L_spoll")
    a(f"s_mov_b32 s71, {BOUND}")
    lab("L_poll")
    if pk in ("v", "sv"):
        a(f"global_load_dword v{vU}, v{vZ}, s[66:67] sc1")
        a("s_sub_u32 s71, s71, 1"); a("s_cbranch_scc1 L_seen")
        a("s_waitcnt vmcnt(0)")
        a(f"v_readfirstlane_b32 s50, v{vU}")
    else:
        a("s_sub_u32 s71, s71, 1"); a("s_cbranch_scc1 L_seen")
        if pk == "s": a("s_load_dword s50, s[66:67], 0 glc")
        else: a("s_mov_b32 s50, 0"); a("s_atomic_or s50, s[66:67], 0 glc")
        a("s_waitcnt lgkmcnt(0)")
    a(f"s_xor_b32 s50, s50, s{sSnap}")
    a("s_bitcmp1_b32 s50, 3"); a("s_cbranch_scc0 L_poll")
    lab("L_seen")
    a("s_barrier")
    a("s_endpgm")

    cm("=============== out-of-line pieces of the K phase")
    lab("L_kbias")
    a(f"v_mfma_f32_32x32x16_bf16 {vr(S0, 16)}, {vr(KF, 4)}, {vr(Q0, 4)}, {vr(S0, 16)}")
    a("s_branch L_k1")
    lab("L_kidle")
    a(f"s_cmp_eq_u32 s{sW}, 4"); a("s_cbranch_scc1 L_hs")
    a(f"s_add_u32 s50, s{sW}, s{sMy}"); a("s_cmp_lg_u32 s50, 5"); a("s_cbranch_scc1 L_knext")
    a(f"s_cmp_eq_u32 s{sCnt}, 31"); a("s_cbranch_scc1 L_tree1")
    a(f"s_cmp_lg_u32 s{sCnt}, 29"); a("s_cbranch_scc1 L_knext")
    cm("tree tokens, step 2: score bias (1-mask) * -1e9 / scale, then the ordinary tile code")
    big = 1e9 * math.sqrt(128)
    TM = PB + 18 * 8
    a(f"s_mov_b32 s51, {f32(big)}")
    a(f"v_mov_b32 v{vU}, {f32(-big)}")
    for j in range(8, 16): a(f"v_mov_b32 v{S0+j}, 0xff800000")
    a("s_waitcnt vmcnt(0)")
    for j in range(4):
        a(f"v_lshlrev_b32 v{S0+2*j}, 16, v{TM+j}"); a(f"v_and_b32 v{S0+2*j+1}, 0xffff0000, v{TM+j}")
    for j in range(8): a(f"v_fma_f32 v{S0+j}, v{S0+j}, s51, v{vU}")
    a(f"s_mov_b32 s{sCur}, {18*8}"); a(f"s_mov_b32 s50, {L_TK}")
    a("s_branch L_ktile")
    lab("L_tree1")
    cm("tree tokens, step 1 (wave 6 of the first workgroup): K/V -> LDS, mask -> registers")
    k_offsets()
    a(f"s_lshl_b32 s45, s{sPair}, 12"); a("s_movk_i32 s51, 4096")
    a("s_add_u32 s20, s10, s45"); a("s_addc_u32 s21, s11, 0"); a("s_mov_b32 s22, 4096"); a("s_mov_b32 s23, 0x20000")
    a(f"s_mov_b32 m0, {L_TK}")
    a("s_add_u32 s28, s12, s45"); a("s_addc_u32 s29, s13, 0"); a("s_mov_b32 s30, 4096"); a("s_mov_b32 s31, 0x20000")
    for j in range(4): a(f"buffer_load_dwordx4 v{vOff[j]}, {SS}, 0 offen offset:{j*1024} {qfl} lds")
    a(f"s_mov_b32 m0, {L_TK + 4096}")
    a(f"s_lshr_b32 s50, s{sPair}, 4"); a("s_lshl_b32 s50, s50, 9")
    for j in range(4): a(f"buffer_load_dwordx4 v{vOff[j]}, {SS}, s51 offen offset:{j*1024} lds")
    v_offset()
    a(f"s_mov_b32 m0, {L_TV}")
    a("s_add_u32 s36, s14, s50"); a("s_addc_u32 s37, s15, 0"); a("s_mov_b32 s38, 512"); a("s_mov_b32 s39, 0x20000")
    for j in range(4): a(f"buffer_load_dwordx4 v{vOff[0]}, {SQ}, 0 offen offset:{j*1024} {qfl} lds")
    a(f"v_and_b32 v{vU}, 15, v{vR}"); a(f"v_lshlrev_b32 v{vU}, 5, v{vU}"); a(f"v_lshl_add_u32 v{vU}, v{vH}, 3, v{vU}")
    a(f"buffer_load_dwordx2 {vr(TM, 2)}, v{vU}, {SM}, 0 offen")
    a(f"buffer_load_dwordx2 {vr(TM+2, 2)}, v{vU}, {SM}, 0 offen offset:16")
    a("s_branch L_knext")
    cm("hand-off word: bit 0 started, bit 1 acknowledged, bit 3 result published; +8 for the second workgroup. Only changes")
    cm("against the value seen at my own start count, and nothing is published before both have taken that snapshot.")
    def hs_poll(again, done):
        a(f"global_load_dword v{vU}, v{vZ}, s[66:67] sc1")
        a("s_waitcnt vmcnt(0)")
        a(f"v_readfirstlane_b32 s50, v{vU}")
        a(f"s_xor_b32 s50, s50, s{sSnap}"); a(f"s_lshr_b32 s50, s50, s{sOt}")
        a("s_and_b32 s51, s50, 3"); a(f"s_cbranch_scc0 {again}")
        a(f"s_mov_b32 s{sSt}, 2")
        a("s_bitcmp1_b32 s50, 0"); a(f"s_cbranch_scc0 {done}")
        a(f"s_lshl_b32 s{sAck}, 2, s{sMy}"); a(f"s_atomic_xor s{sAck}, s[66:67], 0")
        a(f"s_branch {done}")
    lab("L_hs")
    if "v" in warm:
        a(f"s_cmp_gt_u32 s{sCnt}, 4"); a("s_cbranch_scc1 L_hs0")
        a(f"s_lshl_b32 s50, s{sPair}, 21"); a("s_add_u32 s50, s8, s50"); a("s_addc_u32 s51, s9, 0")
        a(f"global_load_dword v{vTmp[0]}, v{vZ}, s[50:51] nt")
        lab("L_hs0")
    a(f"s_cmp_eq_u32 s{sSt}, 2"); a("s_cbranch_scc1 L_knext")
    a(f"s_cmp_eq_u32 s{sLim}, 1"); a("s_cbranch_scc1 L_knext")
    hs_poll("L_knext", "L_knext")
    lab("L_hsfin")
    if "o" in warm: a(f"buffer_load_dword v{vTmp[0]}, v{vZ}, {SO}, s69 offen")
    a(f"s_mov_b32 s71, {BOUND}")
    lab("L_hsw")
    a(f"s_cmp_eq_u32 s{sSt}, 2"); a("s_cbranch_scc1 L_stage")
    a("s_sub_u32 s71, s71, 1"); a("s_cbranch_scc1 L_stage")
    hs_poll("L_hsw", "L_stage")
    check_hazards([x for x in L if not x.startswith(".")])
    out = HEADER + DOC + f"; @launch grid=(256,1,1) block=(512,1,1) lds={LDS}\n"
    out += '.amdgcn_target "amdgcn-amd-amdhsa--gfx950"\n.text\n' + f".globl {NAME}\n.p2align 8\n.type {NAME},@function\n{NAME}:\n"
    out += "\n".join(" ".join(x.split(" ")).rstrip().replace("  lds", " lds") for x in L) + "\n"
    out += '.section .rodata,"a"\n.p2align 6\n' + f".amdhsa_kernel {NAME}\n"
    out += f"  .amdhsa_next_free_vgpr 256\n  .amdhsa_next_free_sgpr 96\n  .amdhsa_accum_offset 256\n"
    out += "  .amdhsa_group_segment_fixed_size 0\n  .amdhsa_kernarg_size 72\n  .amdhsa_user_sgpr_count 2\n"
    out += "  .amdhsa_user_sgpr_kernarg_segment_ptr 1\n  .amdhsa_system_sgpr_workgroup_id_x 1\n.end_amdhsa_kernel\n"
    return out

if __name__ == "__main__":
    out = sys.argv[1]
    kw = {}
    for x in sys.argv[2:]:
        k, v = x.split("=", 1)
        if v in ("True", "False"): v = v == "True"
        else:
            try: v = int(v)
            except ValueError: pass
        kw[k] = v
    open(out, "w").write(gen(**kw))
```

```python
import sys, struct, math
from hz import check_hazards
NAME = "standalone__tree_speculative_verify_tree_attention_over_candidate_token_tree__sampling_kernel"
HEADER = open("standalone__tree_speculative_verify_tree_attention_over_candidate_token_tree__sampling.s.ref").read().split("; Override launch")[0]
DOC = """;
"""

def f32(x): return "0x%08x" % struct.unpack("<I", struct.pack("<f", x))[0]

def gen(levels="19,20,21,23,28,32", start=1, lmap="01111223", cps="4,10,16,22,28,34,40,45,50,54,57,59", SP=62, LH=32, jbits="12,13,14,11,10", mbit=16,
        stamp=False, fl="nt", prio=3, xat=12, st4=False, st6=False, cal=0, ofl="", WSOFF=0, BOUND=1 << 22, pre=False, LH0=0, SP2=0, spoll=0, boost=0, shalf=1, qfl="", hsf="sc1", hlf="sc1", R=8, rmap="011112223", rot=3, help="", hfl="", adj=1, warm="", calp=0, reh=0, halfx=0, trim=0, late=-1, LATE=59, lmap2="00111234", rmap2="001112344", gate="", hs=0, emu=0, st0=-1, st1=-1, early=1, pk="sv", fine=1, NS=16, CS=256, same=0, base=1, bfl="glc"):
    L = []
    def a(s): L.append("    " + s)
    def lab(s): L.append(s + ":")
    def cm(s): L.append("    ; " + s)
    def vr(b, n): return f"v[{b}:{b+n-1}]"
    RB = 32768
    L_PS = 3 * RB
    L_Q, L_TK = L_PS, L_PS + 8192
    L_MI = L_PS + 16384
    L_TV = L_MI + 17408
    L_TP = L_TV + 4096
    L_ML = L_TP + 2048
    LDS = L_ML + 2048
    W_WORD = WSOFF
    W_RANK = WSOFF + 65536
    W_DATA = WSOFF + (262144 if CS <= 256 else 1 << 20)
    PS = 18432 + (256 if adj else 0)
    vLane, vH, vR, vMIa = 96, 97, 98, 99
    vM, vMC, vL, vT, vU, vAL = 101, 102, 103, 1, 6, 7
    vTmp = [0, 100]
    Q0, KF, S0, vKrd, PB = 8, 40, 72, list(range(88, 96)), 104
    PF, VF, O0, DT = 8, 40, 72, 88
    vVa, vPa, vZ, vMla = 2, 3, 4, 5
    vOff = [40, 41, 42, 43]
    sPair, sMem, sK, sT, sBuf, sC, sCnt, sJ, sSlot, sCur, sBase, sW, sSnap, sSt, sMy, sOt = 40, 41, 42, 43, 44, 46, 47, 48, 49, 60, 61, 59, 62, 63, 64, 65
    sLim, sStep, sT0, sAck, sN, sWo = 68, 70, 48, 94, 95, 93
    SS, SQ, SO, SM, SD = "s[20:23]", "s[28:31]", "s[32:35]", "s[36:39]", "s[24:27]"
    c = (128 ** -0.5) * math.log2(math.e)
    jb = [int(x) for x in str(jbits).split(",")]
    def B(j): return sum(((j >> i) & 1) << b for i, b in enumerate(jb))
    maskR = sum(1 << b for b in range(10, 21) if b not in jb and b != mbit)
    lowR = (maskR & -maskR).bit_length() - 1
    lv = [float(x) for x in str(levels).split(",")]
    cp = [int(x) for x in str(cps).split(",")] if cps != "" else []
    assert len(cp) <= 16
    lm = [int(ch) for ch in str(lmap).zfill(8)]
    def st(n):
        if st6: a(f"s_memrealtime s[{72+2*n}:{73+2*n}]")

    def stamp_out():
        a("s_waitcnt vmcnt(0)")
        a("s_memrealtime s[56:57]")
        a("s_getreg_b32 s58, hwreg(HW_REG_XCC_ID)")
        a("s_waitcnt lgkmcnt(0)")
        a("v_mov_b32 v8, s54"); a("v_mov_b32 v9, s56"); a("v_mov_b32 v10, s58");  a("v_mov_b32 v11, 0")
        a("s_lshl_b32 s50, s2, 3"); a("s_add_u32 s50, s50, s3"); a("s_lshl_b32 s50, s50, 4")
        a("v_mov_b32 v12, s50")
        a("s_mov_b64 exec, 1")
        a("global_store_dwordx4 v12, v[8:11], s[52:53]")
    def ids():
        a(f"v_and_b32 v{vLane}, 63, v0")
        a(f"s_lshr_b32 s{sPair}, s2, 4"); a(f"s_lshl_b32 s{sPair}, s{sPair}, 3"); a("s_and_b32 s50, s2, 7"); a(f"s_or_b32 s{sPair}, s{sPair}, s50")
        a(f"s_bfe_u32 s{sMem}, s2, 0x10003")
    def k_offsets():
        cm("K-shaped DMA source offsets: row rr = lane>>4, slot p = lane&15 -> rr*256 + ((p ^ (4j+rr)) * 16)")
        a(f"v_lshlrev_b32 v{vTmp[0]}, 4, v{vLane}")
        a(f"v_and_b32 v{vTmp[1]}, 0x30, v{vLane}")
        a(f"v_xor_b32 v{vOff[0]}, v{vTmp[0]}, v{vTmp[1]}")
        for j in range(1, 4): a(f"v_xor_b32 v{vOff[j]}, {64*j}, v{vOff[0]}")
    def v_offset():
        cm("V DMA source offset: rr*256 + ((p ^ 4rr) * 16)")
        a(f"v_lshlrev_b32 v{vTmp[0]}, 4, v{vLane}")
        a(f"v_and_b32 v{vTmp[1]}, 0x30, v{vLane}")
        a(f"v_lshlrev_b32 v{vTmp[1]}, 2, v{vTmp[1]}")
        a(f"v_xor_b32 v{vOff[0]}, v{vTmp[0]}, v{vTmp[1]}")
    def nextbuf():
        a(f"s_add_u32 s{sBuf}, s{sBuf}, {RB}")
        a(f"s_cmp_eq_u32 s{sBuf}, {3*RB}"); a(f"s_cselect_b32 s{sBuf}, 0, s{sBuf}")

    a("s_load_dwordx16 s[4:19], s[0:1], 0")
    a("s_load_dwordx2 s[52:53], s[0:1], 64")
    if stamp or cal: a("s_memrealtime s[54:55]")
    a("v_readfirstlane_b32 s3, v0")
    a("s_cmp_ge_u32 s2, 256"); a("s_cbranch_scc1 L_end")
    if late >= 0:
        a("s_and_b32 s50, s2, 24"); a(f"s_cmp_lg_u32 s50, {late * 8}"); a("s_cbranch_scc1 L_notlate")
        a("s_mov_b32 s50, 60")
        lab("L_late"); a("s_sleep 100"); a("s_sub_u32 s50, s50, 1"); a("s_cbranch_scc0 L_late")
        lab("L_notlate")
    a("s_lshr_b32 s3, s3, 6")
    a("s_cbranch_scc1 L_cons")
    cm("=============== loader wave")
    if trim:
        a("s_lshr_b32 s50, s2, 4"); a("s_and_b32 s51, s2, 7"); a(f"s_lshl3_add_u32 s{sPair}, s50, s51")
        cm("K-shaped DMA source offsets: row rr = lane>>4, slot p = lane&15 -> rr*256 + ((p ^ (4j+rr)) * 16) + piece offset - j*1024")
        a("v_lshlrev_b32 v1, 4, v0"); a("v_and_b32 v2, 48, v0"); a(f"v_xor_b32 v{vOff[0]}, v1, v2")
        a(f"s_lshl_b32 s45, s{sPair}, 21"); a("s_and_b32 s46, s2, 8"); a(f"s_lshl_b32 s46, s46, {jb[4] - 3}"); a(f"s_or_b32 s46, s46, {maskR}")
        a("s_lshl_b32 s22, 1, 21"); a("s_mov_b32 s23, 0x20000")
        for j in range(1, 4): a(f"v_xor_b32 v{vOff[j]+4}, {64*j}, v{vOff[0]}"); a(f"v_add_u32 v{vOff[j]}, {B(j) - 1024*j}, v{vOff[j]+4}")
        a(f"s_mov_b32 s{sBuf}, 0"); a(f"s_mov_b32 s{sCnt}, 0")
    else:
        if prio: a(f"s_setprio {prio}")
        ids(); k_offsets()
        for j in range(1, 4):
            assert B(j) >= 1024*j
            a(f"v_mov_b32 v{vOff[j]+4}, v{vOff[j]}")
            a(f"v_add_u32 v{vOff[j]}, {B(j) - 1024*j}, v{vOff[j]}")
        a(f"s_lshl_b32 s50, s{sPair}, 13"); a("s_mov_b32 s30, 8192"); a("s_mov_b32 s31, 0x20000"); a("s_movk_i32 s51, 4096")
        a(f"s_lshl_b32 s45, s{sPair}, 21")
        a("s_mov_b32 s22, 0x200000"); a("s_mov_b32 s23, 0x20000")
        a(f"s_mul_i32 s46, s{sMem}, {B(16)}"); a(f"s_add_u32 s46, s46, {maskR}")
        a(f"s_mov_b32 s{sBuf}, 0"); a(f"s_mov_b32 s{sCnt}, 0")
    def vm(x, n):
        lo = int(x); fr = x - lo
        return lo + (1 if (n % 16) < fr * 16 else 0) - 1
    def half(x):
        for g in range(6 if emu else 4):
            if emu and g == 4: a("s_bitcmp1_b32 s2, 3"); a("s_cbranch_scc1 L_hx")
            a(f"s_add_u32 m0, s{sBuf}, {g*4096}"); a(f"s_add_u32 s{sT}, s46, {B(4*g)}")
            for j in range(4):
                if x: a(f"s_waitcnt vmcnt({vm(x, 0)})")
                a(f"buffer_load_dwordx4 v{vOff[j]}, {SS}, s{sT} offen offset:{j*1024} {fl} lds")
    a("s_waitcnt lgkmcnt(0)")
    a("s_add_u32 s20, s6, s45"); a("s_addc_u32 s21, s7, 0")
    if shalf:
        lab("L_half")
        cm("opening (K) and closing (V) half round: the two workgroups split the first one's round 31")
        half(float(LH))
        if emu: lab("L_hx")
        a(f"s_cmp_lg_u32 s{sCnt}, 0"); a("s_cbranch_scc1 " + ("L_hret" if hs else "L_h2"))
    else: half(0)
    if trim:
        a(f"s_lshl_b32 s50, s{sPair}, 13"); a("s_movk_i32 s30, 8192"); a("s_mov_b32 s31, 0x20000"); a("s_movk_i32 s51, 4096")
    a(f"s_mov_b32 m0, {L_Q}"); a("s_add_u32 s28, s4, s50"); a("s_addc_u32 s29, s5, 0")
    for j in range(4): a(f"buffer_load_dwordx4 v{vOff[j] + (4 if j else 0)}, {SQ}, 0 offen offset:{j*1024} {qfl} lds")
    a(f"s_mov_b32 m0, {L_Q + 4096}"); a("s_nop 0")
    for j in range(4): a(f"buffer_load_dwordx4 v{vOff[j] + (4 if j else 0)}, {SQ}, s51 offen offset:{j*1024} {qfl} lds")
    if trim:
        if prio: a(f"s_setprio {prio}")
        a(f"s_bfe_u32 s{sMem}, s2, 0x10003"); a(f"v_mov_b32 v{vLane}, v0")
    cm("rounds at which something besides streaming is due: a progress check, its result, the switch to V, the sprint, the end")
    def evm(n): return sum(1 << (r - 1) for r in set(cp) | set(r + 1 for r in cp) | {n, 2 * n} | ({SP} if SP < 2 * n else set()) | ({SP2} if SP2 else set()) | ({boost} if boost else set()) | (set(range(SP - 3, 64)) if gate != "" else set()))
    cpm = sum(1 << r for r in cp)
    a(f"s_lshl_b32 s48, s{sMem}, {mbit}"); a(f"s_mov_b32 s{sK}, s48"); a(f"s_mov_b32 s{sBuf}, {RB}")
    a(f"s_add_u32 s{sN}, s{sMem}, 31"); a(f"s_add_u32 s49, s{sN}, 1")
    a(f"s_mov_b32 s84, {(evm(31) | evm(32)) & 0xffffffff:#x}"); a(f"s_mov_b32 s85, {(evm(31) | evm(32)) >> 32:#x}")
    a(f"s_mov_b32 s86, {cpm & 0xffffffff:#x}"); a(f"s_mov_b32 s87, {cpm >> 32:#x}")
    a(f"s_mov_b32 s88, {start}"); a("s_and_b32 s90, s2, 7")
    if R == 32: a("s_lshr_b32 s89, s2, 4")
    if R == 32: a(f"s_lshl_b32 s91, s{sMem}, 8"); a(f"s_add_u32 s91, s91, {W_RANK}")
    else: a(f"s_mov_b32 s91, {W_RANK}"); a("s_lshr_b32 s89, s2, 3"); a("s_lshl_b32 s90, s90, 2"); a(f"s_add_u32 s90, s90, {rot}")
    a("s_mov_b32 s92, -1")
    def nextctr():
        per = 32 // R
        cm("the next check's counter and the value it holds before anyone counts in")
        a(f"s_and_b32 s50, s89, {32 - per}"); a(f"s_mul_i32 s50, s50, {CS // per}"); a("s_add_u32 s50, s50, s91")
        a("s_add_u32 s98, s52, s50"); a("s_addc_u32 s99, s53, 0")
        a(f"s_add_u32 s91, s91, {CS * R}")
        a(f"s_load_dword s97, s[98:99], 0 {bfl}")
    if base: nextctr()
    if st4: a("s_mov_b32 s74, 0"); a("v_mov_b32 v20, 0"); a("v_mov_b32 v21, 0"); a("v_mov_b32 v22, 0")
    def rnd(x, sfx):
        bar_at = min(n for n in range(32) if vm(x, n) <= n)
        for g in range(8):
            if 4 * g == xat:
                a(f"s_cmp_lg_u32 s{sCnt}, s49"); a(f"s_cbranch_scc1 L_nx{sfx}")
                if st4: a("s_memrealtime s[76:77]")
                a("s_barrier")
                if st4: a("s_memrealtime s[78:79]")
                lab("L_nx" + sfx)
            a(f"s_add_u32 m0, s{sBuf}, {g*4096}"); a(f"s_add_u32 s{sT}, s{sK}, {B(4*g)}")
            for j in range(4):
                n = 4 * g + j
                a(f"s_waitcnt vmcnt({vm(x, n)})")
                a(f"buffer_load_dwordx4 v{vOff[j]}, {SS}, s{sT} offen offset:{j*1024} {fl} lds")
                if n == bar_at:
                    if st4: a("s_memrealtime s[70:71]")
                    a("s_barrier")
                    if st4: a("s_memrealtime s[72:73]")
    if st0 >= 0:
        a(f"s_cmp_eq_u32 s{sMem}, 0"); a(f"s_cselect_b32 s88, {st0}, {st1}"); a(f"s_cbranch_scc1 L_lv{st0}"); a(f"s_branch L_lv{st1}")
    order = [start] + [i for i in range(len(lv)) if i != start]
    if hs: order = order[:-1]
    if boost: order = [order[-1]] + order[:-1]
    for i in order:
        lab(f"L_lv{i}")
        cm(f"one round with {lv[i]:g} pieces in flight")
        rnd(lv[i], str(i))
        cm("next round: the source offset counts through the address bits a round leaves fixed; buffers rotate mod 3")
        nextbuf()
        if st4:
            a("s_waitcnt lgkmcnt(0)"); a("s_mov_b32 m0, s74"); a("s_add_u32 s74, s74, 1")
            a("v_writelane_b32 v20, s70, m0"); a("v_writelane_b32 v21, s72, m0")
        a(f"s_or_b32 s{sK}, s{sK}, {(~maskR) & 0xffffffff:#x}"); a(f"s_add_u32 s{sK}, s{sK}, 1"); a(f"s_and_b32 s{sK}, s{sK}, {maskR:#x}")
        a(f"s_or_b32 s{sK}, s{sK}, s48")
        a(f"s_add_u32 s50, s{sCnt}, 1")
        a(f"s_bitcmp1_b64 s[84:85], s{sCnt}"); a(f"s_mov_b32 s{sCnt}, s50")
        a(f"s_cbranch_scc0 L_lv{i}")
        if i != order[-1]: a("s_branch L_event")
    lab("L_event")
    if emu: a(f"s_cmp_eq_u32 s{sCnt}, 64"); a("s_cbranch_scc1 L_h3")
    a(f"s_lshl_b32 s50, s{sN}, 1"); a(f"s_cmp_eq_u32 s{sCnt}, s50")
    if hs: a("s_cselect_b32 s92, 0, s92")
    a("s_cbranch_scc1 " + ("L_half" if shalf else "L_ldfin"))
    a(f"s_cmp_lg_u32 s{sCnt}, s{sN}"); a("s_cbranch_scc1 L_nosw")
    cm("K is done, go on with V (the second workgroup, one round behind by now, starts at round 1 to stay beside the first)")
    a("s_add_u32 s20, s8, s45"); a("s_addc_u32 s21, s9, 0")
    a(f"s_lshl_b32 s{sK}, s{sMem}, {lowR}"); a(f"s_or_b32 s{sK}, s{sK}, s48")
    v_offset()
    for j in range(1, 4): a(f"v_add_u32 v{vOff[j]}, {B(j) - 1024*j}, v{vOff[0]}")
    lab("L_nosw")
    if cp:
        cm("load balance: at each check eight workgroups per counter count themselves in and 24 read the count;")
        cm("the later a workgroup came, the more it keeps in flight until the next check")
        a(f"s_cmp_lg_u32 s{sCnt}, s92"); a("s_cbranch_scc1 L_noapply")
        a("s_waitcnt lgkmcnt(0)")
        if R == 32:
            word = sum(v << (4 * i) for i, v in enumerate(lm))
            a("s_min_u32 s93, s93, 7"); a("s_lshl_b32 s93, s93, 2")
            a(f"s_lshr_b32 s93, {word:#x}, s93"); a("s_and_b32 s88, s93, 15")
            lab("L_noapply")
            a(f"s_bitcmp1_b64 s[86:87], s{sCnt}"); a("s_cbranch_scc0 L_nocp")
            a("s_and_b32 s50, s89, 15"); a("s_lshl_b32 s50, s50, 9"); a("s_add_u32 s50, s50, s91")
            a("s_add_u32 s66, s52, s50"); a("s_addc_u32 s67, s53, 0")
            a("s_mov_b32 s93, 1"); a("s_atomic_add s93, s[66:67], 0 glc")
            a("s_add_u32 s91, s91, 8192"); a("s_add_u32 s89, s89, s90"); a(f"s_add_u32 s92, s{sCnt}, 1")
        else:
            per = 32 // R
            rm = [int(ch) for ch in str(rmap).zfill(9)]
            w1 = sum(v << (3 * i) for i, v in enumerate(lm + lm[-1:])); w2 = sum(v << (3 * i) for i, v in enumerate(rm))
            if base: a("s_sub_u32 s93, s93, s96")
            a("s_min_u32 s93, s93, 8"); a("s_mul_i32 s93, s93, 3")
            a("s_lshr_b32 s93, s94, s93"); a("s_and_b32 s88, s93, 7")
            lab("L_noapply")
            a(f"s_bitcmp1_b64 s[86:87], s{sCnt}"); a("s_cbranch_scc0 L_nocp")
            if base:
                a("s_waitcnt lgkmcnt(0)")
                a("s_mov_b64 s[66:67], s[98:99]"); a("s_mov_b32 s96, s97"); a(f"s_add_u32 s92, s{sCnt}, 1")
            else:
                a(f"s_and_b32 s50, s89, {32 - per}"); a(f"s_mul_i32 s50, s50, {CS // per}"); a("s_add_u32 s50, s50, s91")
                a("s_add_u32 s66, s52, s50"); a("s_addc_u32 s67, s53, 0")
                a(f"s_add_u32 s91, s91, {4 if same else CS * R}"); a(f"s_add_u32 s92, s{sCnt}, 1")
            a(f"s_and_b32 s50, s89, {per - 1}"); a("s_cbranch_scc1 L_reader")
            def pick(w, m2, n):
                a(f"s_mov_b32 s94, {w:#x}")
                if LATE:
                    d = [int(ch) for ch in str(m2).zfill(n)]; d = (d + d[-1:])[:9]
                    a(f"s_cmp_ge_u32 s{sCnt}, {LATE}"); a(f"s_cselect_b32 s94, {sum(v << (3 * i) for i, v in enumerate(d)):#x}, s94")
            a("s_mov_b32 s93, 1"); a("s_atomic_add s93, s[66:67], 0 glc"); pick(w1, lmap2, 8)
            a("s_branch L_rot")
            lab("L_reader")
            a("s_load_dword s93, s[66:67], 0 glc"); pick(w2, rmap2, 9)
            lab("L_rot")
            a("s_add_u32 s89, s89, s90")
            if base: nextctr()
        lab("L_nocp")
    if gate != "":
        gw = sum(int(ch) << (4 * i) for i, ch in enumerate(str(gate).zfill(len(lv) - 1)))
        a("s_lshl_b32 s50, s88, 2"); a(f"s_lshr_b32 s50, {gw:#x}, s50"); a("s_and_b32 s50, s50, 15"); a(f"s_add_u32 s50, s50, s{sCnt}")
        a(f"s_mul_i32 s50, s50, s{sMem}")
    else: a(f"s_mul_i32 s50, s{sCnt}, s{sMem}")
    a(f"s_cmp_ge_u32 s50, {SP}"); a("s_cbranch_scc1 " + ("L_spr" if hs else f"L_lv{len(lv) - 1}"))
    if SP2: a(f"s_cmp_ge_u32 s50, {SP2}"); a(f"s_cbranch_scc1 L_lv{len(lv) - 2}")
    for i in [x for x in range(len(lv)) if x != start and str(x) in (str(lmap).zfill(8) + str(rmap).zfill(9) + str(lmap2) + str(rmap2))]:
        a(f"s_cmp_eq_u32 s88, {i}"); a(f"s_cbranch_scc1 L_lv{i}")
    a(f"s_branch L_lv{start}")
    if hs:
        lab("L_hret")
        a("s_sub_u32 s92, s92, 1"); a("s_cbranch_scc1 L_h2")
        a("s_bitcmp1_b32 s92, 0"); a("s_cbranch_scc0 L_sprn")
        a(f"s_add_u32 s46, s46, {B(16)}"); a(f"s_add_u32 s{sBuf}, s{sBuf}, {RB // 2}")
        a("s_branch L_half")
        lab("L_sprn")
        if st4: a("s_memrealtime s[70:71]")
        a("s_barrier")
        if st4:
            a("s_memrealtime s[72:73]")
            a("s_waitcnt lgkmcnt(0)"); a("s_mov_b32 m0, s74"); a("s_add_u32 s74, s74, 1")
            a("v_writelane_b32 v20, s70, m0"); a("v_writelane_b32 v21, s72, m0")
        a(f"s_add_u32 s{sBuf}, s{sBuf}, {RB // 2}")
        a(f"s_cmp_eq_u32 s{sBuf}, {3*RB}"); a(f"s_cselect_b32 s{sBuf}, 0, s{sBuf}")
        a(f"s_or_b32 s{sK}, s{sK}, {(~maskR) & 0xffffffff:#x}"); a(f"s_add_u32 s{sK}, s{sK}, 1"); a(f"s_and_b32 s{sK}, s{sK}, {maskR:#x}")
        a(f"s_or_b32 s{sK}, s{sK}, s48")
        a("s_cmp_eq_u32 s92, 0"); a(f"s_cselect_b32 s46, s91, s{sK}")
        a("s_branch L_half")
        lab("L_spr")
        a("s_mov_b32 s91, s46"); a(f"s_mov_b32 s46, s{sK}")
        a(f"s_sub_u32 s92, 64, s{sCnt}"); a("s_lshl_b32 s92, s92, 1")
        a("s_branch L_half")
    if not shalf: lab("L_ldfin")
    if LH0:
        a(f"s_cmp_lg_u32 s{sMem}, 0"); a("s_cbranch_scc1 L_h1")
        half(float(LH0))
        a("s_branch L_h2")
        lab("L_h1")
    if not shalf: half(float(LH))
    lab("L_h2")
    if help:
        tiles = [(1 << mbit) + B(8*t) for t in range(4)] + [maskR + B(16) + B(8*t) for t in range(2)]
        h0, h1, h2 = [[int(ch) for ch in x] for x in str(help).split("-")]
        a(f"s_cmp_lg_u32 s{sMem}, 0"); a("s_cbranch_scc1 L_nohelp")
        cm("first workgroup: pull the second one's last tiles into the L2 the two normally share (speed only)")
        a(f"v_and_b32 v50, 7, v{vLane}"); a("v_lshlrev_b32 v50, 7, v50")
        for i in range(3): a(f"v_bfe_u32 v51, v{vLane}, {3+i}, 1"); a(f"v_lshl_add_u32 v50, v51, {jb[i]}, v50")
        def pf(ts):
            for t in ts: a(f"s_mov_b32 s50, {tiles[t]}"); a(f"buffer_load_dword v{52+t}, v50, {SS}, s50 offen {hfl}")
        if h0: a("s_waitcnt vmcnt(24)")
        pf(h0)
        a(f"s_waitcnt vmcnt({16 + len(h0)})"); a("s_barrier")
        pf(h1)
        a(f"s_waitcnt vmcnt({len(h0) + len(h1)})"); a("s_barrier")
        pf(h2)
        a("s_barrier")
        if stamp: a("s_branch L_lst")
        else: a("s_endpgm")
        lab("L_nohelp")
    a(f"s_waitcnt vmcnt({24 if emu else 16})"); a("s_barrier")
    if emu: lab("L_h3")
    a("s_waitcnt vmcnt(0)")
    if st4: a("s_memrealtime s[80:81]")
    a("s_barrier")
    if st4:
        a("s_memrealtime s[82:83]"); a("s_waitcnt lgkmcnt(0)")
        for i, r in enumerate((54, 76, 78, 80, 82)): a(f"v_writelane_b32 v22, s{r}, {i}")
        a("s_lshl_b32 s50, s2, 10"); a("s_add_u32 s50, s50, 0x200000")
        a(f"v_lshl_add_u32 v4, v{vLane}, 2, s50")
        a("global_store_dword v4, v20, s[52:53]"); a("global_store_dword v4, v21, s[52:53] offset:256"); a("global_store_dword v4, v22, s[52:53] offset:512")
    if help: lab("L_lst")
    if stamp: stamp_out()
    a("s_endpgm")

    L.append(".p2align 6")
    lab("L_cons")
    cm("=============== consumers")
    ids()
    a(f"s_sub_u32 s{sW}, s3, 1")
    a(f"v_lshrrev_b32 v{vH}, 5, v{vLane}")
    a(f"v_and_b32 v{vR}, 31, v{vLane}")
    a(f"s_lshl_b32 s{sMy}, s{sMem}, 3"); a(f"s_xor_b32 s{sOt}, s{sMy}, 8")
    if adj: a(f"s_mul_i32 s50, s{sPair}, {PS}"); a(f"s_add_u32 s50, s50, {W_DATA + 18432}")
    else: a(f"s_lshl_b32 s50, s{sPair}, 8"); a(f"s_add_u32 s50, s50, {W_WORD}")
    if not base: a(f"s_cmp_lg_u32 s{sW}, 3")
    a("s_waitcnt lgkmcnt(0)")
    if not base:
        a("s_cbranch_scc1 L_noq")
        cm("wave 4 clears this workgroup's share of the arrival counters")
        a(f"s_mul_i32 s45, s2, {CS}")
    if cp and not base:
        a(f"s_add_u32 s45, s45, {W_RANK}")
        a(f"v_lshl_add_u32 v{vT}, v{vLane}, {2 if same else 16}, s45"); a(f"v_mov_b32 v{vU}, 0")
        if same:
            a(f"s_cmp_ge_u32 s2, {R}"); a("s_cbranch_scc1 L_noq"); a("s_mov_b32 exec_hi, 0")
        elif R * len(cp) <= 256:
            a(f"s_cmp_ge_u32 s2, {R * len(cp)}"); a("s_cbranch_scc1 L_noq"); a("s_mov_b64 exec, 1")
        else:
            a(f"s_cmp_lt_u32 s2, {max(0, R * len(cp) - 256)}"); a("s_cselect_b32 exec_lo, 3, 1"); a("s_mov_b32 exec_hi, 0")
        a(f"global_store_dword v{vT}, v{vU}, s[52:53] sc1")
        a("s_mov_b64 exec, -1")
    if not base: lab("L_noq")
    a("s_add_u32 s66, s52, s50"); a("s_addc_u32 s67, s53, 0")
    a(f"s_cmp_lg_u32 s{sW}, 4"); a("s_cbranch_scc1 L_nohs")
    a(f"s_lshl_b32 s{sSnap}, 1, s{sMy}"); a(f"s_atomic_xor s{sSnap}, s[66:67], 0 glc")
    lab("L_nohs")
    cm("LDS read addresses for K-shaped tiles: r*256 + ((h ^ (r&15)) ^ 2s)*16, first pointing at Q")
    a(f"v_and_b32 v{vT}, 15, v{vR}")
    a(f"v_xor_b32 v{vT}, v{vT}, v{vH}")
    a(f"v_lshlrev_b32 v{vT}, 4, v{vT}")
    a(f"v_lshl_add_u32 v{vT}, v{vR}, 8, v{vT}")
    a(f"v_add_u32 v{vKrd[0]}, {L_Q}, v{vT}")
    for s in range(1, 8): a(f"v_xor_b32 v{vKrd[s]}, {32*s}, v{vKrd[0]}")
    cm("transposing V reads of column block w: row = 4h + r', chunk = (4w + 2gg + (c>>1)) ^ 4r', + 8*(c&1)")
    a(f"v_bfe_u32 v{vU}, v{vLane}, 2, 2")
    a(f"v_lshl_add_u32 v{vT}, v{vH}, 2, v{vU}")
    a(f"v_lshlrev_b32 v{vVa}, 8, v{vT}")
    a(f"v_xor_b32 v{vU}, s{sW}, v{vU}"); a(f"v_and_b32 v{vU}, 3, v{vU}")
    a(f"v_lshl_add_u32 v{vVa}, v{vU}, 6, v{vVa}")
    a(f"v_and_b32 v{vU}, 3, v{vLane}")
    a(f"v_lshl_add_u32 v{vVa}, v{vU}, 3, v{vVa}")
    a(f"v_and_b32 v{vU}, 16, v{vLane}")
    a(f"v_lshl_add_u32 v{vVa}, v{vU}, 1, v{vVa}")
    a(f"v_lshlrev_b32 v{vPa}, 4, v{vLane}"); a(f"v_add_u32 v{vPa}, {L_PS}, v{vPa}")
    a(f"v_mov_b32 v{vZ}, 0")
    a(f"v_lshlrev_b32 v{vMla}, 3, v{vR}"); a(f"v_add_u32 v{vMla}, {L_ML}, v{vMla}")
    a(f"s_mov_b32 s{sBase}, {L_Q}"); a(f"s_mov_b32 s{sC}, {f32(c)}"); a(f"s_add_u32 s{sCnt}, s{sMem}, 32")
    a(f"s_add_u32 s{sWo}, s{sW}, 2"); a(f"s_sub_u32 s50, s{sWo}, 7"); a(f"s_cselect_b32 s{sWo}, s{sWo}, s50")
    a(f"s_mov_b32 s{sBuf}, 0"); a(f"s_mov_b32 s{sJ}, s{sWo}"); a(f"s_mov_b32 s{sSlot}, 0"); a(f"s_mov_b32 s{sSt}, 0")
    a(f"s_mov_b32 s{sLim}, 1"); a(f"s_mov_b32 s{sStep}, 5")
    a(f"s_mul_i32 s50, s{sW}, {19*128}"); a(f"s_add_u32 s50, s50, {L_MI}")
    a(f"v_lshl_add_u32 v{vMIa}, v{vR}, 2, s50")
    a(f"v_mov_b32 v{vL}, 0"); a(f"v_mov_b32 v{vM}, {f32(-3.0e38)}"); a(f"v_mov_b32 v{vMC}, v{vM}")
    a(f"s_mul_i32 s50, s{sPair}, {PS}"); a(f"s_mul_i32 s51, s{sW}, 4608"); a("s_add_u32 s50, s50, s51"); a(f"s_add_u32 s50, s50, {W_DATA}")
    a("s_add_u32 s24, s52, s50"); a("s_addc_u32 s25, s53, 0"); a("s_movk_i32 s26, 4608"); a("s_mov_b32 s27, 0x20000")
    a("s_mov_b32 s32, s16"); a("s_mov_b32 s33, s17"); a("s_mov_b32 s34, 0x100000"); a("s_mov_b32 s35, 0x20000")
    a(f"s_lshl_b32 s50, s{sPair}, 13"); a(f"s_lshl_b32 s51, s{sW}, 6"); a("s_add_u32 s69, s50, s51")
    a("s_barrier")
    if calp == 1: a("s_memrealtime s[72:73]")
    for s in range(8): a(f"ds_read_b128 {vr(Q0 + 4*s, 4)}, v{vKrd[s]}")
    a("s_waitcnt lgkmcnt(0)")
    a("s_branch L_kgo")
    lab("L_kr")
    a("s_barrier")
    lab("L_kgo")
    a(f"s_cmp_gt_u32 s{sJ}, s{sLim}"); a("s_cbranch_scc1 L_kidle")
    a(f"s_lshl_b32 s50, s{sJ}, 13"); a(f"s_add_u32 s50, s50, s{sBuf}")
    a(f"s_mov_b32 s{sCur}, s{sSlot}"); a(f"s_add_u32 s{sSlot}, s{sSlot}, 8")
    lab("L_ktile")
    a(f"s_sub_u32 s51, s50, s{sBase}"); a(f"s_mov_b32 s{sBase}, s50")
    for s in range(8):
        a(f"v_add_u32 v{vKrd[s]}, s51, v{vKrd[s]}")
        a(f"ds_read_b128 {vr(KF + 4*s, 4)}, v{vKrd[s]}")
    a(f"s_lshl_b32 s50, s{sCur}, 4")
    a(f"v_add_u32 v{vTmp[1]}, s50, v{vMIa}")
    a(f"s_cmp_gt_u32 s{sJ}, 3")
    a("s_waitcnt lgkmcnt(7)")
    a("s_cbranch_scc1 L_kbias")
    a(f"v_mfma_f32_32x32x16_bf16 {vr(S0, 16)}, {vr(KF, 4)}, {vr(Q0, 4)}, 0")
    lab("L_k1")
    for s in range(1, 8):
        a(f"s_waitcnt lgkmcnt({7-s})")
        a(f"v_mfma_f32_32x32x16_bf16 {vr(S0, 16)}, {vr(KF + 4*s, 4)}, {vr(Q0 + 4*s, 4)}, {vr(S0, 16)}")
    a("s_nop 11")
    cm("online softmax; the reference is the running maximum rounded up to a whole power of two")
    a(f"v_max3_f32 v{vT}, v{S0}, v{S0+1}, v{vM}")
    a(f"v_max3_f32 v{vU}, v{S0+2}, v{S0+3}, v{S0+4}")
    for j in range(5, 15, 4):
        a(f"v_max3_f32 v{vT}, v{S0+j}, v{S0+j+1}, v{vT}")
        if j + 3 < 15: a(f"v_max3_f32 v{vU}, v{S0+j+2}, v{S0+j+3}, v{vU}")
    a(f"v_max3_f32 v{vT}, v{S0+15}, v{vU}, v{vT}")
    a(f"v_mov_b32 v{vU}, v{vT}")
    a("s_nop 1")
    a(f"v_permlane32_swap_b32 v{vT}, v{vU}")
    a(f"v_max_f32 v{vM}, v{vT}, v{vU}")
    a(f"v_mul_f32 v{vT}, s{sC}, v{vM}")
    a(f"v_ceil_f32 v{vT}, v{vT}")
    a(f"v_sub_f32 v{vAL}, v{vMC}, v{vT}")
    a(f"v_mov_b32 v{vMC}, v{vT}")
    a(f"ds_write_b32 v{vTmp[1]}, v{vT}")
    a(f"v_exp_f32 v{vAL}, v{vAL}")
    for j in range(16): a(f"v_fma_f32 v{S0+j}, v{S0+j}, s{sC}, -v{vMC}")
    for j in range(16): a(f"v_exp_f32 v{S0+j}, v{S0+j}")
    a(f"v_mul_f32 v{vL}, v{vL}, v{vAL}")
    a(f"s_set_gpr_idx_on s{sCur}, gpr_idx(DST)"); a("s_mov_b32 s50, 0x3f803f80")
    for j in range(8): a(f"v_cvt_pk_bf16_f32 v{PB+j}, v{S0+2*j}, v{S0+2*j+1}")
    a(f"s_set_gpr_idx_on s{sCur}, gpr_idx(SRC0)"); a("s_nop 0")
    for j in range(8): a(f"v_dot2_f32_bf16 v{vL}, v{PB+j}, s50, v{vL}")
    a("s_set_gpr_idx_off")
    lab("L_knext")
    a(f"s_add_u32 s{sJ}, s{sJ}, s{sStep}"); a(f"s_sub_u32 s50, s{sJ}, 7"); a(f"s_cselect_b32 s{sJ}, s{sJ}, s50")
    a(f"s_mov_b32 s{sLim}, 3"); a(f"s_mov_b32 s{sStep}, 3")
    nextbuf()
    a(f"s_sub_u32 s{sCnt}, s{sCnt}, 1"); a(f"s_cmp_lg_u32 s{sCnt}, 0"); a("s_cbranch_scc1 L_kr")

    cm("=============== between K and V: common reference M and sum L of this workgroup")
    a(f"v_mov_b32 v{vU}, v{vL}")
    a(f"s_lshl_b32 s50, s{sW}, 8")
    a(f"v_add_u32 v{vT}, s50, v{vMla}")
    a(f"v_permlane32_swap_b32 v{vL}, v{vU}")
    a(f"v_add_f32 v{vL}, v{vL}, v{vU}")
    a(f"ds_write_b64 v{vT}, {vr(vMC, 2)}")
    for j in range(0, 16, 2): a(f"v_mov_b64 {vr(O0+j, 2)}, 0")
    a(f"s_lshl_b32 s{sT0}, s{sMem}, 2"); a(f"s_add_u32 s{sT0}, s{sT0}, 2")
    if emu: a(f"s_mov_b32 s{sCnt}, 32")
    else: a(f"s_add_u32 s{sCnt}, s{sMem}, 32")
    a(f"s_mov_b32 s{sBase}, 0")
    if early: a(f"s_lshl_b32 s{sSlot}, s{sMem}, 1"); a(f"s_sub_u32 s{sSlot}, s{sSlot}, 1")
    else: a(f"s_sub_u32 s{sSlot}, s{sMem}, 1")
    a("s_waitcnt lgkmcnt(0)")
    a("s_barrier")
    if calp == 2: a("s_memrealtime s[72:73]")
    for k in range(7): a(f"ds_read_b32 v{KF + k}, v{vMla} offset:{256*k}")
    cm("wave 6 of the first workgroup stages the tree tile's probabilities (slot 18) now; it owns no tile of the first V round")
    a(f"s_mov_b32 s{sCur}, {18*8}"); a(f"s_mov_b32 s50, {L_TP - L_PS}")
    a(f"s_add_u32 s51, s{sW}, s{sMy}"); a("s_cmp_eq_u32 s51, 5")
    a("s_waitcnt lgkmcnt(0)")
    a(f"v_max3_f32 v{vMC}, v{KF}, v{KF+1}, v{KF+2}"); a(f"v_max3_f32 v{vMC}, v{vMC}, v{KF+3}, v{KF+4}"); a(f"v_max3_f32 v{vMC}, v{vMC}, v{KF+5}, v{KF+6}")
    a("s_cbranch_scc1 L_dump")
    lab("L_stage")
    cm("stage my tile of the coming round (tiles t0 .. t0+3; the closing half round is tiles 0, 1), if I own one")
    a(f"s_cmp_eq_u32 s{sCnt}, 1"); a(f"s_cselect_b32 s{sT0}, 0, s{sT0}"); a(f"s_cselect_b32 s{sLim}, 1, 3")
    a(f"s_add_u32 s50, s{sT0}, 6"); a(f"s_sub_u32 s50, s50, s{sWo}")
    a("s_mul_i32 s50, s50, 9363"); a("s_lshr_b32 s50, s50, 16")
    a(f"s_lshl_b32 s{sCur}, s50, 3")
    a(f"s_sub_u32 s50, s{sCur}, s50"); a(f"s_add_u32 s50, s50, s{sWo}"); a(f"s_sub_u32 s50, s50, s{sT0}")
    a(f"s_cmp_gt_u32 s50, s{sLim}"); a("s_cbranch_scc1 L_vnext")
    a(f"s_lshl_b32 s50, s50, 11"); a(f"s_add_u32 s50, s50, s{sBase}")
    lab("L_dump")
    a(f"s_lshl_b32 s51, s{sCur}, 4")
    a(f"v_add_u32 v{vT}, s51, v{vMIa}")
    a(f"ds_read_b32 v{vT}, v{vT}")
    a(f"v_add_u32 v{vU}, s50, v{vPa}")
    a("s_waitcnt lgkmcnt(0)")
    a(f"v_sub_f32 v{vT}, v{vMC}, v{vT}")
    a(f"v_min_f32 v{vT}, {f32(255.0)}, v{vT}")
    a(f"v_cvt_u32_f32 v{vT}, v{vT}")
    a(f"v_mul_u32_u24 v{vT}, 0x800080, v{vT}")
    a(f"s_set_gpr_idx_on s{sCur}, gpr_idx(SRC0)"); a("s_nop 0")
    for j in range(8): a(f"v_pk_sub_u16 v{DT+j}, v{PB+j}, v{vT} clamp")
    a("s_set_gpr_idx_off")
    a(f"ds_write_b128 v{vU}, {vr(DT, 4)}"); a(f"ds_write_b128 v{vU}, {vr(DT+4, 4)} offset:1024")
    lab("L_vnext")
    a(f"s_add_u32 s{sT0}, s{sT0}, 4"); a(f"s_cmp_eq_u32 s{sT0}, 130"); a(f"s_cselect_b32 s{sT0}, 2, s{sT0}")
    a(f"v_add_u32 v{vT}, s{sBuf}, v{vVa}"); a(f"v_add_u32 v{vU}, s{sBase}, v{vPa}")
    a(f"s_xor_b32 s{sBase}, s{sBase}, 8192")
    nextbuf()
    a(f"s_sub_u32 s{sCnt}, s{sCnt}, 1")
    a(f"s_cmp_gt_u32 s{sW}, 3")
    a("s_waitcnt lgkmcnt(0)")
    a("s_cbranch_scc1 L_vside")
    a(f"s_cmp_eq_u32 s{sCnt}, s{sSlot}"); a("s_cbranch_scc1 L_close")
    a(f"s_cmp_eq_u32 s{sCnt}, 0")
    if st6:
        a("s_memrealtime s[74:75]")
    a("s_barrier")
    if st6:
        a("s_memrealtime s[76:77]")
    lab("L_vbody")
    def vreads(t):
        for u in range(2):
            for z in range(2): a(f"ds_read_b64_tr_b16 {vr(VF + 8*t + 4*u + 2*z, 2)}, v{vT} offset:{8192*t + 4096*u + 2048*z}")
    def preads(t):
        for u in range(2): a(f"ds_read_b128 {vr(PF + 8*t + 4*u, 4)}, v{vU} offset:{2048*t + 1024*u}")
    def pvm(t):
        for u in range(2): a(f"v_mfma_f32_32x32x16_bf16 {vr(O0, 16)}, {vr(VF + 8*t + 4*u, 4)}, {vr(PF + 8*t + 4*u, 4)}, {vr(O0, 16)}")
    def grp(m):
        t, u = divmod(m, 2)
        a(f"ds_read_b128 {vr(PF + 8*t + 4*u, 4)}, v{vU} offset:{2048*t + 1024*u}")
        for z in range(2): a(f"ds_read_b64_tr_b16 {vr(VF + 8*t + 4*u + 2*z, 2)}, v{vT} offset:{8192*t + 4096*u + 2048*z}")
    def mf(m): a(f"v_mfma_f32_32x32x16_bf16 {vr(O0, 16)}, {vr(VF + 4*m, 4)}, {vr(PF + 4*m, 4)}, {vr(O0, 16)}")
    if fine:
        for m in range(4): grp(m)
        a("s_cbranch_scc1 L_last")
        for m in range(4):
            a("s_waitcnt lgkmcnt(9)"); mf(m); grp(m + 4)
        a(f"s_cmp_eq_u32 s{sCnt}, 1")
        for m in range(4, 8):
            a(f"s_waitcnt lgkmcnt({3 * (7 - m)})"); mf(m)
        a("s_cbranch_scc1 L_vnext")
        a(f"s_cmp_eq_u32 s{sCnt}, 20")
    else:
        preads(0); vreads(0); preads(1); vreads(1)
        a("s_waitcnt lgkmcnt(6)"); pvm(0)
        a("s_cbranch_scc1 L_last")
        preads(2); vreads(2)
        a("s_waitcnt lgkmcnt(6)"); pvm(1)
        preads(3); vreads(3)
        a("s_waitcnt lgkmcnt(6)"); pvm(2)
        a(f"s_cmp_eq_u32 s{sCnt}, 20")
        a("s_waitcnt lgkmcnt(0)"); pvm(3)
    a("s_cbranch_scc0 L_stage")
    cm("once: the sum L; the tree tile (keys 0..15 only)")
    for k in range(7): a(f"ds_read_b64 {vr(KF + 2*k, 2)}, v{vMla} offset:{256*k}")
    a(f"v_add_u32 v{vT}, {L_TV}, v{vVa}")
    a(f"ds_read_b128 {vr(PF, 4)}, v{vPa} offset:{L_TP - L_PS}")
    for z in range(2): a(f"ds_read_b64_tr_b16 {vr(PF + 4 + 2*z, 2)}, v{vT} offset:{2048*z}")
    a(f"s_cmp_lg_u32 s{sMem}, 0")
    a("s_waitcnt lgkmcnt(0)")
    for k in range(7): a(f"v_sub_f32 v{KF+2*k}, v{KF+2*k}, v{vMC}")
    for k in range(7): a(f"v_exp_f32 v{KF+2*k}, v{KF+2*k}")
    a(f"v_mul_f32 v{vL}, v{KF}, v{KF+1}")
    for k in range(1, 7): a(f"v_fma_f32 v{vL}, v{KF+2*k}, v{KF+2*k+1}, v{vL}")
    a("s_cbranch_scc1 L_stage")
    a(f"v_mfma_f32_32x32x16_bf16 {vr(O0, 16)}, {vr(PF + 4, 4)}, {vr(PF, 4)}, {vr(O0, 16)}")
    a("s_branch L_stage")

    lab("L_last")
    cm("=============== closing half round and hand-off")
    if calp == 3: a("s_memrealtime s[72:73]")
    PP, PM = 120, 136
    def addrs(r): a(f"v_lshlrev_b32 v{r}, 4, v{vLane}"); a(f"v_lshlrev_b32 v{r+1}, 3, v{vLane}"); a(f"v_add_u32 v{r+1}, 4096, v{r+1}")
    def fetch(r):
        a(f"buffer_load_dwordx2 {vr(PM, 2)}, v{r+1}, {SD}, 0 offen {hlf}")
        for x in range(4 - halfx): a(f"buffer_load_dwordx4 {vr(PP + 4*x, 4)}, v{r}, {SD}, 0 offen offset:{1024*x} {hlf}")
    addrs(DT + 2)
    a(f"s_cmp_lg_u32 s{sMem}, 0")
    if fine:
        a("s_cbranch_scc1 L_merge")
        cm("first workgroup: publish, then raise the flag")
        a(f"buffer_store_dwordx2 {vr(vMC, 2)}, v{DT+3}, {SD}, 0 offen {hsf}")
        for m in range(4): a(f"s_waitcnt lgkmcnt({3 * (3 - m)})"); mf(m)
        a("s_nop 11")
    else:
        a("s_waitcnt lgkmcnt(0)"); pvm(1)
        a("s_cbranch_scc1 L_merge")
        cm("first workgroup: publish, then raise the flag")
        a(f"buffer_store_dwordx2 {vr(vMC, 2)}, v{DT+3}, {SD}, 0 offen {hsf}")
        a("s_nop 9")
    for x in range(4 - halfx): a(f"buffer_store_dwordx4 {vr(O0 + 4*x, 4)}, v{DT+2}, {SD}, 0 offen offset:{1024*x} {hsf}")
    st(3)
    a("s_mov_b32 s50, 8")
    a(f"s_cmp_lg_u32 s{sW}, 0")
    a("s_waitcnt vmcnt(0)")
    st(4)
    a("s_barrier")
    st(5)
    a("s_cbranch_scc1 L_done")
    a("s_atomic_xor s50, s[66:67], 0")
    a("s_branch L_done")
    lab("L_close")
    cm("second workgroup: the rendezvous of its last full round also waits for wave 5 to have seen the flag; fetch the other result now")
    addrs(DT + 2)
    st(1)
    a("s_barrier")
    st(2)
    if calp == 5: a("s_memrealtime s[76:77]")
    if reh: lab("L_fetch")
    fetch(DT + 2)
    if early: a(f"s_cmp_eq_u32 s{sCnt}, 0")
    a("s_branch L_vbody")
    lab("L_merge")
    st(3); st(4)
    a(f"v_lshlrev_b32 v{DT+4}, 8, v{vR}"); a(f"v_lshl_add_u32 v{DT+4}, v{vH}, 4, v{DT+4}")
    FA, FB = 138, 140
    if fine:
        a("s_waitcnt lgkmcnt(9)"); mf(0)
        a("s_waitcnt lgkmcnt(6)"); mf(1)
        a("s_waitcnt lgkmcnt(3)"); mf(2)
        a("s_waitcnt lgkmcnt(0)"); mf(3)
        a("s_waitcnt vmcnt(0)")
        a(f"v_max_f32 v{vT}, v{vMC}, v{PM}")
        a(f"v_sub_f32 v{FA}, v{vMC}, v{vT}"); a(f"v_sub_f32 v{FB}, v{PM}, v{vT}")
        a(f"v_exp_f32 v{FA}, v{FA}"); a(f"v_exp_f32 v{FB}, v{FB}")
        a(f"v_mul_f32 v{vT}, v{FA}, v{vL}")
        a(f"v_fma_f32 v{vT}, v{FB}, v{PM+1}, v{vT}")
        a(f"v_rcp_f32 v{vT}, v{vT}")
        a("s_nop 0")
        a(f"v_mul_f32 v{FB}, v{FB}, v{vT}"); a(f"v_mul_f32 v{FA}, v{FA}, v{vT}")
        for b in range(2):
            for j in range(4*b, 4*b + 4): a(f"v_pk_mul_f32 {vr(PP+2*j, 2)}, {vr(PP+2*j, 2)}, {vr(FB, 2)} op_sel_hi:[1,0]")
            for j in range(4*b, 4*b + 4): a(f"v_pk_fma_f32 {vr(O0+2*j, 2)}, {vr(O0+2*j, 2)}, {vr(FA, 2)}, {vr(PP+2*j, 2)} op_sel_hi:[1,0,1]")
            for j in (0, 2, 1, 3): a(f"v_cvt_pk_bf16_f32 v{KF+4*b+j}, v{O0+8*b+2*j}, v{O0+8*b+2*j+1}")
            a(f"v_permlane32_swap_b32 v{KF+4*b}, v{KF+4*b+2}"); a("s_nop 0"); a(f"v_permlane32_swap_b32 v{KF+4*b+1}, v{KF+4*b+3}")
            a(f"buffer_store_dwordx4 {vr(KF+4*b, 4)}, v{DT+4}, {SO}, s69 offen offset:{32*b} {ofl}")
    else:
        a(f"s_waitcnt vmcnt({0 if halfx else 4})")
        a(f"v_max_f32 v{vT}, v{vMC}, v{PM}")
        a(f"v_sub_f32 v{FA}, v{vMC}, v{vT}"); a(f"v_sub_f32 v{FB}, v{PM}, v{vT}")
        a(f"v_exp_f32 v{FA}, v{FA}"); a(f"v_exp_f32 v{FB}, v{FB}")
        a(f"v_mul_f32 v{vT}, v{FA}, v{vL}")
        a(f"v_fma_f32 v{vT}, v{FB}, v{PM+1}, v{vT}")
        a(f"v_rcp_f32 v{vT}, v{vT}")
        a("s_nop 0")
        a(f"v_mul_f32 v{FA}, v{FA}, v{vT}"); a(f"v_mul_f32 v{FB}, v{FB}, v{vT}")
        for j in range(8): a(f"v_pk_mul_f32 {vr(O0+2*j, 2)}, {vr(O0+2*j, 2)}, {vr(FA, 2)} op_sel_hi:[1,0]")
        for b in range(2):
            a(f"s_waitcnt vmcnt({2 if b == 0 else 1})")
            if b == 1: st(5)
            for j in range(4*b, 4*b + 4): a(f"v_pk_fma_f32 {vr(O0+2*j, 2)}, {vr(PP+2*j, 2)}, {vr(FB, 2)}, {vr(O0+2*j, 2)} op_sel_hi:[1,0,1]")
            for j in (0, 2, 1, 3): a(f"v_cvt_pk_bf16_f32 v{KF+4*b+j}, v{O0+8*b+2*j}, v{O0+8*b+2*j+1}")
            a(f"v_permlane32_swap_b32 v{KF+4*b}, v{KF+4*b+2}"); a("s_nop 0"); a(f"v_permlane32_swap_b32 v{KF+4*b+1}, v{KF+4*b+3}")
            a(f"buffer_store_dwordx4 {vr(KF+4*b, 4)}, v{DT+4}, {SO}, s69 offen offset:{32*b} {ofl}")
    st(6)
    if reh: a(f"s_cmp_eq_u32 s{sW}, 6"); a("s_cbranch_scc1 L_stage")
    lab("L_done")
    if st6:
        a("s_waitcnt vmcnt(0)"); a("s_memrealtime s[86:87]"); a("s_waitcnt lgkmcnt(0)")
        a(f"s_lshl_b32 s50, s{sMem}, 2"); a("v_mov_b32 v20, s50")
        for i in range(1, 8): a(f"v_writelane_b32 v20, s{72+2*i}, {i}")
        a("s_lshl_b32 s50, s2, 2"); a(f"s_add_u32 s50, s50, s{sW}"); a("s_lshl_b32 s50, s50, 8"); a("s_add_u32 s50, s50, 0x200000")
        a(f"v_lshl_add_u32 v21, v{vLane}, 2, s50")
        a("global_store_dword v21, v20, s[52:53]")
    if cal:
        a(f"s_mov_b32 s74, {cal}")
        if calp >= 4: a("s_waitcnt vmcnt(0)"); a("s_memrealtime s[72:73]")
        if calp == 5:
            a("s_waitcnt lgkmcnt(0)"); a("s_sub_u32 s72, s72, s76"); a(f"s_mul_i32 s72, s72, s{sMem}")
            a("s_mul_i32 s72, s72, 20"); a("s_add_u32 s74, s74, s72"); a("s_min_u32 s74, s74, 30000")
        elif calp:
            a("s_waitcnt lgkmcnt(0)"); a("s_sub_u32 s72, s72, s54"); a(f"s_sub_u32 s72, s72, {(0, 0, 3000, 6500, 6500)[calp]}")
            a("s_mul_i32 s72, s72, 5"); a("s_add_u32 s74, s74, s72"); a("s_min_u32 s74, s74, 30000")
        lab("L_cal")
        a("s_memrealtime s[56:57]"); a("s_waitcnt lgkmcnt(0)"); a("s_sub_u32 s56, s56, s54"); a(f"s_cmp_lt_u32 s56, s74"); a("s_cbranch_scc1 L_cal")
    if stamp: stamp_out()
    lab("L_end")
    a("s_endpgm")

    if reh:
        lab("L_reh")
        cm("wave 7 of the second workgroup runs the closing code once ahead of time, through empty descriptors, so that it is in the instruction cache")
        a("s_mov_b32 s26, 0"); a("s_mov_b32 s34, 0")
        addrs(DT + 2)
        a("s_branch L_fetch")
    lab("L_vside")
    cm("waves 5..7 only stage")
    a(f"s_cmp_eq_u32 s{sCnt}, 0"); a("s_cbranch_scc1 L_end")
    a("s_barrier")
    if reh:
        a(f"s_lshl_b32 s50, s{sCnt}, 4"); a(f"s_add_u32 s50, s50, s{sW}"); a(f"s_add_u32 s50, s50, s{sMy}")
        a(f"s_cmp_eq_u32 s50, {reh * 16 + 14}"); a("s_cbranch_scc1 L_reh")
    a(f"s_cmp_lg_u32 s{sW}, 4"); a("s_cbranch_scc1 L_stage")
    a(f"s_cmp_eq_u32 s{sCnt}, 24"); a("s_cbranch_scc1 L_hsfin")
    a(f"s_add_u32 s50, s{sSlot}, 1"); a(f"s_cmp_lg_u32 s{sCnt}, s50"); a("s_cbranch_scc1 L_stage")
    cm("wave 5 of the second workgroup owns no tile of the last round and a half: it watches the word")
    if pk == "sv":
        a(f"s_mov_b32 s71, {NS}")
        lab("L_spoll")
        a("s_load_dword s50, s[66:67], 0 glc")
        a("s_waitcnt lgkmcnt(0)")
        a(f"s_xor_b32 s50, s50, s{sSnap}")
        a("s_bitcmp1_b32 s50, 3"); a("s_cbranch_scc1 L_seen")
        a("s_sub_u32 s71, s71, 1"); a("s_cbranch_scc0 L_spoll")
    a(f"s_mov_b32 s71, {BOUND}")
    lab("L_poll")
    if pk in ("v", "sv"):
        a(f"global_load_dword v{vU}, v{vZ}, s[66:67] sc1")
        a("s_sub_u32 s71, s71, 1"); a("s_cbranch_scc1 L_seen")
        a("s_waitcnt vmcnt(0)")
        a(f"v_readfirstlane_b32 s50, v{vU}")
    else:
        a("s_sub_u32 s71, s71, 1"); a("s_cbranch_scc1 L_seen")
        if pk == "s": a("s_load_dword s50, s[66:67], 0 glc")
        else: a("s_mov_b32 s50, 0"); a("s_atomic_or s50, s[66:67], 0 glc")
        a("s_waitcnt lgkmcnt(0)")
    a(f"s_xor_b32 s50, s50, s{sSnap}")
    a("s_bitcmp1_b32 s50, 3"); a("s_cbranch_scc0 L_poll")
    lab("L_seen")
    a("s_barrier")
    a("s_endpgm")

    cm("=============== out-of-line pieces of the K phase")
    lab("L_kbias")
    a(f"v_mfma_f32_32x32x16_bf16 {vr(S0, 16)}, {vr(KF, 4)}, {vr(Q0, 4)}, {vr(S0, 16)}")
    a("s_branch L_k1")
    lab("L_kidle")
    a(f"s_cmp_eq_u32 s{sW}, 4"); a("s_cbranch_scc1 L_hs")
    a(f"s_add_u32 s50, s{sW}, s{sMy}"); a("s_cmp_lg_u32 s50, 5"); a("s_cbranch_scc1 L_knext")
    a(f"s_cmp_eq_u32 s{sCnt}, 31"); a("s_cbranch_scc1 L_tree1")
    a(f"s_cmp_lg_u32 s{sCnt}, 29"); a("s_cbranch_scc1 L_knext")
    cm("tree tokens, step 2: score bias (1-mask) * -1e9 / scale, then the ordinary tile code")
    big = 1e9 * math.sqrt(128)
    TM = PB + 18 * 8
    a(f"s_mov_b32 s51, {f32(big)}")
    a(f"v_mov_b32 v{vU}, {f32(-big)}")
    for j in range(8, 16): a(f"v_mov_b32 v{S0+j}, 0xff800000")
    a("s_waitcnt vmcnt(0)")
    for j in range(4):
        a(f"v_lshlrev_b32 v{S0+2*j}, 16, v{TM+j}"); a(f"v_and_b32 v{S0+2*j+1}, 0xffff0000, v{TM+j}")
    for j in range(8): a(f"v_fma_f32 v{S0+j}, v{S0+j}, s51, v{vU}")
    a(f"s_mov_b32 s{sCur}, {18*8}"); a(f"s_mov_b32 s50, {L_TK}")
    a("s_branch L_ktile")
    lab("L_tree1")
    cm("tree tokens, step 1 (wave 6 of the first workgroup): K/V -> LDS, mask -> registers")
    k_offsets()
    a(f"s_lshl_b32 s45, s{sPair}, 12"); a("s_movk_i32 s51, 4096")
    a("s_add_u32 s20, s10, s45"); a("s_addc_u32 s21, s11, 0"); a("s_mov_b32 s22, 4096"); a("s_mov_b32 s23, 0x20000")
    a(f"s_mov_b32 m0, {L_TK}")
    a("s_add_u32 s28, s12, s45"); a("s_addc_u32 s29, s13, 0"); a("s_mov_b32 s30, 4096"); a("s_mov_b32 s31, 0x20000")
    for j in range(4): a(f"buffer_load_dwordx4 v{vOff[j]}, {SS}, 0 offen offset:{j*1024} {qfl} lds")
    a(f"s_mov_b32 m0, {L_TK + 4096}")
    a(f"s_lshr_b32 s50, s{sPair}, 4"); a("s_lshl_b32 s50, s50, 9")
    for j in range(4): a(f"buffer_load_dwordx4 v{vOff[j]}, {SS}, s51 offen offset:{j*1024} lds")
    v_offset()
    a(f"s_mov_b32 m0, {L_TV}")
    a("s_add_u32 s36, s14, s50"); a("s_addc_u32 s37, s15, 0"); a("s_mov_b32 s38, 512"); a("s_mov_b32 s39, 0x20000")
    for j in range(4): a(f"buffer_load_dwordx4 v{vOff[0]}, {SQ}, 0 offen offset:{j*1024} {qfl} lds")
    a(f"v_and_b32 v{vU}, 15, v{vR}"); a(f"v_lshlrev_b32 v{vU}, 5, v{vU}"); a(f"v_lshl_add_u32 v{vU}, v{vH}, 3, v{vU}")
    a(f"buffer_load_dwordx2 {vr(TM, 2)}, v{vU}, {SM}, 0 offen")
    a(f"buffer_load_dwordx2 {vr(TM+2, 2)}, v{vU}, {SM}, 0 offen offset:16")
    a("s_branch L_knext")
    cm("hand-off word: bit 0 started, bit 1 acknowledged, bit 3 result published; +8 for the second workgroup. Only changes")
    cm("against the value seen at my own start count, and nothing is published before both have taken that snapshot.")
    def hs_poll(again, done):
        a(f"global_load_dword v{vU}, v{vZ}, s[66:67] sc1")
        a("s_waitcnt vmcnt(0)")
        a(f"v_readfirstlane_b32 s50, v{vU}")
        a(f"s_xor_b32 s50, s50, s{sSnap}"); a(f"s_lshr_b32 s50, s50, s{sOt}")
        a("s_and_b32 s51, s50, 3"); a(f"s_cbranch_scc0 {again}")
        a(f"s_mov_b32 s{sSt}, 2")
        a("s_bitcmp1_b32 s50, 0"); a(f"s_cbranch_scc0 {done}")
        a(f"s_lshl_b32 s{sAck}, 2, s{sMy}"); a(f"s_atomic_xor s{sAck}, s[66:67], 0")
        a(f"s_branch {done}")
    lab("L_hs")
    if "v" in warm:
        a(f"s_cmp_gt_u32 s{sCnt}, 4"); a("s_cbranch_scc1 L_hs0")
        a(f"s_lshl_b32 s50, s{sPair}, 21"); a("s_add_u32 s50, s8, s50"); a("s_addc_u32 s51, s9, 0")
        a(f"global_load_dword v{vTmp[0]}, v{vZ}, s[50:51] nt")
        lab("L_hs0")
    a(f"s_cmp_eq_u32 s{sSt}, 2"); a("s_cbranch_scc1 L_knext")
    a(f"s_cmp_eq_u32 s{sLim}, 1"); a("s_cbranch_scc1 L_knext")
    hs_poll("L_knext", "L_knext")
    lab("L_hsfin")
    if "o" in warm: a(f"buffer_load_dword v{vTmp[0]}, v{vZ}, {SO}, s69 offen")
    a(f"s_mov_b32 s71, {BOUND}")
    lab("L_hsw")
    a(f"s_cmp_eq_u32 s{sSt}, 2"); a("s_cbranch_scc1 L_stage")
    a("s_sub_u32 s71, s71, 1"); a("s_cbranch_scc1 L_stage")
    hs_poll("L_hsw", "L_stage")
    check_hazards([x for x in L if not x.startswith(".")])
    out = HEADER + DOC + f"; @launch grid=(256,1,1) block=(512,1,1) lds={LDS}\n"
    out += '.amdgcn_target "amdgcn-amd-amdhsa--gfx950"\n.text\n' + f".globl {NAME}\n.p2align 8\n.type {NAME},@function\n{NAME}:\n"
    out += "\n".join(" ".join(x.split(" ")).rstrip().replace("  lds", " lds") for x in L) + "\n"
    out += '.section .rodata,"a"\n.p2align 6\n' + f".amdhsa_kernel {NAME}\n"
    out += f"  .amdhsa_next_free_vgpr 256\n  .amdhsa_next_free_sgpr {100 if base else 96}\n  .amdhsa_accum_offset 256\n"
    out += "  .amdhsa_group_segment_fixed_size 0\n  .amdhsa_kernarg_size 72\n  .amdhsa_user_sgpr_count 2\n"
    out += "  .amdhsa_user_sgpr_kernarg_segment_ptr 1\n  .amdhsa_system_sgpr_workgroup_id_x 1\n.end_amdhsa_kernel\n"
    return out

if __name__ == "__main__":
    out = sys.argv[1]
    kw = {}
    for x in sys.argv[2:]:
        k, v = x.split("=", 1)
        if v in ("True", "False"): v = v == "True"
        else:
            try: v = int(v)
            except ValueError: pass
        kw[k] = v
    open(out, "w").write(gen(**kw))
```

```python
import sys, struct, math
from hz import check_hazards
NAME = "standalone__tree_speculative_verify_tree_attention_over_candidate_token_tree__sampling_kernel"
HEADER = open("standalone__tree_speculative_verify_tree_attention_over_candidate_token_tree__sampling.s.ref").read().split("; Override launch")[0]
DOC = """;
"""

def f32(x): return "0x%08x" % struct.unpack("<I", struct.pack("<f", x))[0]

def gen(levels="19,20,21,23,28,32", start=1, lmap="01111223", cps="4,10,16,22,28,34,40,45,50,54,57,59", SP=62, LH=32, jbits="12,13,14,11,10", mbit=16,
        stamp=False, fl="nt", prio=3, xat=12, st4=False, st6=False, cal=0, ofl="", WSOFF=0, BOUND=1 << 22, pre=False, LH0=0, SP2=0, spoll=0, boost=0, shalf=1, qfl="", hsf="sc1", hlf="sc1", R=8, rmap="011112223", rot=3, help="", hfl="", adj=1, warm="", calp=0, reh=0, halfx=0, trim=0, late=-1, LATE=59, lmap2="00111234", rmap2="001112344", gate="", hs=0, emu=0, st0=-1, st1=-1, early=1, pk="sv", fine=1, NS=16, CS=256, same=0, base=1, bfl="glc", SP0=0, SL0=4, vflag=0, pack="A", il=0, rowp=0, d0=0, d1=0):
    L = []
    def a(s): L.append("    " + s)
    def lab(s): L.append(s + ":")
    def cm(s): L.append("    ; " + s)
    def vr(b, n): return f"v[{b}:{b+n-1}]"
    RB = 32768
    L_PS = 3 * RB
    L_Q, L_TK = L_PS, L_PS + 8192
    L_MI = L_PS + 16384
    L_TV = L_MI + 17408
    L_TP = L_TV + 4096
    L_ML = L_TP + 2048
    LDS = L_ML + 2048
    W_WORD = WSOFF
    W_RANK = WSOFF + 65536
    W_DATA = WSOFF + (262144 if CS <= 256 else 1 << 20)
    NX = {"": 4, "A": 3, "B": 2}[pack]
    WS1 = 1024 * NX + (256 if pack else 512)
    PS = 4 * WS1 + (256 if adj else 0)
    vLane, vH, vR, vMIa = 96, 97, 98, 99
    vM, vMC, vL, vT, vU, vAL = 101, 102, 103, 1, 6, 7
    vTmp = [0, 100]
    Q0, KF, S0, vKrd, PB = 8, 40, 72, list(range(88, 96)), 104
    PF, VF, O0, DT = 8, 40, 72, 88
    vVa, vPa, vZ, vMla = 2, 3, 4, 5
    vOff = [40, 41, 42, 43]
    sPair, sMem, sK, sT, sBuf, sC, sCnt, sJ, sSlot, sCur, sBase, sW, sSnap, sSt, sMy, sOt = 40, 41, 42, 43, 44, 46, 47, 48, 49, 60, 61, 59, 62, 63, 64, 65
    sLim, sStep, sT0, sAck, sN, sWo = 68, 70, 48, 94, 95, 93
    SS, SQ, SO, SM, SD = "s[20:23]", "s[28:31]", "s[32:35]", "s[36:39]", "s[24:27]"
    c = (128 ** -0.5) * math.log2(math.e)
    jb = [int(x) for x in str(jbits).split(",")]
    def B(j): return sum(((j >> i) & 1) << b for i, b in enumerate(jb))
    maskR = sum(1 << b for b in range(10, 21) if b not in jb and b != mbit)
    lowR = (maskR & -maskR).bit_length() - 1
    lv = [float(x) for x in str(levels).split(",")]
    cp = [int(x) for x in str(cps).split(",")] if cps != "" else []
    assert len(cp) <= 16
    lm = [int(ch) for ch in str(lmap).zfill(8)]
    def st(n):
        if st6: a(f"s_memrealtime s[{72+2*n}:{73+2*n}]")

    def stamp_out():
        a("s_waitcnt vmcnt(0)")
        a("s_memrealtime s[56:57]")
        a("s_getreg_b32 s58, hwreg(HW_REG_XCC_ID)")
        a("s_waitcnt lgkmcnt(0)")
        a("v_mov_b32 v8, s54"); a("v_mov_b32 v9, s56"); a("v_mov_b32 v10, s58");  a("v_mov_b32 v11, 0")
        a("s_lshl_b32 s50, s2, 3"); a("s_add_u32 s50, s50, s3"); a("s_lshl_b32 s50, s50, 4")
        a("v_mov_b32 v12, s50")
        a("s_mov_b64 exec, 1")
        a("global_store_dwordx4 v12, v[8:11], s[52:53]")
    def ids():
        a(f"v_and_b32 v{vLane}, 63, v0")
        a(f"s_lshr_b32 s{sPair}, s2, 4"); a(f"s_lshl_b32 s{sPair}, s{sPair}, 3"); a("s_and_b32 s50, s2, 7"); a(f"s_or_b32 s{sPair}, s{sPair}, s50")
        a(f"s_bfe_u32 s{sMem}, s2, 0x10003")
    def k_offsets():
        cm("K-shaped DMA source offsets: row rr = lane>>4, slot p = lane&15 -> rr*256 + ((p ^ (4j+rr)) * 16)")
        a(f"v_lshlrev_b32 v{vTmp[0]}, 4, v{vLane}")
        a(f"v_and_b32 v{vTmp[1]}, 0x30, v{vLane}")
        a(f"v_xor_b32 v{vOff[0]}, v{vTmp[0]}, v{vTmp[1]}")
        for j in range(1, 4): a(f"v_xor_b32 v{vOff[j]}, {64*j}, v{vOff[0]}")
    def v_offset():
        cm("V DMA source offset: rr*256 + ((p ^ 4rr) * 16)")
        a(f"v_lshlrev_b32 v{vTmp[0]}, 4, v{vLane}")
        a(f"v_and_b32 v{vTmp[1]}, 0x30, v{vLane}")
        a(f"v_lshlrev_b32 v{vTmp[1]}, 2, v{vTmp[1]}")
        a(f"v_xor_b32 v{vOff[0]}, v{vTmp[0]}, v{vTmp[1]}")
    def nextbuf():
        a(f"s_add_u32 s{sBuf}, s{sBuf}, {RB}")
        a(f"s_cmp_eq_u32 s{sBuf}, {3*RB}"); a(f"s_cselect_b32 s{sBuf}, 0, s{sBuf}")

    a("s_load_dwordx16 s[4:19], s[0:1], 0")
    a("s_load_dwordx2 s[52:53], s[0:1], 64")
    if stamp or cal: a("s_memrealtime s[54:55]")
    a("v_readfirstlane_b32 s3, v0")
    a("s_cmp_ge_u32 s2, 256"); a("s_cbranch_scc1 L_end")
    if late >= 0:
        a("s_and_b32 s50, s2, 24"); a(f"s_cmp_lg_u32 s50, {late * 8}"); a("s_cbranch_scc1 L_notlate")
        a("s_mov_b32 s50, 60")
        lab("L_late"); a("s_sleep 100"); a("s_sub_u32 s50, s50, 1"); a("s_cbranch_scc0 L_late")
        lab("L_notlate")
    a("s_lshr_b32 s3, s3, 6")
    a("s_cbranch_scc1 L_cons")
    cm("=============== loader wave")
    if trim:
        a("s_lshr_b32 s50, s2, 4"); a("s_and_b32 s51, s2, 7"); a(f"s_lshl3_add_u32 s{sPair}, s50, s51")
        cm("K-shaped DMA source offsets: row rr = lane>>4, slot p = lane&15 -> rr*256 + ((p ^ (4j+rr)) * 16) + piece offset - j*1024")
        a("v_lshlrev_b32 v1, 4, v0"); a("v_and_b32 v2, 48, v0"); a(f"v_xor_b32 v{vOff[0]}, v1, v2")
        a(f"s_lshl_b32 s45, s{sPair}, 21"); a("s_and_b32 s46, s2, 8"); a(f"s_lshl_b32 s46, s46, {jb[4] - 3}"); a(f"s_or_b32 s46, s46, {maskR}")
        a("s_lshl_b32 s22, 1, 21"); a("s_mov_b32 s23, 0x20000")
        for j in range(1, 4): a(f"v_xor_b32 v{vOff[j]+4}, {64*j}, v{vOff[0]}"); a(f"v_add_u32 v{vOff[j]}, {B(j) - 1024*j}, v{vOff[j]+4}")
        a(f"s_mov_b32 s{sBuf}, 0"); a(f"s_mov_b32 s{sCnt}, 0")
    else:
        if prio: a(f"s_setprio {prio}")
        ids(); k_offsets()
        for j in range(1, 4):
            assert B(j) >= 1024*j
            a(f"v_mov_b32 v{vOff[j]+4}, v{vOff[j]}")
            a(f"v_add_u32 v{vOff[j]}, {B(j) - 1024*j}, v{vOff[j]}")
        a(f"s_lshl_b32 s50, s{sPair}, 13"); a("s_mov_b32 s30, 8192"); a("s_mov_b32 s31, 0x20000"); a("s_movk_i32 s51, 4096")
        a(f"s_lshl_b32 s45, s{sPair}, 21")
        a("s_mov_b32 s22, 0x200000"); a("s_mov_b32 s23, 0x20000")
        a(f"s_mul_i32 s46, s{sMem}, {B(16)}"); a(f"s_add_u32 s46, s46, {maskR}")
        a(f"s_mov_b32 s{sBuf}, 0"); a(f"s_mov_b32 s{sCnt}, 0")
    def vm(x, n):
        lo = int(x); fr = x - lo
        return lo + (1 if (n % 16) < fr * 16 else 0) - 1
    def half(x):
        for g in range(6 if emu else 4):
            if emu and g == 4: a("s_bitcmp1_b32 s2, 3"); a("s_cbranch_scc1 L_hx")
            a(f"s_add_u32 m0, s{sBuf}, {g*4096}"); a(f"s_add_u32 s{sT}, s46, {B(4*g)}")
            for j in range(4):
                if x: a(f"s_waitcnt vmcnt({vm(x, 0)})")
                a(f"buffer_load_dwordx4 v{vOff[j]}, {SS}, s{sT} offen offset:{j*1024} {fl} lds")
    a("s_waitcnt lgkmcnt(0)")
    a("s_add_u32 s20, s6, s45"); a("s_addc_u32 s21, s7, 0")
    if shalf:
        lab("L_half")
        cm("opening (K) and closing (V) half round: the two workgroups split the first one's round 31")
        half(float(LH))
        if emu: lab("L_hx")
        a(f"s_cmp_lg_u32 s{sCnt}, 0"); a("s_cbranch_scc1 " + ("L_hret" if hs else "L_h2"))
    else: half(0)
    if trim:
        a(f"s_lshl_b32 s50, s{sPair}, 13"); a("s_movk_i32 s30, 8192"); a("s_mov_b32 s31, 0x20000"); a("s_movk_i32 s51, 4096")
    a(f"s_mov_b32 m0, {L_Q}"); a("s_add_u32 s28, s4, s50"); a("s_addc_u32 s29, s5, 0")
    for j in range(4): a(f"buffer_load_dwordx4 v{vOff[j] + (4 if j else 0)}, {SQ}, 0 offen offset:{j*1024} {qfl} lds")
    a(f"s_mov_b32 m0, {L_Q + 4096}"); a("s_nop 0")
    for j in range(4): a(f"buffer_load_dwordx4 v{vOff[j] + (4 if j else 0)}, {SQ}, s51 offen offset:{j*1024} {qfl} lds")
    if trim:
        if prio: a(f"s_setprio {prio}")
        a(f"s_bfe_u32 s{sMem}, s2, 0x10003"); a(f"v_mov_b32 v{vLane}, v0")
    cm("rounds at which something besides streaming is due: a progress check, its result, the switch to V, the sprint, the end")
    def evm(n): return sum(1 << (r - 1) for r in set(cp) | set(r + 1 for r in cp) | {n, 2 * n} | ({SP} if SP < 2 * n else set()) | ({SP2} if SP2 else set()) | ({SP0} if SP0 else set()) | ({boost} if boost else set()) | (set(range(SP - 3, 64)) if gate != "" else set()))
    cpm = sum(1 << r for r in cp)
    a(f"s_lshl_b32 s48, s{sMem}, {mbit}"); a(f"s_mov_b32 s{sK}, s48"); a(f"s_mov_b32 s{sBuf}, {RB}")
    a(f"s_add_u32 s{sN}, s{sMem}, 31"); a(f"s_add_u32 s49, s{sN}, 1")
    a(f"s_mov_b32 s84, {(evm(31) | evm(32)) & 0xffffffff:#x}"); a(f"s_mov_b32 s85, {(evm(31) | evm(32)) >> 32:#x}")
    a(f"s_mov_b32 s86, {cpm & 0xffffffff:#x}"); a(f"s_mov_b32 s87, {cpm >> 32:#x}")
    a(f"s_mov_b32 s88, {start}"); a("s_and_b32 s90, s2, 7")
    if R == 32: a("s_lshr_b32 s89, s2, 4")
    if R == 32: a(f"s_lshl_b32 s91, s{sMem}, 8"); a(f"s_add_u32 s91, s91, {W_RANK}")
    else: a(f"s_mov_b32 s91, {W_RANK}"); a("s_lshr_b32 s89, s2, 3"); a("s_lshl_b32 s90, s90, 2"); a(f"s_add_u32 s90, s90, {rot}")
    a("s_mov_b32 s92, -1")
    def nextctr():
        per = 32 // R
        cm("the next check's counter and the value it holds before anyone counts in")
        a(f"s_and_b32 s50, s89, {32 - per}"); a(f"s_mul_i32 s50, s50, {CS // per}"); a("s_add_u32 s50, s50, s91")
        a("s_add_u32 s98, s52, s50"); a("s_addc_u32 s99, s53, 0")
        a(f"s_add_u32 s91, s91, {CS * R}")
        a(f"s_load_dword s97, s[98:99], 0 {bfl}")
    if base: nextctr()
    if st4: a("s_mov_b32 s74, 0"); a("v_mov_b32 v20, 0"); a("v_mov_b32 v21, 0"); a("v_mov_b32 v22, 0")
    def rnd(x, sfx):
        bar_at = min(n for n in range(32) if vm(x, n) <= n)
        for g in range(8):
            if 4 * g == xat:
                a(f"s_cmp_lg_u32 s{sCnt}, s49"); a(f"s_cbranch_scc1 L_nx{sfx}")
                if st4: a("s_memrealtime s[76:77]")
                a("s_barrier")
                if st4: a("s_memrealtime s[78:79]")
                lab("L_nx" + sfx)
            a(f"s_add_u32 m0, s{sBuf}, {g*4096}"); a(f"s_add_u32 s{sT}, s{sK}, {B(4*g)}")
            for j in range(4):
                n = 4 * g + j
                a(f"s_waitcnt vmcnt({vm(x, n)})")
                a(f"buffer_load_dwordx4 v{vOff[j]}, {SS}, s{sT} offen offset:{j*1024} {fl} lds")
                if n == bar_at:
                    if st4: a("s_memrealtime s[70:71]")
                    a("s_barrier")
                    if st4: a("s_memrealtime s[72:73]")
    if st0 >= 0:
        a(f"s_cmp_eq_u32 s{sMem}, 0"); a(f"s_cselect_b32 s88, {st0}, {st1}"); a(f"s_cbranch_scc1 L_lv{st0}"); a(f"s_branch L_lv{st1}")
    order = [start] + [i for i in range(len(lv)) if i != start]
    if hs: order = order[:-1]
    if boost: order = [order[-1]] + order[:-1]
    for i in order:
        lab(f"L_lv{i}")
        cm(f"one round with {lv[i]:g} pieces in flight")
        rnd(lv[i], str(i))
        cm("next round: the source offset counts through the address bits a round leaves fixed; buffers rotate mod 3")
        nextbuf()
        if st4:
            a("s_waitcnt lgkmcnt(0)"); a("s_mov_b32 m0, s74"); a("s_add_u32 s74, s74, 1")
            a("v_writelane_b32 v20, s70, m0"); a("v_writelane_b32 v21, s72, m0")
        a(f"s_or_b32 s{sK}, s{sK}, {(~maskR) & 0xffffffff:#x}"); a(f"s_add_u32 s{sK}, s{sK}, 1"); a(f"s_and_b32 s{sK}, s{sK}, {maskR:#x}")
        a(f"s_or_b32 s{sK}, s{sK}, s48")
        a(f"s_add_u32 s50, s{sCnt}, 1")
        a(f"s_bitcmp1_b64 s[84:85], s{sCnt}"); a(f"s_mov_b32 s{sCnt}, s50")
        a(f"s_cbranch_scc0 L_lv{i}")
        if i != order[-1]: a("s_branch L_event")
    lab("L_event")
    if emu: a(f"s_cmp_eq_u32 s{sCnt}, 64"); a("s_cbranch_scc1 L_h3")
    a(f"s_lshl_b32 s50, s{sN}, 1"); a(f"s_cmp_eq_u32 s{sCnt}, s50")
    if hs: a("s_cselect_b32 s92, 0, s92")
    a("s_cbranch_scc1 " + ("L_half" if shalf else "L_ldfin"))
    a(f"s_cmp_lg_u32 s{sCnt}, s{sN}"); a("s_cbranch_scc1 L_nosw")
    cm("K is done, go on with V (the second workgroup, one round behind by now, starts at round 1 to stay beside the first)")
    a("s_add_u32 s20, s8, s45"); a("s_addc_u32 s21, s9, 0")
    a(f"s_lshl_b32 s{sK}, s{sMem}, {lowR}"); a(f"s_or_b32 s{sK}, s{sK}, s48")
    v_offset()
    for j in range(1, 4): a(f"v_add_u32 v{vOff[j]}, {B(j) - 1024*j}, v{vOff[0]}")
    lab("L_nosw")
    if cp:
        cm("load balance: at each check eight workgroups per counter count themselves in and 24 read the count;")
        cm("the later a workgroup came, the more it keeps in flight until the next check")
        a(f"s_cmp_lg_u32 s{sCnt}, s92"); a("s_cbranch_scc1 L_noapply")
        a("s_waitcnt lgkmcnt(0)")
        if R == 32:
            word = sum(v << (4 * i) for i, v in enumerate(lm))
            a("s_min_u32 s93, s93, 7"); a("s_lshl_b32 s93, s93, 2")
            a(f"s_lshr_b32 s93, {word:#x}, s93"); a("s_and_b32 s88, s93, 15")
            lab("L_noapply")
            a(f"s_bitcmp1_b64 s[86:87], s{sCnt}"); a("s_cbranch_scc0 L_nocp")
            a("s_and_b32 s50, s89, 15"); a("s_lshl_b32 s50, s50, 9"); a("s_add_u32 s50, s50, s91")
            a("s_add_u32 s66, s52, s50"); a("s_addc_u32 s67, s53, 0")
            a("s_mov_b32 s93, 1"); a("s_atomic_add s93, s[66:67], 0 glc")
            a("s_add_u32 s91, s91, 8192"); a("s_add_u32 s89, s89, s90"); a(f"s_add_u32 s92, s{sCnt}, 1")
        else:
            per = 32 // R
            rm = [int(ch) for ch in str(rmap).zfill(9)]
            w1 = sum(v << (3 * i) for i, v in enumerate(lm + lm[-1:])); w2 = sum(v << (3 * i) for i, v in enumerate(rm))
            if base: a("s_sub_u32 s93, s93, s96")
            a("s_min_u32 s93, s93, 8"); a("s_mul_i32 s93, s93, 3")
            a("s_lshr_b32 s93, s94, s93"); a("s_and_b32 s88, s93, 7")
            if base == 2: nextctr()
            lab("L_noapply")
            a(f"s_bitcmp1_b64 s[86:87], s{sCnt}"); a("s_cbranch_scc0 L_nocp")
            if base:
                a("s_waitcnt lgkmcnt(0)")
                a("s_mov_b64 s[66:67], s[98:99]"); a("s_mov_b32 s96, s97"); a(f"s_add_u32 s92, s{sCnt}, 1")
            else:
                a(f"s_and_b32 s50, s89, {32 - per}"); a(f"s_mul_i32 s50, s50, {CS // per}"); a("s_add_u32 s50, s50, s91")
                a("s_add_u32 s66, s52, s50"); a("s_addc_u32 s67, s53, 0")
                a(f"s_add_u32 s91, s91, {4 if same else CS * R}"); a(f"s_add_u32 s92, s{sCnt}, 1")
            a(f"s_and_b32 s50, s89, {per - 1}"); a("s_cbranch_scc1 L_reader")
            def pick(w, m2, n):
                a(f"s_mov_b32 s94, {w:#x}")
                if LATE:
                    d = [int(ch) for ch in str(m2).zfill(n)]; d = (d + d[-1:])[:9]
                    a(f"s_cmp_ge_u32 s{sCnt}, {LATE}"); a(f"s_cselect_b32 s94, {sum(v << (3 * i) for i, v in enumerate(d)):#x}, s94")
            a("s_mov_b32 s93, 1"); a("s_atomic_add s93, s[66:67], 0 glc"); pick(w1, lmap2, 8)
            a("s_branch L_rot")
            lab("L_reader")
            a("s_load_dword s93, s[66:67], 0 glc"); pick(w2, rmap2, 9)
            lab("L_rot")
            a("s_add_u32 s89, s89, s90")
            if base == 1: nextctr()
        lab("L_nocp")
    if gate != "":
        gw = sum(int(ch) << (4 * i) for i, ch in enumerate(str(gate).zfill(len(lv) - 1)))
        a("s_lshl_b32 s50, s88, 2"); a(f"s_lshr_b32 s50, {gw:#x}, s50"); a("s_and_b32 s50, s50, 15"); a(f"s_add_u32 s50, s50, s{sCnt}")
        a(f"s_mul_i32 s50, s50, s{sMem}")
    else: a(f"s_mul_i32 s50, s{sCnt}, s{sMem}")
    a(f"s_cmp_ge_u32 s50, {SP}"); a("s_cbranch_scc1 " + ("L_spr" if hs else f"L_lv{len(lv) - 1}"))
    if SP0: a(f"s_sub_u32 s50, s{sCnt}, s50"); a(f"s_cmp_ge_u32 s50, {SP0}"); a(f"s_cbranch_scc1 L_lv{SL0}")
    if SP2: a(f"s_cmp_ge_u32 s50, {SP2}"); a(f"s_cbranch_scc1 L_lv{len(lv) - 2}")
    for i in [x for x in range(len(lv)) if x != start and str(x) in (str(lmap).zfill(8) + str(rmap).zfill(9) + str(lmap2) + str(rmap2))]:
        a(f"s_cmp_eq_u32 s88, {i}"); a(f"s_cbranch_scc1 L_lv{i}")
    a(f"s_branch L_lv{start}")
    if hs:
        lab("L_hret")
        a("s_sub_u32 s92, s92, 1"); a("s_cbranch_scc1 L_h2")
        a("s_bitcmp1_b32 s92, 0"); a("s_cbranch_scc0 L_sprn")
        a(f"s_add_u32 s46, s46, {B(16)}"); a(f"s_add_u32 s{sBuf}, s{sBuf}, {RB // 2}")
        a("s_branch L_half")
        lab("L_sprn")
        if st4: a("s_memrealtime s[70:71]")
        a("s_barrier")
        if st4:
            a("s_memrealtime s[72:73]")
            a("s_waitcnt lgkmcnt(0)"); a("s_mov_b32 m0, s74"); a("s_add_u32 s74, s74, 1")
            a("v_writelane_b32 v20, s70, m0"); a("v_writelane_b32 v21, s72, m0")
        a(f"s_add_u32 s{sBuf}, s{sBuf}, {RB // 2}")
        a(f"s_cmp_eq_u32 s{sBuf}, {3*RB}"); a(f"s_cselect_b32 s{sBuf}, 0, s{sBuf}")
        a(f"s_or_b32 s{sK}, s{sK}, {(~maskR) & 0xffffffff:#x}"); a(f"s_add_u32 s{sK}, s{sK}, 1"); a(f"s_and_b32 s{sK}, s{sK}, {maskR:#x}")
        a(f"s_or_b32 s{sK}, s{sK}, s48")
        a("s_cmp_eq_u32 s92, 0"); a(f"s_cselect_b32 s46, s91, s{sK}")
        a("s_branch L_half")
        lab("L_spr")
        a("s_mov_b32 s91, s46"); a(f"s_mov_b32 s46, s{sK}")
        a(f"s_sub_u32 s92, 64, s{sCnt}"); a("s_lshl_b32 s92, s92, 1")
        a("s_branch L_half")
    if not shalf: lab("L_ldfin")
    if LH0:
        a(f"s_cmp_lg_u32 s{sMem}, 0"); a("s_cbranch_scc1 L_h1")
        half(float(LH0))
        a("s_branch L_h2")
        lab("L_h1")
    if not shalf: half(float(LH))
    lab("L_h2")
    if help:
        tiles = [(1 << mbit) + B(8*t) for t in range(4)] + [maskR + B(16) + B(8*t) for t in range(2)]
        h0, h1, h2 = [[int(ch) for ch in x] for x in str(help).split("-")]
        a(f"s_cmp_lg_u32 s{sMem}, 0"); a("s_cbranch_scc1 L_nohelp")
        cm("first workgroup: pull the second one's last tiles into the L2 the two normally share (speed only)")
        a(f"v_and_b32 v50, 7, v{vLane}"); a("v_lshlrev_b32 v50, 7, v50")
        for i in range(3): a(f"v_bfe_u32 v51, v{vLane}, {3+i}, 1"); a(f"v_lshl_add_u32 v50, v51, {jb[i]}, v50")
        def pf(ts):
            for t in ts: a(f"s_mov_b32 s50, {tiles[t]}"); a(f"buffer_load_dword v{52+t}, v50, {SS}, s50 offen {hfl}")
        if h0: a("s_waitcnt vmcnt(24)")
        pf(h0)
        a(f"s_waitcnt vmcnt({16 + len(h0)})"); a("s_barrier")
        pf(h1)
        a(f"s_waitcnt vmcnt({len(h0) + len(h1)})"); a("s_barrier")
        pf(h2)
        a("s_barrier")
        if stamp: a("s_branch L_lst")
        else: a("s_endpgm")
        lab("L_nohelp")
    a(f"s_waitcnt vmcnt({24 if emu else 16})"); a("s_barrier")
    if emu: lab("L_h3")
    a("s_waitcnt vmcnt(0)")
    if st4: a("s_memrealtime s[80:81]")
    a("s_barrier")
    if st4:
        a("s_memrealtime s[82:83]"); a("s_waitcnt lgkmcnt(0)")
        for i, r in enumerate((54, 76, 78, 80, 82)): a(f"v_writelane_b32 v22, s{r}, {i}")
        a("s_lshl_b32 s50, s2, 10"); a("s_add_u32 s50, s50, 0x200000")
        a(f"v_lshl_add_u32 v4, v{vLane}, 2, s50")
        a("global_store_dword v4, v20, s[52:53]"); a("global_store_dword v4, v21, s[52:53] offset:256"); a("global_store_dword v4, v22, s[52:53] offset:512")
    if help: lab("L_lst")
    if stamp: stamp_out()
    a("s_endpgm")

    L.append(".p2align 6")
    lab("L_cons")
    cm("=============== consumers")
    ids()
    a(f"s_sub_u32 s{sW}, s3, 1")
    a(f"v_lshrrev_b32 v{vH}, 5, v{vLane}")
    a(f"v_and_b32 v{vR}, 31, v{vLane}")
    a(f"s_lshl_b32 s{sMy}, s{sMem}, 3"); a(f"s_xor_b32 s{sOt}, s{sMy}, 8")
    if adj: a(f"s_mul_i32 s50, s{sPair}, {PS}"); a(f"s_add_u32 s50, s50, {W_DATA + 4 * WS1}")
    else: a(f"s_lshl_b32 s50, s{sPair}, 8"); a(f"s_add_u32 s50, s50, {W_WORD}")
    if not base: a(f"s_cmp_lg_u32 s{sW}, 3")
    a("s_waitcnt lgkmcnt(0)")
    if not base:
        a("s_cbranch_scc1 L_noq")
        cm("wave 4 clears this workgroup's share of the arrival counters")
        a(f"s_mul_i32 s45, s2, {CS}")
    if cp and not base:
        a(f"s_add_u32 s45, s45, {W_RANK}")
        a(f"v_lshl_add_u32 v{vT}, v{vLane}, {2 if same else 16}, s45"); a(f"v_mov_b32 v{vU}, 0")
        if same:
            a(f"s_cmp_ge_u32 s2, {R}"); a("s_cbranch_scc1 L_noq"); a("s_mov_b32 exec_hi, 0")
        elif R * len(cp) <= 256:
            a(f"s_cmp_ge_u32 s2, {R * len(cp)}"); a("s_cbranch_scc1 L_noq"); a("s_mov_b64 exec, 1")
        else:
            a(f"s_cmp_lt_u32 s2, {max(0, R * len(cp) - 256)}"); a("s_cselect_b32 exec_lo, 3, 1"); a("s_mov_b32 exec_hi, 0")
        a(f"global_store_dword v{vT}, v{vU}, s[52:53] sc1")
        a("s_mov_b64 exec, -1")
    if not base: lab("L_noq")
    a("s_add_u32 s66, s52, s50"); a("s_addc_u32 s67, s53, 0")
    a(f"s_cmp_lg_u32 s{sW}, 4"); a("s_cbranch_scc1 L_nohs")
    a(f"s_lshl_b32 s{sSnap}, 1, s{sMy}"); a(f"s_atomic_xor s{sSnap}, s[66:67], 0 glc")
    lab("L_nohs")
    cm("LDS read addresses for K-shaped tiles: r*256 + ((h ^ (r&15)) ^ 2s)*16, first pointing at Q")
    a(f"v_and_b32 v{vT}, 15, v{vR}")
    a(f"v_xor_b32 v{vT}, v{vT}, v{vH}")
    a(f"v_lshlrev_b32 v{vT}, 4, v{vT}")
    a(f"v_lshl_add_u32 v{vT}, v{vR}, 8, v{vT}")
    a(f"v_add_u32 v{vKrd[0]}, {L_Q}, v{vT}")
    for s in range(1, 8): a(f"v_xor_b32 v{vKrd[s]}, {32*s}, v{vKrd[0]}")
    cm("transposing V reads of column block w: row = 4h + r', chunk = (4w + 2gg + (c>>1)) ^ 4r', + 8*(c&1)")
    a(f"v_bfe_u32 v{vU}, v{vLane}, 2, 2")
    a(f"v_lshl_add_u32 v{vT}, v{vH}, 2, v{vU}")
    a(f"v_lshlrev_b32 v{vVa}, 8, v{vT}")
    a(f"v_xor_b32 v{vU}, s{sW}, v{vU}"); a(f"v_and_b32 v{vU}, 3, v{vU}")
    a(f"v_lshl_add_u32 v{vVa}, v{vU}, 6, v{vVa}")
    a(f"v_and_b32 v{vU}, 3, v{vLane}")
    a(f"v_lshl_add_u32 v{vVa}, v{vU}, 3, v{vVa}")
    a(f"v_and_b32 v{vU}, 16, v{vLane}")
    a(f"v_lshl_add_u32 v{vVa}, v{vU}, 1, v{vVa}")
    a(f"v_lshlrev_b32 v{vPa}, 4, v{vLane}"); a(f"v_add_u32 v{vPa}, {L_PS}, v{vPa}")
    a(f"v_mov_b32 v{vZ}, 0")
    a(f"v_lshlrev_b32 v{vMla}, 3, v{vR}"); a(f"v_add_u32 v{vMla}, {L_ML}, v{vMla}")
    a(f"s_mov_b32 s{sBase}, {L_Q}"); a(f"s_mov_b32 s{sC}, {f32(c)}"); a(f"s_add_u32 s{sCnt}, s{sMem}, 32")
    a(f"s_add_u32 s{sWo}, s{sW}, 2"); a(f"s_sub_u32 s50, s{sWo}, 7"); a(f"s_cselect_b32 s{sWo}, s{sWo}, s50")
    a(f"s_mov_b32 s{sBuf}, 0"); a(f"s_mov_b32 s{sJ}, s{sWo}"); a(f"s_mov_b32 s{sSlot}, 0"); a(f"s_mov_b32 s{sSt}, 0")
    a(f"s_mov_b32 s{sLim}, 1"); a(f"s_mov_b32 s{sStep}, 5")
    a(f"s_mul_i32 s50, s{sW}, {19*128}"); a(f"s_add_u32 s50, s50, {L_MI}")
    a(f"v_lshl_add_u32 v{vMIa}, v{vR}, 2, s50")
    a(f"v_mov_b32 v{vL}, 0"); a(f"v_mov_b32 v{vM}, {f32(-3.0e38)}"); a(f"v_mov_b32 v{vMC}, v{vM}")
    if rowp:
        sh = 10 if rowp == 1 else 11
        a(f"s_lshl_b32 s50, s{sPair}, 2"); a(f"s_add_u32 s50, s50, s{sW}")
        a("s_and_b32 s51, s50, 31"); a(f"s_lshl_b32 s51, s51, {sh}"); a("s_lshr_b32 s50, s50, 5"); a("s_lshl_b32 s50, s50, 17")
        a("s_add_u32 s50, s50, s51"); a(f"s_add_u32 s50, s50, {WSOFF + (2 << 20)}")
        a("s_add_u32 s24, s52, s50"); a("s_addc_u32 s25, s53, 0"); a(f"s_mov_b32 s26, {3 * 32768 + 1024}"); a("s_mov_b32 s27, 0x20000")
    else:
        a(f"s_mul_i32 s50, s{sPair}, {PS}"); a(f"s_mul_i32 s51, s{sW}, {WS1}"); a("s_add_u32 s50, s50, s51"); a(f"s_add_u32 s50, s50, {W_DATA}")
        a("s_add_u32 s24, s52, s50"); a("s_addc_u32 s25, s53, 0"); a(f"s_movk_i32 s26, {WS1}"); a("s_mov_b32 s27, 0x20000")
    a("s_mov_b32 s32, s16"); a("s_mov_b32 s33, s17"); a("s_mov_b32 s34, 0x100000"); a("s_mov_b32 s35, 0x20000")
    a(f"s_lshl_b32 s50, s{sPair}, 13"); a(f"s_lshl_b32 s51, s{sW}, 6"); a("s_add_u32 s69, s50, s51")
    a("s_barrier")
    if calp == 1: a("s_memrealtime s[72:73]")
    for s in range(8): a(f"ds_read_b128 {vr(Q0 + 4*s, 4)}, v{vKrd[s]}")
    a("s_waitcnt lgkmcnt(0)")
    a("s_branch L_kgo")
    lab("L_kr")
    a("s_barrier")
    lab("L_kgo")
    a(f"s_cmp_gt_u32 s{sJ}, s{sLim}"); a("s_cbranch_scc1 L_kidle")
    a(f"s_lshl_b32 s50, s{sJ}, 13"); a(f"s_add_u32 s50, s50, s{sBuf}")
    a(f"s_mov_b32 s{sCur}, s{sSlot}"); a(f"s_add_u32 s{sSlot}, s{sSlot}, 8")
    lab("L_ktile")
    a(f"s_sub_u32 s51, s50, s{sBase}"); a(f"s_mov_b32 s{sBase}, s50")
    for s in range(8):
        a(f"v_add_u32 v{vKrd[s]}, s51, v{vKrd[s]}")
        a(f"ds_read_b128 {vr(KF + 4*s, 4)}, v{vKrd[s]}")
    a(f"s_lshl_b32 s50, s{sCur}, 4")
    a(f"v_add_u32 v{vTmp[1]}, s50, v{vMIa}")
    a(f"s_cmp_gt_u32 s{sJ}, 3")
    a("s_waitcnt lgkmcnt(7)")
    a("s_cbranch_scc1 L_kbias")
    a(f"v_mfma_f32_32x32x16_bf16 {vr(S0, 16)}, {vr(KF, 4)}, {vr(Q0, 4)}, 0")
    lab("L_k1")
    for s in range(1, 8):
        a(f"s_waitcnt lgkmcnt({7-s})")
        a(f"v_mfma_f32_32x32x16_bf16 {vr(S0, 16)}, {vr(KF + 4*s, 4)}, {vr(Q0 + 4*s, 4)}, {vr(S0, 16)}")
    a("s_nop 11")
    cm("online softmax; the reference is the running maximum rounded up to a whole power of two")
    a(f"v_max3_f32 v{vT}, v{S0}, v{S0+1}, v{vM}")
    a(f"v_max3_f32 v{vU}, v{S0+2}, v{S0+3}, v{S0+4}")
    for j in range(5, 15, 4):
        a(f"v_max3_f32 v{vT}, v{S0+j}, v{S0+j+1}, v{vT}")
        if j + 3 < 15: a(f"v_max3_f32 v{vU}, v{S0+j+2}, v{S0+j+3}, v{vU}")
    a(f"v_max3_f32 v{vT}, v{S0+15}, v{vU}, v{vT}")
    a(f"v_mov_b32 v{vU}, v{vT}")
    a("s_nop 1")
    a(f"v_permlane32_swap_b32 v{vT}, v{vU}")
    a(f"v_max_f32 v{vM}, v{vT}, v{vU}")
    a(f"v_mul_f32 v{vT}, s{sC}, v{vM}")
    a(f"v_ceil_f32 v{vT}, v{vT}")
    a(f"v_sub_f32 v{vAL}, v{vMC}, v{vT}")
    a(f"v_mov_b32 v{vMC}, v{vT}")
    a(f"ds_write_b32 v{vTmp[1]}, v{vT}")
    a(f"v_exp_f32 v{vAL}, v{vAL}")
    for j in range(16): a(f"v_fma_f32 v{S0+j}, v{S0+j}, s{sC}, -v{vMC}")
    for j in range(16): a(f"v_exp_f32 v{S0+j}, v{S0+j}")
    a(f"v_mul_f32 v{vL}, v{vL}, v{vAL}")
    a(f"s_set_gpr_idx_on s{sCur}, gpr_idx(DST)"); a("s_mov_b32 s50, 0x3f803f80")
    for j in range(8): a(f"v_cvt_pk_bf16_f32 v{PB+j}, v{S0+2*j}, v{S0+2*j+1}")
    a(f"s_set_gpr_idx_on s{sCur}, gpr_idx(SRC0)"); a("s_nop 0")
    for j in range(8): a(f"v_dot2_f32_bf16 v{vL}, v{PB+j}, s50, v{vL}")
    a("s_set_gpr_idx_off")
    lab("L_knext")
    a(f"s_add_u32 s{sJ}, s{sJ}, s{sStep}"); a(f"s_sub_u32 s50, s{sJ}, 7"); a(f"s_cselect_b32 s{sJ}, s{sJ}, s50")
    a(f"s_mov_b32 s{sLim}, 3"); a(f"s_mov_b32 s{sStep}, 3")
    nextbuf()
    a(f"s_sub_u32 s{sCnt}, s{sCnt}, 1"); a(f"s_cmp_lg_u32 s{sCnt}, 0"); a("s_cbranch_scc1 L_kr")

    cm("=============== between K and V: common reference M and sum L of this workgroup")
    a(f"v_mov_b32 v{vU}, v{vL}")
    a(f"s_lshl_b32 s50, s{sW}, 8")
    a(f"v_add_u32 v{vT}, s50, v{vMla}")
    a(f"v_permlane32_swap_b32 v{vL}, v{vU}")
    a(f"v_add_f32 v{vL}, v{vL}, v{vU}")
    a(f"ds_write_b64 v{vT}, {vr(vMC, 2)}")
    for j in range(0, 16, 2): a(f"v_mov_b64 {vr(O0+j, 2)}, 0")
    a(f"s_lshl_b32 s{sT0}, s{sMem}, 2"); a(f"s_add_u32 s{sT0}, s{sT0}, 2")
    if emu: a(f"s_mov_b32 s{sCnt}, 32")
    else: a(f"s_add_u32 s{sCnt}, s{sMem}, 32")
    a(f"s_mov_b32 s{sBase}, 0")
    if early: a(f"s_lshl_b32 s{sSlot}, s{sMem}, 1"); a(f"s_sub_u32 s{sSlot}, s{sSlot}, 1")
    else: a(f"s_sub_u32 s{sSlot}, s{sMem}, 1")
    a("s_waitcnt lgkmcnt(0)")
    a("s_barrier")
    if calp == 2: a("s_memrealtime s[72:73]")
    for k in range(7): a(f"ds_read_b32 v{KF + k}, v{vMla} offset:{256*k}")
    cm("wave 6 of the first workgroup stages the tree tile's probabilities (slot 18) now; it owns no tile of the first V round")
    a(f"s_mov_b32 s{sCur}, {18*8}"); a(f"s_mov_b32 s50, {L_TP - L_PS}")
    a(f"s_add_u32 s51, s{sW}, s{sMy}"); a("s_cmp_eq_u32 s51, 5")
    a("s_waitcnt lgkmcnt(0)")
    a(f"v_max3_f32 v{vMC}, v{KF}, v{KF+1}, v{KF+2}"); a(f"v_max3_f32 v{vMC}, v{vMC}, v{KF+3}, v{KF+4}"); a(f"v_max3_f32 v{vMC}, v{vMC}, v{KF+5}, v{KF+6}")
    a("s_cbranch_scc1 L_dump")
    lab("L_stage")
    cm("stage my tile of the coming round (tiles t0 .. t0+3; the closing half round is tiles 0, 1), if I own one")
    a(f"s_cmp_eq_u32 s{sCnt}, 1"); a(f"s_cselect_b32 s{sT0}, 0, s{sT0}"); a(f"s_cselect_b32 s{sLim}, 1, 3")
    a(f"s_add_u32 s50, s{sT0}, 6"); a(f"s_sub_u32 s50, s50, s{sWo}")
    a("s_mul_i32 s50, s50, 9363"); a("s_lshr_b32 s50, s50, 16")
    a(f"s_lshl_b32 s{sCur}, s50, 3")
    a(f"s_sub_u32 s50, s{sCur}, s50"); a(f"s_add_u32 s50, s50, s{sWo}"); a(f"s_sub_u32 s50, s50, s{sT0}")
    a(f"s_cmp_gt_u32 s50, s{sLim}"); a("s_cbranch_scc1 L_vnext")
    a(f"s_lshl_b32 s50, s50, 11"); a(f"s_add_u32 s50, s50, s{sBase}")
    lab("L_dump")
    a(f"s_lshl_b32 s51, s{sCur}, 4")
    a(f"v_add_u32 v{vT}, s51, v{vMIa}")
    a(f"ds_read_b32 v{vT}, v{vT}")
    a(f"v_add_u32 v{vU}, s50, v{vPa}")
    a("s_waitcnt lgkmcnt(0)")
    a(f"v_sub_f32 v{vT}, v{vMC}, v{vT}")
    a(f"v_min_f32 v{vT}, {f32(255.0)}, v{vT}")
    a(f"v_cvt_u32_f32 v{vT}, v{vT}")
    a(f"v_mul_u32_u24 v{vT}, 0x800080, v{vT}")
    a(f"s_set_gpr_idx_on s{sCur}, gpr_idx(SRC0)"); a("s_nop 0")
    for j in range(8): a(f"v_pk_sub_u16 v{DT+j}, v{PB+j}, v{vT} clamp")
    a("s_set_gpr_idx_off")
    a(f"ds_write_b128 v{vU}, {vr(DT, 4)}"); a(f"ds_write_b128 v{vU}, {vr(DT+4, 4)} offset:1024")
    lab("L_vnext")
    a(f"s_add_u32 s{sT0}, s{sT0}, 4"); a(f"s_cmp_eq_u32 s{sT0}, 130"); a(f"s_cselect_b32 s{sT0}, 2, s{sT0}")
    a(f"v_add_u32 v{vT}, s{sBuf}, v{vVa}"); a(f"v_add_u32 v{vU}, s{sBase}, v{vPa}")
    a(f"s_xor_b32 s{sBase}, s{sBase}, 8192")
    nextbuf()
    a(f"s_sub_u32 s{sCnt}, s{sCnt}, 1")
    a(f"s_cmp_gt_u32 s{sW}, 3")
    a("s_waitcnt lgkmcnt(0)")
    a("s_cbranch_scc1 L_vside")
    a(f"s_cmp_eq_u32 s{sCnt}, s{sSlot}"); a("s_cbranch_scc1 L_close")
    a(f"s_cmp_eq_u32 s{sCnt}, 0")
    if st6:
        a("s_memrealtime s[74:75]")
    a("s_barrier")
    if st6:
        a("s_memrealtime s[76:77]")
    lab("L_vbody")
    def vreads(t):
        for u in range(2):
            for z in range(2): a(f"ds_read_b64_tr_b16 {vr(VF + 8*t + 4*u + 2*z, 2)}, v{vT} offset:{8192*t + 4096*u + 2048*z}")
    def preads(t):
        for u in range(2): a(f"ds_read_b128 {vr(PF + 8*t + 4*u, 4)}, v{vU} offset:{2048*t + 1024*u}")
    def pvm(t):
        for u in range(2): a(f"v_mfma_f32_32x32x16_bf16 {vr(O0, 16)}, {vr(VF + 8*t + 4*u, 4)}, {vr(PF + 8*t + 4*u, 4)}, {vr(O0, 16)}")
    def grp(m):
        t, u = divmod(m, 2)
        a(f"ds_read_b128 {vr(PF + 8*t + 4*u, 4)}, v{vU} offset:{2048*t + 1024*u}")
        for z in range(2): a(f"ds_read_b64_tr_b16 {vr(VF + 8*t + 4*u + 2*z, 2)}, v{vT} offset:{8192*t + 4096*u + 2048*z}")
    def mf(m): a(f"v_mfma_f32_32x32x16_bf16 {vr(O0, 16)}, {vr(VF + 4*m, 4)}, {vr(PF + 4*m, 4)}, {vr(O0, 16)}")
    if fine:
        for m in range(4): grp(m)
        a("s_cbranch_scc1 L_last")
        for m in range(4):
            a("s_waitcnt lgkmcnt(9)"); mf(m); grp(m + 4)
        a(f"s_cmp_eq_u32 s{sCnt}, 1")
        for m in range(4, 8):
            a(f"s_waitcnt lgkmcnt({3 * (7 - m)})"); mf(m)
        a("s_cbranch_scc1 L_vnext")
        a(f"s_cmp_eq_u32 s{sCnt}, 20")
    else:
        preads(0); vreads(0); preads(1); vreads(1)
        a("s_waitcnt lgkmcnt(6)"); pvm(0)
        a("s_cbranch_scc1 L_last")
        preads(2); vreads(2)
        a("s_waitcnt lgkmcnt(6)"); pvm(1)
        preads(3); vreads(3)
        a("s_waitcnt lgkmcnt(6)"); pvm(2)
        a(f"s_cmp_eq_u32 s{sCnt}, 20")
        a("s_waitcnt lgkmcnt(0)"); pvm(3)
    a("s_cbranch_scc0 L_stage")
    cm("once: the sum L; the tree tile (keys 0..15 only)")
    for k in range(7): a(f"ds_read_b64 {vr(KF + 2*k, 2)}, v{vMla} offset:{256*k}")
    a(f"v_add_u32 v{vT}, {L_TV}, v{vVa}")
    a(f"ds_read_b128 {vr(PF, 4)}, v{vPa} offset:{L_TP - L_PS}")
    for z in range(2): a(f"ds_read_b64_tr_b16 {vr(PF + 4 + 2*z, 2)}, v{vT} offset:{2048*z}")
    a(f"s_cmp_lg_u32 s{sMem}, 0")
    a("s_waitcnt lgkmcnt(0)")
    for k in range(7): a(f"v_sub_f32 v{KF+2*k}, v{KF+2*k}, v{vMC}")
    for k in range(7): a(f"v_exp_f32 v{KF+2*k}, v{KF+2*k}")
    a(f"v_mul_f32 v{vL}, v{KF}, v{KF+1}")
    for k in range(1, 7): a(f"v_fma_f32 v{vL}, v{KF+2*k}, v{KF+2*k+1}, v{vL}")
    a("s_cbranch_scc1 L_stage")
    a(f"v_mfma_f32_32x32x16_bf16 {vr(O0, 16)}, {vr(PF + 4, 4)}, {vr(PF, 4)}, {vr(O0, 16)}")
    a("s_branch L_stage")

    lab("L_last")
    cm("=============== closing half round and hand-off")
    if calp == 3: a("s_memrealtime s[72:73]")
    PP, PM = 120, 136
    XS = 256 if rowp == 1 else (512 if rowp == 2 else 1024)
    def addrs(r):
        if rowp == 1:
            a(f"v_and_b32 v{r}, 15, v{vLane}"); a(f"v_lshlrev_b32 v{r}, 4, v{r}"); a(f"v_lshrrev_b32 v{r+1}, 4, v{vLane}"); a(f"v_lshl_add_u32 v{r}, v{r+1}, 15, v{r}")
        elif rowp == 2:
            a(f"v_lshlrev_b32 v{r}, 4, v{vR}"); a(f"v_lshl_add_u32 v{r}, v{vH}, 16, v{r}")
        else: a(f"v_lshlrev_b32 v{r}, 4, v{vLane}")
        a(f"v_lshlrev_b32 v{r+1}, 3, v{vR if pack else vLane}"); a(f"v_add_u32 v{r+1}, {XS * NX}, v{r+1}")
    PH = 144
    def fetch(r):
        a(f"buffer_load_dwordx2 {vr(PM, 2)}, v{r+1}, {SD}, 0 offen {hlf}")
        for x in range(NX - halfx): a(f"buffer_load_dwordx4 {vr((PH if pack == 'B' else PP) + 4*x, 4)}, v{r}, {SD}, 0 offen offset:{XS*x} {hlf}")
    addrs(DT + 2)
    a(f"s_cmp_lg_u32 s{sMem}, 0")
    if fine:
        a("s_cbranch_scc1 L_merge")
        cm("first workgroup: publish, then raise the flag")
        if pack != "B": a(f"buffer_store_dwordx2 {vr(vMC, 2)}, v{DT+3}, {SD}, 0 offen {hsf}")
        for m in range(4): a(f"s_waitcnt lgkmcnt({3 * (3 - m)})"); mf(m)
        if pack == "A":
            cm("24 bits per value: the upper three bytes of values 12..15 replace the low bytes of values 0..11")
            for k in range(3): a(f"s_mov_b32 s{72+k}, {0x07060501 + k:#x}")
            a("s_nop 8")
            for x in range(3):
                for j in range(4*x, 4*x + 4): a(f"v_perm_b32 v{KF+j}, v{O0+j}, v{O0+12+j//3}, s{72 + j % 3}")
                a(f"buffer_store_dwordx4 {vr(KF + 4*x, 4)}, v{DT+2}, {SD}, 0 offen offset:{XS*x} {hsf}")
        elif pack == "B":
            cm("half precision after scaling each query's block by a power of two; the exponent rides in the low byte of L")
            a("s_movk_i32 s72, 0xff")
            a("s_nop 10")
            a(f"v_max3_f32 v{vT}, |v{O0}|, |v{O0+1}|, |v{O0+2}|"); a(f"v_max3_f32 v{vU}, |v{O0+3}|, |v{O0+4}|, |v{O0+5}|")
            for j in range(6, 14, 4):
                a(f"v_max3_f32 v{vT}, |v{O0+j}|, |v{O0+j+1}|, v{vT}"); a(f"v_max3_f32 v{vU}, |v{O0+j+2}|, |v{O0+j+3}|, v{vU}")
            a(f"v_max3_f32 v{vT}, |v{O0+14}|, |v{O0+15}|, v{vT}")
            a(f"v_max_f32 v{vT}, v{vT}, v{vU}")
            a(f"v_mov_b32 v{vU}, v{vT}")
            a("s_nop 1")
            a(f"v_permlane32_swap_b32 v{vT}, v{vU}")
            a(f"v_max_f32 v{vT}, v{vT}, v{vU}")
            a(f"v_frexp_exp_i32_f32 v{vT}, v{vT}")
            a(f"v_sub_u32 v{vT}, 15, v{vT}")
            a(f"v_min_i32 v{vT}, 0x78, v{vT}")
            a(f"v_ldexp_f32 v{vU}, 1.0, v{vT}")
            a(f"v_bfi_b32 v{vL}, s72, v{vT}, v{vL}")
            for x in range(2):
                for j in range(4*x, 4*x + 4): a(f"v_pk_mul_f32 {vr(O0+2*j, 2)}, {vr(O0+2*j, 2)}, {vr(vU, 2)} op_sel_hi:[1,0]")
                for j in range(4*x, 4*x + 4): a(f"v_cvt_pk_f16_f32 v{KF+j}, v{O0+2*j}, v{O0+2*j+1}")
                a(f"buffer_store_dwordx4 {vr(KF + 4*x, 4)}, v{DT+2}, {SD}, 0 offen offset:{XS*x} {hsf}")
            a(f"buffer_store_dwordx2 {vr(vMC, 2)}, v{DT+3}, {SD}, 0 offen {hsf}")
        else: a("s_nop 11")
    else:
        a("s_waitcnt lgkmcnt(0)"); pvm(1)
        a("s_cbranch_scc1 L_merge")
        cm("first workgroup: publish, then raise the flag")
        a(f"buffer_store_dwordx2 {vr(vMC, 2)}, v{DT+3}, {SD}, 0 offen {hsf}")
        a("s_nop 9")
    for x in range(0 if pack else 4 - halfx): a(f"buffer_store_dwordx4 {vr(O0 + 4*x, 4)}, v{DT+2}, {SD}, 0 offen offset:{XS*x} {hsf}")
    st(3)
    a(f"v_mov_b32 v{vU}, 8" if vflag else "s_mov_b32 s50, 8")
    a(f"s_cmp_lg_u32 s{sW}, 0")
    a("s_waitcnt vmcnt(0)")
    st(4)
    a("s_barrier")
    st(5)
    a("s_cbranch_scc1 L_done")
    if vflag:
        a("s_mov_b64 exec, 1"); a(f"global_atomic_xor v{vZ}, v{vU}, s[66:67] sc1"); a("s_mov_b64 exec, -1")
    else: a("s_atomic_xor s50, s[66:67], 0")
    a("s_branch L_done")
    lab("L_close")
    cm("second workgroup: the rendezvous of its last full round also waits for wave 5 to have seen the flag; fetch the other result now")
    addrs(DT + 2)
    st(1)
    a("s_barrier")
    st(2)
    if calp == 5: a("s_memrealtime s[76:77]")
    if reh: lab("L_fetch")
    fetch(DT + 2)
    if early: a(f"s_cmp_eq_u32 s{sCnt}, 0")
    a("s_branch L_vbody")
    lab("L_merge")
    st(3); st(4)
    a(f"v_lshlrev_b32 v{DT+4}, 8, v{vR}"); a(f"v_lshl_add_u32 v{DT+4}, v{vH}, 4, v{DT+4}")
    FA, FB = 138, 140
    if il:
        assert pack == "A"
        a("s_mov_b32 s72, 0x0c04000c"); a("s_mov_b32 s73, 0x0402010c")
        pre = [f"v_max_f32 v{vT}, v{vMC}, v{PM}", f"v_sub_f32 v{FA}, v{vMC}, v{vT}", f"v_sub_f32 v{FB}, v{PM}, v{vT}",
               f"v_exp_f32 v{FA}, v{FA}", f"v_exp_f32 v{FB}, v{FB}", f"v_mul_f32 v{vT}, v{FA}, v{vL}", f"v_fma_f32 v{vT}, v{FB}, v{PM+1}, v{vT}",
               f"v_rcp_f32 v{vT}, v{vT}"]
        pre += [f"v_perm_b32 v{PP+12+i}, v{PP+3*i+1}, v{PP+3*i}, s72" for i in range(4)]
        pre += [f"v_perm_b32 v{PP+12+i}, v{PP+3*i+2}, v{PP+12+i}, s73" for i in range(4)]
        pre += [f"v_mul_f32 v{FB}, v{FB}, v{vT}", f"v_mul_f32 v{FA}, v{FA}, v{vT}"]
        pre += [f"v_mul_f32 v{PP+j}, v{FB}, v{PP+j}" for j in range(16)]
        cuts = {1: (0, 0, 5, 11, 17), 2: (0, 0, 0, 6, 12), 3: (0, 6, 12, 18, 22)}[il]
        waited = False
        for m in range(4):
            seg = pre[cuts[m]:cuts[m+1]]
            if seg and not waited: a("s_waitcnt vmcnt(0)"); waited = True
            for x in seg: a(x)
            a(f"s_waitcnt lgkmcnt({3 * (3 - m)})"); mf(m)
        for x in pre[cuts[4]:]: a(x)
        for b in range(2):
            for j in range(4*b, 4*b + 4): a(f"v_pk_fma_f32 {vr(O0+2*j, 2)}, {vr(O0+2*j, 2)}, {vr(FA, 2)}, {vr(PP+2*j, 2)} op_sel_hi:[1,0,1]")
            for j in (0, 2, 1, 3): a(f"v_cvt_pk_bf16_f32 v{KF+16+4*b+j}, v{O0+8*b+2*j}, v{O0+8*b+2*j+1}")
            a(f"v_permlane32_swap_b32 v{KF+16+4*b}, v{KF+16+4*b+2}"); a("s_nop 0"); a(f"v_permlane32_swap_b32 v{KF+16+4*b+1}, v{KF+16+4*b+3}")
            a(f"buffer_store_dwordx4 {vr(KF+16+4*b, 4)}, v{DT+4}, {SO}, s69 offen offset:{32*b} {ofl}")
    elif fine:
        if pack == "A": a("s_mov_b32 s72, 0x0c04000c"); a("s_mov_b32 s73, 0x0402010c")
        a("s_waitcnt lgkmcnt(9)"); mf(0)
        a("s_waitcnt lgkmcnt(6)"); mf(1)
        a("s_waitcnt lgkmcnt(3)"); mf(2)
        a("s_waitcnt lgkmcnt(0)"); mf(3)
        a("s_waitcnt vmcnt(0)")
        a(f"v_max_f32 v{vT}, v{vMC}, v{PM}")
        a(f"v_sub_f32 v{FA}, v{vMC}, v{vT}"); a(f"v_sub_f32 v{FB}, v{PM}, v{vT}")
        a(f"v_exp_f32 v{FA}, v{FA}"); a(f"v_exp_f32 v{FB}, v{FB}")
        a(f"v_mul_f32 v{vT}, v{FA}, v{vL}")
        a(f"v_fma_f32 v{vT}, v{FB}, v{PM+1}, v{vT}")
        a(f"v_rcp_f32 v{vT}, v{vT}")
        if pack == "A":
            for i in range(4): a(f"v_perm_b32 v{PP+12+i}, v{PP+3*i+1}, v{PP+3*i}, s72")
            for i in range(4): a(f"v_perm_b32 v{PP+12+i}, v{PP+3*i+2}, v{PP+12+i}, s73")
        elif pack == "B":
            a(f"v_bfe_i32 v{vU}, v{PM+1}, 0, 8"); a(f"v_sub_u32 v{vU}, 0, v{vU}")
        else: a("s_nop 0")
        a(f"v_mul_f32 v{FB}, v{FB}, v{vT}"); a(f"v_mul_f32 v{FA}, v{FA}, v{vT}")
        if pack == "B": a(f"v_ldexp_f32 v{FB}, v{FB}, v{vU}")
        for b in range(2):
            if pack == "B":
                for j in range(8*b, 8*b + 8): a(f"v_fma_mix_f32 v{PP+j}, v{PH + j//2}, v{FB}, 0 op_sel:[{j & 1},0,0] op_sel_hi:[1,0,0]")
            else:
                for j in range(4*b, 4*b + 4): a(f"v_pk_mul_f32 {vr(PP+2*j, 2)}, {vr(PP+2*j, 2)}, {vr(FB, 2)} op_sel_hi:[1,0]")
            for j in range(4*b, 4*b + 4): a(f"v_pk_fma_f32 {vr(O0+2*j, 2)}, {vr(O0+2*j, 2)}, {vr(FA, 2)}, {vr(PP+2*j, 2)} op_sel_hi:[1,0,1]")
            for j in (0, 2, 1, 3): a(f"v_cvt_pk_bf16_f32 v{KF+4*b+j}, v{O0+8*b+2*j}, v{O0+8*b+2*j+1}")
            a(f"v_permlane32_swap_b32 v{KF+4*b}, v{KF+4*b+2}"); a("s_nop 0"); a(f"v_permlane32_swap_b32 v{KF+4*b+1}, v{KF+4*b+3}")
            a(f"buffer_store_dwordx4 {vr(KF+4*b, 4)}, v{DT+4}, {SO}, s69 offen offset:{32*b} {ofl}")
    else:
        a(f"s_waitcnt vmcnt({0 if halfx else 4})")
        a(f"v_max_f32 v{vT}, v{vMC}, v{PM}")
        a(f"v_sub_f32 v{FA}, v{vMC}, v{vT}"); a(f"v_sub_f32 v{FB}, v{PM}, v{vT}")
        a(f"v_exp_f32 v{FA}, v{FA}"); a(f"v_exp_f32 v{FB}, v{FB}")
        a(f"v_mul_f32 v{vT}, v{FA}, v{vL}")
        a(f"v_fma_f32 v{vT}, v{FB}, v{PM+1}, v{vT}")
        a(f"v_rcp_f32 v{vT}, v{vT}")
        a("s_nop 0")
        a(f"v_mul_f32 v{FA}, v{FA}, v{vT}"); a(f"v_mul_f32 v{FB}, v{FB}, v{vT}")
        for j in range(8): a(f"v_pk_mul_f32 {vr(O0+2*j, 2)}, {vr(O0+2*j, 2)}, {vr(FA, 2)} op_sel_hi:[1,0]")
        for b in range(2):
            a(f"s_waitcnt vmcnt({2 if b == 0 else 1})")
            if b == 1: st(5)
            for j in range(4*b, 4*b + 4): a(f"v_pk_fma_f32 {vr(O0+2*j, 2)}, {vr(PP+2*j, 2)}, {vr(FB, 2)}, {vr(O0+2*j, 2)} op_sel_hi:[1,0,1]")
            for j in (0, 2, 1, 3): a(f"v_cvt_pk_bf16_f32 v{KF+4*b+j}, v{O0+8*b+2*j}, v{O0+8*b+2*j+1}")
            a(f"v_permlane32_swap_b32 v{KF+4*b}, v{KF+4*b+2}"); a("s_nop 0"); a(f"v_permlane32_swap_b32 v{KF+4*b+1}, v{KF+4*b+3}")
            a(f"buffer_store_dwordx4 {vr(KF+4*b, 4)}, v{DT+4}, {SO}, s69 offen offset:{32*b} {ofl}")
    st(6)
    if reh: a(f"s_cmp_eq_u32 s{sW}, 6"); a("s_cbranch_scc1 L_stage")
    lab("L_done")
    if st6:
        a("s_waitcnt vmcnt(0)"); a("s_memrealtime s[86:87]"); a("s_waitcnt lgkmcnt(0)")
        a(f"s_lshl_b32 s50, s{sMem}, 2"); a("v_mov_b32 v20, s50")
        for i in range(1, 8): a(f"v_writelane_b32 v20, s{72+2*i}, {i}")
        a("s_lshl_b32 s50, s2, 2"); a(f"s_add_u32 s50, s50, s{sW}"); a("s_lshl_b32 s50, s50, 8"); a("s_add_u32 s50, s50, 0x200000")
        a(f"v_lshl_add_u32 v21, v{vLane}, 2, s50")
        a("global_store_dword v21, v20, s[52:53]")
    if cal:
        a(f"s_mov_b32 s74, {cal}")
        if calp >= 4: a("s_waitcnt vmcnt(0)"); a("s_memrealtime s[72:73]")
        if calp == 5:
            a("s_waitcnt lgkmcnt(0)"); a("s_sub_u32 s72, s72, s76"); a(f"s_mul_i32 s72, s72, s{sMem}")
            a("s_mul_i32 s72, s72, 20"); a("s_add_u32 s74, s74, s72"); a("s_min_u32 s74, s74, 30000")
        elif calp:
            a("s_waitcnt lgkmcnt(0)"); a("s_sub_u32 s72, s72, s54"); a(f"s_sub_u32 s72, s72, {(0, 0, 3000, 6500, 6500)[calp]}")
            a("s_mul_i32 s72, s72, 5"); a("s_add_u32 s74, s74, s72"); a("s_min_u32 s74, s74, 30000")
        lab("L_cal")
        a("s_memrealtime s[56:57]"); a("s_waitcnt lgkmcnt(0)"); a("s_sub_u32 s56, s56, s54"); a(f"s_cmp_lt_u32 s56, s74"); a("s_cbranch_scc1 L_cal")
    if stamp: stamp_out()
    lab("L_end")
    a("s_endpgm")

    if reh:
        lab("L_reh")
        cm("wave 7 of the second workgroup runs the closing code once ahead of time, through empty descriptors, so that it is in the instruction cache")
        a("s_mov_b32 s26, 0"); a("s_mov_b32 s34, 0")
        addrs(DT + 2)
        a("s_branch L_fetch")
    lab("L_vside")
    cm("waves 5..7 only stage")
    a(f"s_cmp_eq_u32 s{sCnt}, 0"); a("s_cbranch_scc1 L_end")
    a("s_barrier")
    if reh:
        a(f"s_lshl_b32 s50, s{sCnt}, 4"); a(f"s_add_u32 s50, s50, s{sW}"); a(f"s_add_u32 s50, s50, s{sMy}")
        a(f"s_cmp_eq_u32 s50, {reh * 16 + 14}"); a("s_cbranch_scc1 L_reh")
    a(f"s_cmp_lg_u32 s{sW}, 4"); a("s_cbranch_scc1 L_stage")
    a(f"s_cmp_eq_u32 s{sCnt}, 24"); a("s_cbranch_scc1 L_hsfin")
    a(f"s_add_u32 s50, s{sSlot}, 1"); a(f"s_cmp_lg_u32 s{sCnt}, s50"); a("s_cbranch_scc1 L_stage")
    cm("wave 5 of the second workgroup owns no tile of the last round and a half: it watches the word")
    if pk == "sv":
        a(f"s_mov_b32 s71, {NS}")
        if d0: a(f"s_sleep {d0}")
        lab("L_spoll")
        a("s_load_dword s50, s[66:67], 0 glc")
        a("s_waitcnt lgkmcnt(0)")
        a(f"s_xor_b32 s50, s50, s{sSnap}")
        a("s_bitcmp1_b32 s50, 3"); a("s_cbranch_scc1 L_seen")
        if d1: a(f"s_sleep {d1}")
        a("s_sub_u32 s71, s71, 1"); a("s_cbranch_scc0 L_spoll")
    a(f"s_mov_b32 s71, {BOUND}")
    lab("L_poll")
    if pk in ("v", "sv"):
        a(f"global_load_dword v{vU}, v{vZ}, s[66:67] sc1")
        a("s_sub_u32 s71, s71, 1"); a("s_cbranch_scc1 L_seen")
        a("s_waitcnt vmcnt(0)")
        a(f"v_readfirstlane_b32 s50, v{vU}")
    else:
        a("s_sub_u32 s71, s71, 1"); a("s_cbranch_scc1 L_seen")
        if pk == "s": a("s_load_dword s50, s[66:67], 0 glc")
        else: a("s_mov_b32 s50, 0"); a("s_atomic_or s50, s[66:67], 0 glc")
        a("s_waitcnt lgkmcnt(0)")
    a(f"s_xor_b32 s50, s50, s{sSnap}")
    a("s_bitcmp1_b32 s50, 3"); a("s_cbranch_scc0 L_poll")
    lab("L_seen")
    a("s_barrier")
    a("s_endpgm")

    cm("=============== out-of-line pieces of the K phase")
    lab("L_kbias")
    a(f"v_mfma_f32_32x32x16_bf16 {vr(S0, 16)}, {vr(KF, 4)}, {vr(Q0, 4)}, {vr(S0, 16)}")
    a("s_branch L_k1")
    lab("L_kidle")
    a(f"s_cmp_eq_u32 s{sW}, 4"); a("s_cbranch_scc1 L_hs")
    a(f"s_add_u32 s50, s{sW}, s{sMy}"); a("s_cmp_lg_u32 s50, 5"); a("s_cbranch_scc1 L_knext")
    a(f"s_cmp_eq_u32 s{sCnt}, 31"); a("s_cbranch_scc1 L_tree1")
    a(f"s_cmp_lg_u32 s{sCnt}, 29"); a("s_cbranch_scc1 L_knext")
    cm("tree tokens, step 2: score bias (1-mask) * -1e9 / scale, then the ordinary tile code")
    big = 1e9 * math.sqrt(128)
    TM = PB + 18 * 8
    a(f"s_mov_b32 s51, {f32(big)}")
    a(f"v_mov_b32 v{vU}, {f32(-big)}")
    for j in range(8, 16): a(f"v_mov_b32 v{S0+j}, 0xff800000")
    a("s_waitcnt vmcnt(0)")
    for j in range(4):
        a(f"v_lshlrev_b32 v{S0+2*j}, 16, v{TM+j}"); a(f"v_and_b32 v{S0+2*j+1}, 0xffff0000, v{TM+j}")
    for j in range(8): a(f"v_fma_f32 v{S0+j}, v{S0+j}, s51, v{vU}")
    a(f"s_mov_b32 s{sCur}, {18*8}"); a(f"s_mov_b32 s50, {L_TK}")
    a("s_branch L_ktile")
    lab("L_tree1")
    cm("tree tokens, step 1 (wave 6 of the first workgroup): K/V -> LDS, mask -> registers")
    k_offsets()
    a(f"s_lshl_b32 s45, s{sPair}, 12"); a("s_movk_i32 s51, 4096")
    a("s_add_u32 s20, s10, s45"); a("s_addc_u32 s21, s11, 0"); a("s_mov_b32 s22, 4096"); a("s_mov_b32 s23, 0x20000")
    a(f"s_mov_b32 m0, {L_TK}")
    a("s_add_u32 s28, s12, s45"); a("s_addc_u32 s29, s13, 0"); a("s_mov_b32 s30, 4096"); a("s_mov_b32 s31, 0x20000")
    for j in range(4): a(f"buffer_load_dwordx4 v{vOff[j]}, {SS}, 0 offen offset:{j*1024} {qfl} lds")
    a(f"s_mov_b32 m0, {L_TK + 4096}")
    a(f"s_lshr_b32 s50, s{sPair}, 4"); a("s_lshl_b32 s50, s50, 9")
    for j in range(4): a(f"buffer_load_dwordx4 v{vOff[j]}, {SS}, s51 offen offset:{j*1024} lds")
    v_offset()
    a(f"s_mov_b32 m0, {L_TV}")
    a("s_add_u32 s36, s14, s50"); a("s_addc_u32 s37, s15, 0"); a("s_mov_b32 s38, 512"); a("s_mov_b32 s39, 0x20000")
    for j in range(4): a(f"buffer_load_dwordx4 v{vOff[0]}, {SQ}, 0 offen offset:{j*1024} {qfl} lds")
    a(f"v_and_b32 v{vU}, 15, v{vR}"); a(f"v_lshlrev_b32 v{vU}, 5, v{vU}"); a(f"v_lshl_add_u32 v{vU}, v{vH}, 3, v{vU}")
    a(f"buffer_load_dwordx2 {vr(TM, 2)}, v{vU}, {SM}, 0 offen")
    a(f"buffer_load_dwordx2 {vr(TM+2, 2)}, v{vU}, {SM}, 0 offen offset:16")
    a("s_branch L_knext")
    cm("hand-off word: bit 0 started, bit 1 acknowledged, bit 3 result published; +8 for the second workgroup. Only changes")
    cm("against the value seen at my own start count, and nothing is published before both have taken that snapshot.")
    def hs_poll(again, done):
        a(f"global_load_dword v{vU}, v{vZ}, s[66:67] sc1")
        a("s_waitcnt vmcnt(0)")
        a(f"v_readfirstlane_b32 s50, v{vU}")
        a(f"s_xor_b32 s50, s50, s{sSnap}"); a(f"s_lshr_b32 s50, s50, s{sOt}")
        a("s_and_b32 s51, s50, 3"); a(f"s_cbranch_scc0 {again}")
        a(f"s_mov_b32 s{sSt}, 2")
        a("s_bitcmp1_b32 s50, 0"); a(f"s_cbranch_scc0 {done}")
        a(f"s_lshl_b32 s{sAck}, 2, s{sMy}"); a(f"s_atomic_xor s{sAck}, s[66:67], 0")
        a(f"s_branch {done}")
    lab("L_hs")
    if "v" in warm:
        a(f"s_cmp_gt_u32 s{sCnt}, 4"); a("s_cbranch_scc1 L_hs0")
        a(f"s_lshl_b32 s50, s{sPair}, 21"); a("s_add_u32 s50, s8, s50"); a("s_addc_u32 s51, s9, 0")
        a(f"global_load_dword v{vTmp[0]}, v{vZ}, s[50:51] nt")
        lab("L_hs0")
    a(f"s_cmp_eq_u32 s{sSt}, 2"); a("s_cbranch_scc1 L_knext")
    a(f"s_cmp_eq_u32 s{sLim}, 1"); a("s_cbranch_scc1 L_knext")
    hs_poll("L_knext", "L_knext")
    lab("L_hsfin")
    if "o" in warm: a(f"buffer_load_dword v{vTmp[0]}, v{vZ}, {SO}, s69 offen")
    a(f"s_mov_b32 s71, {BOUND}")
    lab("L_hsw")
    a(f"s_cmp_eq_u32 s{sSt}, 2"); a("s_cbranch_scc1 L_stage")
    a("s_sub_u32 s71, s71, 1"); a("s_cbranch_scc1 L_stage")
    hs_poll("L_hsw", "L_stage")
    check_hazards([x for x in L if not x.startswith(".")])
    out = HEADER + DOC + f"; @launch grid=(256,1,1) block=(512,1,1) lds={LDS}\n"
    out += '.amdgcn_target "amdgcn-amd-amdhsa--gfx950"\n.text\n' + f".globl {NAME}\n.p2align 8\n.type {NAME},@function\n{NAME}:\n"
    out += "\n".join(" ".join(x.split(" ")).rstrip().replace("  lds", " lds") for x in L) + "\n"
    out += '.section .rodata,"a"\n.p2align 6\n' + f".amdhsa_kernel {NAME}\n"
    out += f"  .amdhsa_next_free_vgpr 256\n  .amdhsa_next_free_sgpr {100 if base else 96}\n  .amdhsa_accum_offset 256\n"
    out += "  .amdhsa_group_segment_fixed_size 0\n  .amdhsa_kernarg_size 72\n  .amdhsa_user_sgpr_count 2\n"
    out += "  .amdhsa_user_sgpr_kernarg_segment_ptr 1\n  .amdhsa_system_sgpr_workgroup_id_x 1\n.end_amdhsa_kernel\n"
    return out

if __name__ == "__main__":
    out = sys.argv[1]
    kw = {}
    for x in sys.argv[2:]:
        k, v = x.split("=", 1)
        if v in ("True", "False"): v = v == "True"
        else:
            try: v = int(v)
            except ValueError: pass
        kw[k] = v
    open(out, "w").write(gen(**kw))
```
